```python
import torch

def _softmax(x, axis=-1):
    return torch.softmax(x, dim=axis)
def _gelu(x):
    return torch.nn.functional.gelu(x, approximate="tanh")
def _silu(x):
    return torch.nn.functional.silu(x)
def _sigmoid(x):
    return torch.sigmoid(x)
def _layernorm(x, axis=-1, eps=1e-5):
    m = x.mean(dim=axis, keepdim=True)
    v = x.var(dim=axis, keepdim=True, unbiased=False)
    return (x - m) / torch.sqrt(v + eps)
def _scatter_add(tgt, idx, src, axis=0):
    return tgt.clone().index_add_(axis, idx, src)
def _segment_sum(src, seg, n):
    out = torch.zeros((n,) + src.shape[1:], dtype=src.dtype)
    return out.index_add_(0, seg, src)
def _pad(x, pw):
    flat = tuple(v for pair in reversed(pw) for v in pair)
    return torch.nn.functional.pad(x, flat)

kernel_name = 'recurrent_scan__mha_block__mixer_channel_mlp__prompt'

def setup_inputs():

    _w = (lambda a: (lambda t: t.to(torch.bfloat16) if t.is_floating_point() else t)(torch.as_tensor(a)))
    def _A_setup():
        B, S, D, H = 1, 2048, 640, 32
        return {
            "x": _w((lambda *s: torch.randn(*s, dtype=torch.bfloat16) * 0.05)(B, S, D)),
            "wqkv": _w((lambda *s: torch.randn(*s, dtype=torch.bfloat16) * 0.05)(D, 3 * D)),
            "wo": _w((lambda *s: torch.randn(*s, dtype=torch.bfloat16) * 0.05)(D, D)),
        }
    _A_in = _A_setup()

    def _B_setup():
        B, S, D, F = 1, 2048, 640, 1728
        return {
            "x": _w((lambda *s: torch.randn(*s, dtype=torch.bfloat16) * 0.05)(B, S, D)),
            "w1": _w((lambda *s: torch.randn(*s, dtype=torch.bfloat16) * 3.2)(D, F) * (D ** -0.5)),
            "b1": _w((lambda *s: torch.randn(*s, dtype=torch.bfloat16) * 1.6)(F)),
            "w2": _w((lambda *s: torch.randn(*s, dtype=torch.bfloat16) * 0.05)(F, D) * (F ** -0.5)),
            "b2": _w((lambda *s: torch.randn(*s, dtype=torch.bfloat16) * 0.05)(D)),
        }
    _B_in = _B_setup()

    return {
        "A_x": _A_in["x"],
        "A_wqkv": _A_in["wqkv"],
        "A_wo": _A_in["wo"],
        "B_x": _B_in["x"],
        "B_w1": _B_in["w1"],
        "B_b1": _B_in["b1"],
        "B_w2": _B_in["w2"],
        "B_b2": _B_in["b2"],
    }

def reference(A_x, A_wqkv, A_wo, B_x, B_w1, B_b1, B_w2, B_b2):
    def _A_ref(x, wqkv, wo):
        B, S, D = x.shape
        H = 32
        Dh = D // H
        qkv = (lambda x, *d: x.permute(*d))((x @ wqkv).reshape(B, S, 3, H, Dh), 2, 0, 3, 1, 4)
        q, k, v = qkv[0], qkv[1], qkv[2]
        scores = torch.einsum("bhqd,bhkd->bhqk", q, k) * (Dh ** -0.5)
        p = _softmax(scores, axis=-1)
        o = torch.einsum("bhqk,bhkd->bhqd", p, v)
        return (lambda x, *d: x.permute(*d))(o, 0, 2, 1, 3).reshape(B, S, D) @ wo

    def _B_ref(x, w1, b1, w2, b2):
        y = _layernorm(x, axis=-1)
        h = _gelu(torch.einsum("bsd,df->bsf", y, w1) + b1)
        return torch.einsum("bsf,fd->bsd", h, w2) + b2

    x = A_x
    xn = _layernorm(x, axis=-1)
    s = _A_ref(xn, A_wqkv, A_wo)
    g = _silu(_B_ref(xn, B_w1, B_b1, B_w2, B_b2))
    return x + s * g
```

```python
import re

RE_RANGE = re.compile(r'^([vsa])\[(\d+):(\d+)\]$')
RE_ONE = re.compile(r'^([vsa])(\d+)$')

def regs_of(op):
    op = op.strip()
    neg = op.lstrip('-')
    if neg.startswith('abs(') and neg.endswith(')'): neg = neg[4:-1]
    if neg.startswith('|') and neg.endswith('|'): neg = neg[1:-1]
    m = RE_RANGE.match(neg)
    if m: return {(m.group(1), i) for i in range(int(m.group(2)), int(m.group(3)) + 1)}
    m = RE_ONE.match(neg)
    if m: return {(m.group(1), int(m.group(2)))}
    if neg == 'vcc': return {('s', 'vcc')}
    if neg == 'exec': return {('s', 'exec')}
    if neg == 'm0': return {('s', 'm0')}
    return set()

TRANS = ('v_exp_', 'v_log_', 'v_rcp_', 'v_rsq_', 'v_sqrt_', 'v_sin_', 'v_cos_')

class Ins:
    def __init__(self, text, maybe=False, nowait=False):
        self.text = text.strip()
        self.maybe = maybe
        self.nowait = nowait
        t = self.text.split(';')[0].strip()
        self.label = t.endswith(':') or t.startswith('.') or t == ''
        self.w = set(); self.r = set()
        self.kind = 'other'
        if self.label:
            self.kind = 'label'; self.mn = ''
            return
        parts = t.split(None, 1)
        self.mn = mn = parts[0]
        rest = parts[1] if len(parts) > 1 else ''
        ops = []; depth = 0; cur = ''
        for ch in rest:
            if ch in '[(': depth += 1
            if ch in '])': depth -= 1
            if ch == ',' and depth == 0: ops.append(cur.strip()); cur = ''
            else: cur += ch
        if cur.strip(): ops.append(cur.strip())
        mods = ''
        if ops:
            sp = ops[-1].split(None, 1)
            ops[-1] = sp[0]
            mods = sp[1] if len(sp) > 1 else ''
        self.ops = ops; self.mods = mods
        R = [regs_of(o) for o in ops]
        if mn.startswith('v_mfma') or mn.startswith('v_smfmac'):
            self.kind = 'mfma'
            self.passes = 8 if '32x32' in mn else 4
            self.w = set(R[0]); self.A = R[1]; self.B = R[2]
            if mn.startswith('v_smfmac'):
                self.C = set(R[0]); self.B = R[2] | R[3]
            else:
                self.C = R[3]
            self.r = self.A | self.B | self.C
        elif mn.startswith('v_'):
            self.kind = 'valu'
            self.trans = mn.startswith(TRANS)
            self.dot = mn.startswith('v_dot')
            if mn.startswith('v_cmp'):
                self.w = set(R[0]);
                for x in R[1:]: self.r |= x
                if mn.startswith('v_cmpx'): self.w.add(('s', 'exec'))
            elif mn.startswith('v_permlane') and 'swap' in mn:
                self.w = R[0] | R[1]; self.r = R[0] | R[1]
            elif '_co_' in mn:
                self.w = R[0] | R[1]
                for x in R[2:]: self.r |= x
            else:
                self.w = set(R[0])
                for x in R[1:]: self.r |= x
                if mn.startswith(('v_fmac', 'v_dot2c', 'v_mac', 'v_pk_fmac')) or 'UNUSED_PRESERVE' in mods:
                    self.r |= R[0]
        elif mn.startswith('ds_'):
            self.kind = 'ds'
            if mn.startswith(('ds_read', 'ds_bpermute', 'ds_permute', 'ds_swizzle')):
                self.w = set(R[0])
                for x in R[1:]: self.r |= x
            else:
                for x in R: self.r |= x
        elif mn.startswith(('buffer_', 'global_')):
            self.kind = 'vmem'
            self.lds = (' lds' in ' ' + mods) or '_lds_' in mn
            self.store = 'store' in mn or ('atomic' in mn)
            if mn in ('buffer_wbl2', 'buffer_inv'):
                pass
            elif self.lds:
                for x in R: self.r |= x
                self.r.add(('s', 'm0'))
            elif 'load' in mn:
                self.w = set(R[0])
                for x in R[1:]: self.r |= x
                if 'd16' in mn: self.r |= R[0]
            else:
                for x in R: self.r |= x
                if 'atomic' in mn and 'sc0' in mods: self.w = set(R[0])
                self.data = R[0] if mn.startswith('buffer_') else R[1]
        elif mn.startswith('s_load') or mn.startswith('s_buffer_load') or mn.startswith('s_memtime') or mn.startswith('s_memrealtime'):
            self.kind = 'smem'
            self.w = set(R[0])
            for x in R[1:]: self.r |= x
        elif mn == 's_waitcnt':
            self.kind = 'wait'
            f = rest
            m = re.search(r'vmcnt\((\d+)\)', f); self.vm = int(m.group(1)) if m else None
            m = re.search(r'lgkmcnt\((\d+)\)', f); self.lg = int(m.group(1)) if m else None
        elif mn == 's_nop':
            self.kind = 'nop'; self.n = int(ops[0], 0) + 1
        elif mn.startswith('s_'):
            self.kind = 'salu'
            if mn.startswith(('s_cmp', 's_cbranch', 's_branch', 's_barrier', 's_endpgm', 's_setprio', 's_sleep', 's_bitcmp')):
                for x in R: self.r |= x
            else:
                if R:
                    self.w = set(R[0])
                    for x in R[1:]: self.r |= x
                if 'saveexec' in mn: self.w.add(('s', 'exec'))
    def states(self):
        if self.kind == 'label' or self.maybe: return 0
        if self.kind == 'nop': return self.n
        return 1
    def __repr__(self): return self.text

def isv(S): return {x for x in S if x[0] in 'va'}
def iss(S): return {x for x in S if x[0] == 's'}

def need(p, c):
    n = 0
    if p.kind == 'valu':
        pv = isv(p.w); ps = iss(p.w)
        if c.kind == 'mfma':
            if pv & c.r: n = max(n, 3 if p.dot else 2)
            if ('s', 'exec') in ps: n = max(n, 4)
        if c.kind == 'valu':
            if p.trans and not c.trans and (pv & c.r): n = max(n, 1)
            if p.dot and (pv & (c.r | c.w)):
                if c.mn != p.mn: n = max(n, 3)
                else:
                    srcs = set()
                    for o in c.ops[1:3]: srcs |= regs_of(o)
                    if pv & srcs: n = max(n, 3)
            if c.mn.startswith(('v_readlane', 'v_readfirstlane')) and (pv & c.r): n = max(n, 1)
            if c.mn.startswith('v_permlane') and (pv & c.r): n = max(n, 2)
            if ('dpp' in c.mn or 'quad_perm' in c.mods or 'row_' in c.mods) and (pv & c.r): n = max(n, 2)
            if ps & c.r: n = max(n, 4 if c.mn.startswith(('v_readlane', 'v_writelane')) else 2)
            if ('sdwa' in p.mn or 'op_sel:' in p.mods) and (pv & (c.r | c.w)): n = max(n, 1)
            if ('s', 'exec') in ps and c.mn.startswith(('v_readlane', 'v_readfirstlane', 'v_writelane', 'v_permlane')): n = max(n, 4)
        if c.kind in ('vmem', 'ds') and p.dot and (pv & c.r): n = max(n, 3)
        if c.kind == 'vmem' and (ps & c.r): n = max(n, 5)
        if c.kind in ('salu',) and (ps & c.r): n = max(n, 1)
    if p.kind == 'mfma':
        big = p.passes == 8
        if c.kind == 'mfma':
            if p.w & (c.A | c.B): n = max(n, 12 if big else 8)
            if p.w & c.C:
                if not (p.w == c.C and p.passes == c.passes): n = max(n, 10 if big else 6)
            elif p.w & c.w and p.passes != c.passes: n = max(n, 10 if big else 6)
        elif c.kind == 'valu':
            if p.w & (c.r | c.w): n = max(n, 12 if big else 8)
            if p.C & c.w: n = max(n, 7 if big else 3)
        elif c.kind in ('vmem', 'ds'):
            if p.w & (c.r | c.w): n = max(n, 12 if big else 8)
    if p.kind == 'salu' and ('s', 'm0') in p.w and c.kind == 'vmem' and getattr(c, 'lds', False): n = max(n, 1)
    if p.kind == 'vmem' and getattr(p, 'store', False) and hasattr(p, 'data') and len(p.data) >= 3:
        if c.kind == 'valu' and (p.data & c.w): n = max(n, 2)
        elif c.kind != 'valu' and (p.data & c.w): n = max(n, 1)
    return n

def as_ins(x):
    return x if isinstance(x, Ins) else Ins(x)

def fix_hazards(code, pre=(), log=None):
    out = [as_ins(x) for x in pre]
    npre = len(out)
    for c in code:
        c = as_ins(c)
        if c.kind not in ('label', 'nop', 'wait'):
            d = 0; worst = 0
            for p in reversed(out):
                if d >= 13: break
                k = need(p, c) - d
                if k > worst: worst = k; wp = p
                d += p.states()
            if worst > 0:
                if log is not None: log.append(f"pad {worst}: {wp} -> {c}")
                out.append(Ins(f"s_nop {worst-1}"))
        out.append(c)
    return out[npre:]

def fix_waits(code, pend_lg=(), pend_vm=(), ret=False):
    lg = [set(x) for x in pend_lg]; vm = [set(x) for x in pend_vm]
    out = []
    for c in code:
        c = as_ins(c)
        if c.kind == 'wait':
            if c.vm is not None: vm = vm[len(vm) - c.vm:] if c.vm < len(vm) and c.vm > 0 else ([] if c.vm == 0 else vm)
            if c.lg is not None: lg = lg[len(lg) - c.lg:] if c.lg < len(lg) and c.lg > 0 else ([] if c.lg == 0 else lg)
            out.append(c); continue
        if c.kind == 'label': out.append(c); continue
        touched = c.r | c.w
        nl = None; nv = None
        tl = c.r if c.kind == 'ds' else touched
        tv = c.r if c.kind == 'vmem' else touched
        for i in range(len(lg) - 1, -1, -1):
            if lg[i] & tl: nl = len(lg) - 1 - i; break
        for i in range(len(vm) - 1, -1, -1):
            if vm[i] & tv: nv = len(vm) - 1 - i; break
        if nl is not None or nv is not None:
            t = "s_waitcnt"
            if nv is not None:
                nv = min(nv, 63); t += f" vmcnt({nv})"; vm = vm[len(vm) - nv:] if nv else []
            if nl is not None:
                nl = min(nl, 15); t += f" lgkmcnt({nl})"; lg = lg[len(lg) - nl:] if nl else []
            out.append(Ins(t))
        if c.kind == 'ds': lg.append(set(c.w))
        elif c.kind == 'vmem': vm.append(set(c.w))
        elif c.kind == 'smem': raise Exception("smem in fix_waits region: " + c.text)
        out.append(c)
    if ret: return out, lg, vm
    return out

def interleave(main, fill, start=0, end=None, is_anchor=lambda i: i.kind == 'mfma'):
    main = [as_ins(x) for x in main]
    anchors = [i for i, x in enumerate(main) if is_anchor(x) and not x.maybe]
    if end is None: end = len(anchors)
    sel = anchors[start:end]
    n = len(sel)
    buckets = {a: [] for a in sel}
    for j, f in enumerate(fill):
        a = sel[min(n - 1, j * n // len(fill))]
        buckets[a] += [as_ins(y) for y in (f if isinstance(f, (list, tuple)) else [f])]
    out = []
    for i, x in enumerate(main):
        out.append(x)
        if i in buckets: out += buckets[i]
    return out

def render(code):
    s = []
    for c in code:
        c = as_ins(c)
        s.append(c.text if c.kind == 'label' else "    " + c.text)
    return "\n".join(s) + "\n"

def vr(b, n=1): return f"v{b}" if n == 1 else f"v[{b}:{b+n-1}]"
def sr(b, n=1): return f"s{b}" if n == 1 else f"s[{b}:{b+n-1}]"
def vset(b, n): return {('v', i) for i in range(b, b + n)}
```

```python
from asmlib import *
import struct
def f2u(x): return struct.unpack('<I', struct.pack('<f', x))[0]
def hx(x): return f"0x{x & 0xffffffff:08x}"
def fl(x): return hx(f2u(x))

WS_Q = 0
WS_K = 0x280000
WS_V = 0x500000
WS_H = 0x800000
WS_W2F = 0x1000000
WS_WOF = 0x1280000
WS_O = 0x1400000
WS_G = 0x1700000
WS_SIZE = 0x2000000
HS_QK = 81920
HS_V = 86016
OOB = 0x40000000

LOG2E = 1.4426950408889634
QSCALE = 20 ** -0.5 * LOG2E
GC1 = -2 * 0.7978845608028654 * LOG2E
GC2 = GC1 * 0.044715

def srd(d, lo, size):
    return [f"s_mov_b32 s{d}, s{lo}", f"s_mov_b32 s{d+1}, s{lo+1}", f"s_mov_b32 s{d+2}, {hx(size)}", f"s_mov_b32 s{d+3}, 0x00020000"]

def kernel_desc(name, vgpr, sgpr=96):
    return f"""
.section .rodata,"a"
.p2align 6
.amdhsa_kernel {name}
  .amdhsa_next_free_vgpr {vgpr}
  .amdhsa_next_free_sgpr {sgpr}
  .amdhsa_accum_offset {(vgpr + 3) // 4 * 4}
  .amdhsa_group_segment_fixed_size 0
  .amdhsa_kernarg_size 88
  .amdhsa_user_sgpr_count 2
  .amdhsa_user_sgpr_kernarg_segment_ptr 1
  .amdhsa_system_sgpr_workgroup_id_x 1
.end_amdhsa_kernel
"""
def kernel_head(name):
    return f""".text
.globl {name}
.p2align 8
.type {name},@function
{name}:
"""
```

```python
from common import *

X = 96; ACCM = 80; ACCE = 64; WF = 48; CSA = 44; CSD = 40; CSI = 39
EXTX = 36; RSA = 35; RS2 = 34; VTR = 33; VTX = 32; VWOFF = 31; VST = 30; VH = 29; VC2 = 28
VPW = 27; VPR = 26; VBIAS = 25; VRS = 24; VL16 = 23; VBOFF = 22
T = 2
MISC = 9 * 16384
L_PART = MISC; L_STAT = MISC + 2048; L_RS = MISC + 4096
XB = [3 * 16384, 6 * 16384, 0, 3 * 16384, 6 * 16384]
WS0 = [5, 8, 2, 5, 8]
sW, sRT, sG, sRB, sCB = 3, 4, 5, 6, 7
SX, SWD, SWS, SB1 = 8, 12, 16, 20
sW1, sW2, sWO = 24, 26, 28
sWOFF, sST8, sST120, sM0 = 30, 31, 32, 33
sR, sNR, sCT, sHU = 34, 35, 36, 37
sT = 38
sQKROW, sVOFF, sHOFF, sXOFF, sBOFF, sTASK = 44, 45, 46, 47, 48, 49

def wdma(m0_static=None):
    c = []
    if m0_static is not None:
        c += [f"s_lshl_b32 s{sT}, s{sW}, 11", f"s_add_u32 m0, s{sT}, {m0_static}"]
    else:
        c += [f"s_mov_b32 m0, s{sM0}"]
    c += [f"buffer_load_dwordx4 v{VWOFF}, {sr(SWD,4)}, s{sWOFF} offen lds",
          f"s_add_u32 s{sWOFF}, s{sWOFF}, s{sST8}",
          f"s_add_u32 m0, m0, 1024",
          f"buffer_load_dwordx4 v{VWOFF}, {sr(SWD,4)}, s{sWOFF} offen lds",
          f"s_add_u32 s{sWOFF}, s{sWOFF}, s{sST120}"]
    if m0_static is None:
        c += [f"s_add_u32 s{sM0}, s{sM0}, 16384", f"s_and_b32 s{sM0}, s{sM0}, 0x1ffff"]
    return c

def xdma(stage):
    c = [f"s_lshl_b32 s{sT}, s{sW}, 12", f"s_add_u32 m0, s{sT}, {XB[stage]}"]
    for q in range(4):
        c += [f"buffer_load_dwordx4 v{ACCE+q}, {sr(SX,4)}, s{sXOFF} offen lds"]
        if q < 3: c += ["s_add_u32 m0, m0, 1024"]
    c += [f"s_add_u32 s{sXOFF}, s{sXOFF}, 256"]
    return c

def set_w(ptr, size, stride, col_sgpr_bytes):
    return [f"s_mov_b32 s{SWD}, s{ptr}", f"s_mov_b32 s{SWD+1}, s{ptr+1}", f"s_mov_b32 s{SWD+2}, {size}",
            f"s_mov_b32 s{sST8}, {stride*8}", f"s_mov_b32 s{sST120}, {stride*120}",
            f"s_mul_i32 s{sWOFF}, s{sW}, {stride*16}", f"s_add_u32 s{sWOFF}, s{sWOFF}, s{col_sgpr_bytes}",
            f"v_lshrrev_b32 v{T}, 7, v{VL16}", f"v_mul_u32_u24 v{VWOFF}, {stride}, v{T}",
            f"v_lshrrev_b32 v{T}, 2, v{VL16}", f"v_xor_b32 v{T}, v{T}, v{VL16}",
            f"v_and_b32 v{T}, 0x40, v{T}", f"v_and_b32 v{T+1}, 0x30, v{VL16}",
            f"v_add3_u32 v{VWOFF}, v{VWOFF}, v{T}, v{T+1}"]

def trread(ks):
    f = WF + 4 * (ks & 3)
    a = VTR if (ks >> 1) == 0 else VTX
    c = []
    if ks & 1 == 0 and ks >> 1:
        c.append(f"v_xor_b32 v{VTX}, {hx((ks >> 1) << 12)}, v{VTR}")
    c += [f"ds_read_b64_tr_b16 {vr(f,2)}, v{a} offset:{(ks & 1) * 2048}",
          f"ds_read_b64_tr_b16 {vr(f+2,2)}, v{a} offset:{(ks & 1) * 2048 + 512}"]
    return c

def mfma(ks, orient):
    f = WF + 4 * (ks & 3); x = X + 4 * ks
    d = ACCE if ks == 39 else ACCM
    c = "0" if ks == 0 else vr(ACCM, 16)
    a, b = (vr(f,4), vr(x,4)) if orient == 'N' else (vr(x,4), vr(f,4))
    return f"v_mfma_f32_32x32x16_bf16 {vr(d,16)}, {a}, {b}, {c}"

CSM = f"v_smfmac_f32_16x16x64_bf16 {vr(CSD,4)}, {vr(CSA,4)}, {vr(WF,8)}, v{CSI}"
NEXT_SLOT = [f"v_add_u32 v{VTR}, 16384, v{VTR}", f"v_and_b32 v{VTR}, 0x1ffff, v{VTR}"]
BIASLD = f"buffer_load_short_d16_hi v{VBIAS}, v{VBOFF}, {sr(SB1,4)}, s{sBOFF} offen"
PARTW = [f"v_add_f32 v{T+18}, v{CSD}, v{CSD+1}", f"v_add_f32 v{T+18}, v{T+18}, v{VBIAS}",
         f"ds_write_b32 v{VPW}, v{T+18}", f"v_mov_b32 v{CSD}, 0", f"v_mov_b32 v{CSD+1}, 0"]

def ext(orient):
    t = T + 2
    c = [f"ds_read_b128 {vr(t,4)}, v{VPR}",
         f"v_add_f32 v{t}, v{t}, v{t+1}", f"v_add_f32 v{t+2}, v{t+2}, v{t+3}", f"v_add_f32 v{t}, v{t}, v{t+2}",
         f"v_cvt_pk_bf16_f32 v{t+3}, v{t}, 0",
         f"v_lshlrev_b32 v{t+1}, 16, v{t+3}", f"v_sub_f32 v{t+1}, v{t}, v{t+1}",
         f"v_cvt_pk_bf16_f32 v{t+2}, v{t}, v{t+1}"]
    a, b = (vr(t+2,2), vr(EXTX,2)) if orient == 'N' else (vr(EXTX,2), vr(t+2,2))
    m = f"v_mfma_f32_32x32x8_bf16 {vr(ACCE,16)}, {a}, {b}, {vr(ACCE,16)}"
    return c, m

def epi_qk():
    c = []
    for gq in range(4):
        a = ACCE + 4 * gq; p = T + 2 + 2 * (gq & 1) ; ad = T + 6 + (gq & 1)
        c += [[f"s_lshl_b32 s{sT}, s{sCT}, 3", f"s_add_u32 s{sT}, s{sT}, {2*gq}",
               f"s_mul_i32 s{sT+1}, s{sT}, 52429", f"s_lshr_b32 s{sT+1}, s{sT+1}, 18"],
              [f"s_mul_i32 s{sT+2}, s{sT+1}, 5", f"s_sub_u32 s{sT}, s{sT}, s{sT+2}",
               f"s_mul_i32 s{sT+1}, s{sT+1}, {HS_QK}", f"s_lshl_b32 s{sT+2}, s{sT}, 9"],
              [f"s_add_u32 s{sT+1}, s{sT+1}, s{sT+2}", f"s_add_u32 s{sT+1}, s{sT+1}, s{sQKROW}",
               f"s_cmp_eq_u32 s{sT}, 4", f"s_cselect_b32 s{sT}, {HS_QK - 2560}, 0",
               f"v_mad_u32_u24 v{ad}, v{VH}, s{sT}, v{VST}", f"s_mov_b32 s{sT+3+(gq&1)}, s{sT+1}"]]
        c += [f"v_mul_f32 v{a+i}, v{RSA}, v{a+i}" for i in range(4)]
        c += [f"v_cvt_pk_bf16_f32 v{p}, v{a}, v{a+1}", f"v_cvt_pk_bf16_f32 v{p+1}, v{a+2}, v{a+3}",
              f"buffer_store_dwordx2 {vr(p,2)}, v{ad}, {sr(SWS,4)}, s{sT+3+(gq&1)} offen"]
    return c

def epi_v():
    ad = T; a2 = T + 1; r = T + 2; p = T + 6; one = T + 14
    c = [[f"s_lshl_b32 s{sT}, s{sCT}, 5", f"s_sub_u32 s{sT}, s{sT}, 1280",
          f"v_bfe_u32 v{a2}, v{VL16}, 4, 5", f"v_add_u32 v{a2}, s{sT}, v{a2}"],
         f"v_mul_u32_u24 v{ad}, 3277, v{a2}", f"v_lshrrev_b32 v{ad}, 16, v{ad}",
         f"v_mul_u32_u24 v{r}, 20, v{ad}", f"v_sub_u32 v{a2}, v{a2}, v{r}",
         f"v_mul_u32_u24 v{ad}, {HS_V}, v{ad}", f"v_lshl_add_u32 v{ad}, v{a2}, 4, v{ad}",
         f"v_mul_u32_u24 v{r}, 336, v{VH}", f"v_add_u32 v{ad}, v{ad}, v{r}",
         f"v_lshlrev_b32 v{a2}, 25, v{a2}", f"v_add_u32 v{a2}, v{a2}, v{ad}"]
    c += [f"v_mov_b32 v{one+i}, 0x3f803f80" for i in range(4)]
    c += [f"buffer_store_dwordx4 {vr(one,4)}, v{a2}, {sr(SWS,4)}, s{sVOFF} offen offset:320",
          f"buffer_store_dwordx4 {vr(one,4)}, v{a2}, {sr(SWS,4)}, s{sVOFF} offen offset:{672+320}"]
    for q in range(4):
        a = ACCE + 4 * q
        c += [f"ds_read_b128 {vr(r,4)}, v{VRS} offset:{32*q}"]
        c += [f"v_mul_f32 v{a+i}, v{r+i}, v{a+i}" for i in range(4)]
        c += [f"v_cvt_pk_bf16_f32 v{p+2*q}, v{a}, v{a+1}", f"v_cvt_pk_bf16_f32 v{p+2*q+1}, v{a+2}, v{a+3}"]
        if q & 1:
            c += [f"buffer_store_dwordx4 {vr(p+4*(q>>1),4)}, v{ad}, {sr(SWS,4)}, s{sVOFF} offen offset:{672*(q>>1)}"]
    return c

def epi_h():
    t = T + 2; p = T + 6
    c = [[f"s_lshl_b32 s{sT+3}, s{sCT}, 11", f"s_add_u32 s{sT+3}, s{sT+3}, s{sHOFF}"]]
    for q in range(4):
        a = ACCE + 4 * q
        R = range(4)
        c += [f"v_mul_f32 v{a+i}, v{RS2}, v{a+i}" for i in R]
        c += [f"v_mul_f32 v{t+i}, v{a+i}, v{a+i}" for i in R]
        c += [f"v_fmaak_f32 v{t+i}, v{t+i}, v{VC2}, {fl(GC1)}" for i in R]
        c += [f"v_mul_f32 v{t+i}, v{t+i}, v{a+i}" for i in R]
        c += [f"v_exp_f32 v{t+i}, v{t+i}" for i in R]
        c += [f"v_add_f32 v{t+i}, 1.0, v{t+i}" for i in R]
        c += [f"v_rcp_f32 v{t+i}, v{t+i}" for i in R]
        c += [f"v_mul_f32 v{a+i}, v{t+i}, v{a+i}" for i in R]
        c += [f"v_cvt_pk_bf16_f32 v{p+2*q}, v{a}, v{a+1}", f"v_cvt_pk_bf16_f32 v{p+2*q+1}, v{a+2}, v{a+3}"]
        if q & 1:
            c += [f"buffer_store_dwordx4 {vr(p+4*(q>>1),4)}, v{VL16}, {sr(SWS,4)}, s{sT+3} offen offset:{1024*(q>>1)}"]
    return c

EPI = {'QK': epi_qk, 'V': epi_v, 'H': epi_h}
PEND3 = [vset(WF,2), vset(WF+2,2), vset(WF+4,2), vset(WF+6,2), vset(WF+8,2), vset(WF+10,2)]

def body(orient, etype):
    main = []
    for ks in range(40):
        s, l = divmod(ks, 8)
        if l == 0:
            main += [Ins(f"s_waitcnt vmcnt(@{s})" if False else "s_nop 0 ;@VM"), "s_barrier"]
            main[-2].tag = s
        main += [mfma(ks, orient)]
        if l == 0:
            main += wdma()
            if s == 0: main += [BIASLD]
        if l == 1: main += [CSM]
        n = l + 3
        if n == 8: main += NEXT_SLOT
        main += trread(n & 7)
        if ks == 37: main += PARTW
    main = [as_ins(x) for x in main]
    isM = lambda i: i.kind == 'mfma' and '32x32x16' in i.mn
    ec, em = ext('V' if etype == 'V' else 'N')
    main = interleave(main, ec + [em], 0, 4, isM)
    main = interleave(main, EPI[etype](), 7, 38, isM)
    main += ["s_waitcnt lgkmcnt(6)"] if False else []
    out = []; nv = 0; first_dma_done = None
    for x in main:
        x = as_ins(x)
        if hasattr(x, 'tag'):
            s = x.tag
            n = (2 * (3 - s) + nv) if s < 4 else (nv - 2)
            out.append(Ins(f"s_waitcnt vmcnt({n})" + (" lgkmcnt(4)" if s == 0 else "")))
            continue
        if x.kind == 'vmem': nv += 1
        out.append(x)
    pend = PEND3[:2] + [set()] + PEND3[2:]
    out = fix_waits(out, pend_lg=pend)
    pre = [mfma(38, 'N')] + trread(1) + [mfma(39, 'N')] + trread(2)
    return fix_hazards(out, pre)

def dots(stage, lab):
    A = ACCE + 4; ONE = ACCE + 8
    c = [f"s_cmp_eq_u32 s{sG}, 0", f"s_cbranch_scc1 {lab}_a"]
    for i in range(32):
        x = X + 32 * stage + i
        c.append(f"v_dot2c_f32_bf16 v{A + (i & 3)}, v{x}, v{x}")
    c += [f"s_branch {lab}_b", f"{lab}_a:"]
    for i in range(32):
        x = X + 32 * stage + i
        c.append(Ins(f"v_dot2c_f32_bf16 v{A + (i & 3)}, v{x}, v{ONE}", maybe=True))
    c += [f"{lab}_b:"]
    return c

def rbf(d, s):
    return [f"v_cvt_pk_bf16_f32 v{d}, v{s}, v{s}", f"v_and_b32 v{d}, 0xffff0000, v{d}"]

def stats():
    t = T + 2
    m, v, d, u = t, t + 2, t + 1, t + 3
    c = [f"ds_read_b128 {vr(t,4)}, v{ACCE+11}",
         f"v_add_f32 v{m}, v{t}, v{t+1}", f"v_add_f32 v{v}, v{t+2}, v{t+3}",
         f"v_mul_f32 v{m}, {fl(1/640)}, v{m}", f"v_mul_f32 v{v}, {fl(1/640)}, v{v}",
         f"v_fma_f32 v{v}, -v{m}, v{m}, v{v}", f"v_max_f32 v{v}, 0, v{v}"]
    c += rbf(d, v) + [f"v_add_f32 v{d}, {fl(1e-5)}, v{d}"] + rbf(d, d) + [f"v_sqrt_f32 v{d}, v{d}"] + rbf(d, d)
    c += [f"v_rcp_f32 v{u}, v{d}",
          f"ds_write_b32 v{ACCE+12}, v{u}",
          f"v_mul_f32 v{RSA}, v{RSA}, v{u}",
          f"v_mul_f32 v{v}, v{v}, v{u}", f"v_mul_f32 v{v}, v{v}, v{u}"]
    c += rbf(v, v) + [f"v_add_f32 v{v}, {fl(1e-5)}, v{v}"] + rbf(v, v) + [f"v_sqrt_f32 v{v}, v{v}"] + rbf(v, v)
    c += [f"v_mul_f32 v{d}, v{d}, v{v}", f"v_rcp_f32 v{RS2}, v{d}",
          f"v_sub_f32 v{m}, 0, v{m}",
          [f"v_cmp_eq_u32 vcc, 0, v{VH}", f"v_cndmask_b32 v{m}, v{d}, v{m}, vcc"],
          f"v_cvt_pk_bf16_f32 v{EXTX}, v{m}, v{m}", f"v_and_b32 v{d}, 0xffff0000, v{EXTX}",
          f"v_sub_f32 v{m}, v{m}, v{d}", f"v_cvt_pk_bf16_f32 v{EXTX+1}, v{m}, 0"]
    return c

def round0(orient, lab):
    A0 = ACCE + 9; AX = ACCE + 10
    c = []
    vmw = [13, 11, 11, 10, 10]
    for s in range(5):
        c += [f"s_waitcnt vmcnt({vmw[s]})", "s_barrier"]
        c += [f"v_add_u32 v{VTR}, {WS0[s]*16384}, v{ACCE+13}", f"v_add_u32 v{T}, {XB[s]}, v{A0}"]
        for i in range(8):
            x = X + 32 * s + 4 * i
            if i: c += [f"v_xor_b32 v{T+1}, {32*i}, v{T}"]
            c += [f"ds_read_b128 {vr(x,4)}, v{T+1 if i else T}"]
        for l in range(3): c += trread(l)
        if s in (1, 2): c += wdma(WS0[s+2] * 16384)
        if s == 2: c += [f"s_mul_i32 s{sT}, s{sST8}, 80", f"s_sub_u32 s{sWOFF}, s{sWOFF}, s{sT}", f"s_add_u32 s{sWOFF}, s{sWOFF}, 128"]
        if s == 3: c += wdma()
        if s > 0: c += dots(s - 1, f"{lab}_d{s}")
        if s < 4:
            c += ["s_waitcnt lgkmcnt(6)", "s_barrier"]
            if s < 2: c += xdma(s + 3)
            else: c += wdma() + wdma()
        blk = []
        for l in range(8):
            ks = 8 * s + l
            blk += [mfma(ks, orient)]
            if l == 1: blk += [CSM]
            if s == 4 and l == 1:
                A = ACCE + 4
                blk += dots(4, f"{lab}_d5")
                blk += [f"v_add_f32 v{A}, v{A}, v{A+1}", f"v_add_f32 v{A+2}, v{A+2}, v{A+3}", f"v_add_f32 v{A}, v{A}, v{A+2}",
                        f"ds_write_b32 v{AX}, v{A}"]
            if l + 3 < 8: blk += trread(l + 3)
            elif s == 4:
                if l == 5: blk += [f"v_mov_b32 v{VTR}, v{ACCE+13}"]
                blk += trread(l + 3 - 8)
            if s == 4 and l == 3:
                blk += ["s_waitcnt vmcnt(8) lgkmcnt(0)", "s_barrier"]
                st = []
                for y in stats(): st += y if isinstance(y, list) else [y]
                blk += st
            if ks == 37: blk += PARTW
        c += blk
    c = fix_waits(c)
    return fix_hazards(c)

def prologue():
    c = ["s_cmp_ge_u32 s2, 256", "s_cbranch_scc1 L1_end",
         "s_load_dwordx4 s[60:63], s[0:1], 0",
         f"s_load_dwordx2 {sr(sWO,2)}, s[0:1], 16",
         "s_load_dwordx4 s[64:67], s[0:1], 32",
         f"s_load_dwordx2 {sr(sW2,2)}, s[0:1], 48",
         "s_load_dwordx2 s[68:69], s[0:1], 80",
         f"v_lshrrev_b32 v1, 6, v0", f"v_and_b32 v0, 63, v0", f"v_readfirstlane_b32 s{sW}, v1",
         f"v_lshlrev_b32 v{VL16}, 4, v0", f"v_lshrrev_b32 v{VH}, 5, v0",
         f"s_and_b32 s{sRT}, s{sW}, 3", f"s_lshr_b32 s{sG}, s{sW}, 2",
         f"s_and_b32 s{sRB}, s2, 1", f"s_lshl_b32 s{sRB}, s{sRB}, 3", f"s_bfe_u32 s{sT}, s2, 0x30003", f"s_add_u32 s{sRB}, s{sRB}, s{sT}",
         f"s_bfe_u32 s{sCB}, s2, 0x20001", f"s_lshr_b32 s{sT}, s2, 6", f"s_lshl_b32 s{sT}, s{sT}, 2", f"s_add_u32 s{sCB}, s{sCB}, s{sT}",
         f"s_mul_i32 s{sXOFF}, s{sRB}, {128*1280}"]
    c += [f"v_lshrrev_b32 v{T}, 4, v0", f"v_xor_b32 v{T+1}, v{T}, v0", f"v_and_b32 v{T+1}, 15, v{T+1}", f"v_lshlrev_b32 v{T+1}, 4, v{T+1}",
          f"s_lshl_b32 s{sT}, s{sW}, 4", f"v_add_u32 v{T}, s{sT}, v{T}", f"v_mul_u32_u24 v{T}, 1280, v{T}"]
    for q in range(4):
        c += [f"v_xor_b32 v{T+2}, {64*q}, v{T+1}", f"v_add_u32 v{T+2}, {5120*q}, v{T+2}", f"v_add_u32 v{ACCE+q}, v{T}, v{T+2}"]
    c += [f"s_lshl_b32 s{sHU}, s{sCB}, 1", f"s_add_u32 s{sT}, s{sCB}, 8", f"s_cmp_lt_u32 s{sCB}, 8", f"s_cselect_b32 s{sHU}, s{sHU}, s{sT}",
          f"s_cselect_b32 s{sNR}, 4, 3", f"s_cmp_eq_u32 s{sCB}, 15", f"s_cselect_b32 s{sNR}, 4, s{sNR}"]
    c += ["s_waitcnt lgkmcnt(0)"]
    c += srd(SX, 60, 2621440) + [f"s_mov_b32 s{SWD+3}, 0x00020000", f"s_mov_b32 s{sW1}, s64", f"s_mov_b32 s{sW1+1}, s65"]
    c += xdma(0)
    c += srd(SB1, 66, 0)
    c += [f"s_mov_b32 s{sBOFF}, 0",
          f"s_cmp_eq_u32 s{sCB}, 15", "s_cbranch_scc1 L1_w1first",
          f"s_lshl_b32 s{sT+1}, s{sCB}, 8"] + set_w(62, 640*3840, 3840, sT+1)
    c += [f"s_lshl_b32 s{sCT}, s{sCB}, 2", "s_branch L1_wset", "L1_w1first:",
          f"s_lshl_b32 s{sBOFF}, s{sHU}, 7"] + set_w(sW1, 640*3456, 3456, sBOFF)
    c += [f"s_mov_b32 s{SB1+2}, 3456", f"s_lshl_b32 s{sCT}, s{sHU}, 1", "L1_wset:",
          f"s_add_u32 s{sCT}, s{sCT}, s{sG}"]
    c += wdma(WS0[0]*16384) + xdma(1) + wdma(WS0[1]*16384) + xdma(2) + wdma(WS0[2]*16384)
    c += [f"v_lshlrev_b32 v{VBOFF}, 1, v0", f"s_lshl_b32 s{sT}, s{sG}, 6", f"s_sub_u32 s{sT}, s{sT}, 64",
          f"s_lshl_b32 s{sT+1}, s{sRT}, 20", f"s_add_u32 s{sT}, s{sT}, s{sT+1}", f"v_add_u32 v{VBOFF}, s{sT}, v{VBOFF}",
          f"v_xor_b32 v{T}, 1, v{VH}", f"v_lshl_add_u32 v{VBOFF}, v{T}, 24, v{VBOFF}", BIASLD]
    c += srd(SWS, 68, WS_SIZE)
    c += [f"s_lshl_b32 s{sM0}, s{sW}, 11"]
    c += [f"v_bfe_u32 v{T}, v0, 2, 2", f"v_lshl_add_u32 v{T+1}, v{VH}, 3, v{T}", f"v_lshlrev_b32 v{T+1}, 7, v{T+1}",
          f"v_lshrrev_b32 v{T}, 1, v{T}", f"v_xor_b32 v{T}, s{sG}, v{T}", f"v_lshl_add_u32 v{T+1}, v{T}, 6, v{T+1}",
          f"v_bfe_u32 v{T}, v0, 4, 1", f"v_lshl_add_u32 v{T+1}, v{T}, 5, v{T+1}",
          f"v_and_b32 v{T}, 3, v0", f"v_lshl_add_u32 v{T+1}, v{T}, 3, v{T+1}",
          f"s_lshl_b32 s{sT}, s{sRT}, 12", f"v_add_u32 v{ACCE+13}, s{sT}, v{T+1}"]
    c += [f"v_and_b32 v{T}, 31, v0", f"v_and_b32 v{T+1}, 15, v0", f"v_xor_b32 v{T+1}, v{T+1}, v{VH}", f"v_lshlrev_b32 v{T+1}, 4, v{T+1}",
          f"s_lshl_b32 s{sT}, s{sRT}, 6", f"v_xor_b32 v{T+1}, s{sT}, v{T+1}",
          f"v_lshl_add_u32 v{T+1}, v{T}, 8, v{T+1}", f"s_lshl_b32 s{sT}, s{sRT}, 13", f"v_add_u32 v{ACCE+9}, s{sT}, v{T+1}"]
    c += [f"s_lshl_b32 s{sT}, s{sRT}, 9", f"s_add_u32 s{sT}, s{sT}, {L_STAT}", f"v_lshl_add_u32 v{ACCE+11}, v{T}, 4, s{sT}",
          f"v_lshl_add_u32 v{ACCE+10}, v{VH}, 2, v{ACCE+11}", f"s_lshl_b32 s{sT}, s{sG}, 3", f"v_add_u32 v{ACCE+10}, s{sT}, v{ACCE+10}",
          f"s_lshl_b32 s{sT}, s{sW}, 7", f"s_add_u32 s{sT}, s{sT}, {L_RS}", f"v_lshl_add_u32 v{ACCE+12}, v{T}, 2, s{sT}",
          f"v_lshl_add_u32 v{VRS}, v{VH}, 4, s{sT}",
          f"s_lshl_b32 s{sT}, s{sG}, 10", f"s_add_u32 s{sT}, s{sT}, {L_PART}", f"v_add_u32 v{VPR}, s{sT}, v{VL16}",
          f"s_lshl_b32 s{sT}, s{sRT}, 2", f"v_add_u32 v{VPW}, s{sT}, v{VPR}"]
    c += [f"v_lshrrev_b32 v{T+1}, 1, v{T}", f"v_xor_b32 v{T+1}, v{T+1}, v{T}", f"v_and_b32 v{T+1}, 4, v{T+1}",
          f"v_mul_u32_u24 v{T+1}, 3, v{T+1}",
          f"s_cmp_lt_u32 s{sCB}, 5", f"s_cselect_b32 s{sT}, 0, 12", f"s_cselect_b32 s{sT+1}, {fl(QSCALE)}, 1.0",
          f"v_and_b32 v{T+1}, s{sT}, v{T+1}", f"v_xor_b32 v{T+1}, v{T+1}, v{T}", f"v_lshlrev_b32 v{VST}, 3, v{T+1}", f"v_lshl_add_u32 v{VST}, v{VH}, 9, v{VST}",
          f"v_mov_b32 v{RSA}, s{sT+1}", f"v_mov_b32 v{VC2}, {fl(GC2)}"]
    c += [f"s_lshl_b32 s{sT}, s{sRB}, 2", f"s_add_u32 s{sT}, s{sT}, s{sRT}",
          f"s_lshr_b32 s{sT+1}, s{sT}, 1", f"s_mul_i32 s{sQKROW}, s{sT+1}, 2560", f"s_and_b32 s{sT+1}, s{sT}, 1",
          f"s_lshl_b32 s{sT+1}, s{sT+1}, 8", f"s_add_u32 s{sQKROW}, s{sQKROW}, s{sT+1}",
          f"s_mul_i32 s{sVOFF}, s{sT}, 1344", f"s_add_u32 s{sVOFF}, s{sVOFF}, {hx(WS_V)}",
          f"s_mul_i32 s{sHOFF}, s{sT}, {108*1024}", f"s_add_u32 s{sHOFF}, s{sHOFF}, {hx(WS_H)}"]
    c += [f"v_and_b32 v{T}, 14, v0", f"v_mov_b32 v{ACCE+8}, 0x3f803f80",
          f"v_cmp_eq_u32 vcc, 0, v{T}", f"v_cndmask_b32 v{CSA}, 0, v{ACCE+8}, vcc", f"v_mov_b32 v{CSA+1}, v{CSA}",
          f"v_cmp_eq_u32 vcc, 4, v{T}", f"v_cndmask_b32 v{CSA+2}, 0, v{ACCE+8}, vcc", f"v_mov_b32 v{CSA+3}, v{CSA+2}",
          f"v_and_b32 v{T}, 1, v0", f"v_mul_u32_u24 v{T}, 0xaaaa, v{T}", f"v_add_u32 v{CSI}, 0x4444, v{T}"]
    c += [f"v_mov_b32 v{CSD+i}, 0" for i in range(4)] + [f"v_mov_b32 v{ACCE+4+i}, 0" for i in range(4)]
    return fix_hazards(c)

def between(R):
    c = []
    if R == 1:
        c += [f"s_cmp_eq_u32 s{sCB}, 15", f"s_cselect_b32 s{sT+1}, 2, 0", f"s_add_u32 s{sT+1}, s{sT+1}, s{sHU}", f"s_lshl_b32 s{sT+1}, s{sT+1}, 7"]
        c += set_w(sW1, 640*3456, 3456, sT+1)
        c += [f"s_add_u32 s{sBOFF}, s{sBOFF}, 128"]
    if R == 2:
        c += [f"s_cmp_eq_u32 s{sCB}, 15", f"s_cselect_b32 s{sT+1}, 2, 0", f"s_add_u32 s{sT+1}, s{sT+1}, s{sHU}",
              f"s_lshl_b32 s{sBOFF}, s{sT+1}, 7", f"s_mov_b32 s{SB1+2}, 3456", f"s_add_u32 s{sCT}, s{sCT}, 2"]
        c += [f"s_cmp_eq_u32 s{sNR}, 3", "s_cbranch_scc1 L1_rl",
              f"s_sub_u32 s{sWOFF}, s{sWOFF}, {640*3456 - 128}", "s_branch L1_rl_done", "L1_rl:"]
        c += [f"s_sub_u32 s{sTASK}, s{sCB}, 8", f"s_mul_i32 s{sTASK}, s{sTASK}, 10", f"s_lshr_b32 s{sT}, s{sRB}, 3", f"s_mul_i32 s{sT}, s{sT}, 5",
              f"s_add_u32 s{sTASK}, s{sTASK}, s{sT}", f"s_and_b32 s{sT}, s{sRB}, 7", f"s_add_u32 s{sTASK}, s{sTASK}, s{sT}",
              f"s_cmp_lt_u32 s{sT}, 5", f"s_cselect_b32 s{sTASK}, s{sTASK}, 99",
              f"s_mul_i32 s{sT+2}, s{sTASK}, 6554", f"s_lshr_b32 s{sT+2}, s{sT+2}, 16", f"s_mul_i32 s{sT}, s{sT+2}, 10", f"s_sub_u32 s{sT}, s{sTASK}, s{sT}",
              f"s_lshl_b32 s{sT+1}, s{sT}, 7", f"s_mul_i32 s{sT}, s{sT+2}, {640*1280}", f"s_cmp_lt_u32 s{sT+2}, 3",
              f"s_cselect_b32 s{sT}, s{sT}, 0", f"s_add_u32 s{sT+1}, s{sT+1}, s{sT}"]
        c += set_w(sW2, 1728*1280, 1280, sT+1)
        c += [f"s_cmp_lt_u32 s{sTASK}, 30", "s_cbranch_scc1 L1_rl_done",
              f"s_mov_b32 s{SWD}, s{sWO}", f"s_mov_b32 s{SWD+1}, s{sWO+1}",
              f"s_cmp_lt_u32 s{sTASK}, 40", f"s_cselect_b32 s{SWD+2}, {640*1280}, 0", "L1_rl_done:"]
    if R == 3:
        c += [f"s_lshr_b32 s{sCT}, s{sBOFF}, 6", f"s_add_u32 s{sCT}, s{sCT}, s{sG}",
              f"s_mov_b32 s{SWD+2}, 0", f"s_add_u32 s{sBOFF}, s{sBOFF}, 128"]
    return fix_hazards(c)

def tail():
    c = [f"s_lshr_b32 s{sCT}, s{sBOFF}, 6", f"s_add_u32 s{sCT}, s{sCT}, s{sG}",
         "s_waitcnt vmcnt(0) lgkmcnt(0)", "s_barrier"]
    ec, em = ext('N')
    c += ec + [em]
    for y in epi_h(): c += y if isinstance(y, list) else [y]
    c = fix_waits(c)
    pre = [mfma(39, 'N')] + trread(2)
    c = fix_hazards(c, pre)
    r = [f"s_cmp_eq_u32 s{sNR}, 4", "s_cbranch_scc1 L1_end", f"s_cmp_ge_u32 s{sTASK}, 40", "s_cbranch_scc1 L1_end",
         f"v_and_b32 v{T}, 0x1ff, v{VTR}", f"v_add_u32 v{T}, 32768, v{T}",
         f"s_mul_i32 s{sT+2}, s{sTASK}, 6554", f"s_lshr_b32 s{sT+2}, s{sT+2}, 16",
         f"s_mul_i32 s{sT}, s{sT+2}, 10", f"s_sub_u32 s{sT}, s{sTASK}, s{sT}", f"s_lshl_b32 s{sT}, s{sT}, 1", f"s_add_u32 s{sT}, s{sT}, s{sG}",
         f"s_mul_i32 s{sT+1}, s{sT}, 52429", f"s_lshr_b32 s{sT+1}, s{sT+1}, 18",
         f"s_mul_i32 s{sT+3}, s{sT+1}, 5", f"s_sub_u32 s{sT}, s{sT}, s{sT+3}", f"s_lshl_b32 s{sT}, s{sT}, 10",
         f"s_cmp_lt_u32 s{sT+2}, 3", f"s_cselect_b32 s{sT+3}, 108, 40", f"s_cselect_b32 s50, 0, {hx(WS_WOF - WS_W2F)}",
         f"s_cselect_b32 s51, 16, 20", f"s_cselect_b32 s52, 64, 32", f"s_cselect_b32 s53, s{sT+2}, 0",
         f"s_mul_i32 s{sT+1}, s{sT+1}, s{sT+3}", f"s_mul_i32 s53, s53, 40", f"s_sub_u32 s54, s{sT+3}, s53",
         f"s_add_u32 s{sT+1}, s{sT+1}, s53", f"s_mul_i32 s{sT+1}, s{sT+1}, 5120", f"s_add_u32 s50, s50, s{sT+1}", f"s_add_u32 s50, s50, s{sT}", f"s_add_u32 s50, s50, {hx(WS_W2F)}",
         f"s_mul_i32 s55, s{sRT}, 10", f"s_add_u32 s56, s55, 10", f"s_min_u32 s56, s56, s54",
         "L1_rloop:",
         f"s_cmp_ge_u32 s55, s56", "s_cbranch_scc1 L1_end",
         f"s_mul_i32 s{sT}, s55, s51", f"s_sub_u32 s{sT+1}, s55, 32", f"s_mul_i32 s{sT+1}, s{sT+1}, 80", f"s_add_u32 s{sT+1}, s{sT+1}, 16",
         f"s_cmp_lt_u32 s55, s52", f"s_cselect_b32 s{sT}, s{sT}, s{sT+1}", f"s_cselect_b32 s{sT+1}, 4, 40", f"s_cselect_b32 s{sT+2}, 8, 20",
         f"s_lshl_b32 s{sT}, s{sT}, 7", f"s_lshl_b32 s{sT+1}, s{sT+1}, 7", f"s_lshl_b32 s{sT+2}, s{sT+2}, 7",
         f"v_mad_u32_u24 v{T+1}, v{VH}, s{sT+1}, v{T}", f"v_add_u32 v{T+1}, s{sT}, v{T+1}", f"v_add_u32 v{T+6}, s{sT+2}, v{T+1}",
         f"ds_read_b64_tr_b16 {vr(T+2,2)}, v{T+1}", f"ds_read_b64_tr_b16 {vr(T+4,2)}, v{T+6}",
         f"s_mul_i32 s{sT}, s55, 5120", f"s_add_u32 s{sT}, s{sT}, s50", f"s_add_u32 s55, s55, 1",
         "s_waitcnt lgkmcnt(0)",
         f"buffer_store_dwordx4 {vr(T+2,4)}, v{VL16}, {sr(SWS,4)}, s{sT} offen",
         "s_branch L1_rloop"]
    return c + fix_hazards(r)

def kernel(name):
    c = prologue()
    c += [f"s_cmp_lt_u32 s{sCB}, 10", "s_cbranch_scc1 L1_pathN", f"s_cmp_eq_u32 s{sCB}, 15", "s_cbranch_scc1 L1_pathN"]
    c += round0('V', "L1v") + [f"s_mov_b32 s{sR}, 1", "s_branch L1_btw1"]
    c += ["L1_bVV:"] + body('V', 'V') + ["s_branch L1_btw2"]
    c += ["L1_bNV:"] + body('N', 'V') + ["s_branch L1_tail"]
    c += ["L1_pathN:"] + round0('N', "L1n")
    c += ["L1_btw1:"] + between(1) + [f"s_mov_b32 s{sR}, 1", "s_branch L1_disp"]
    c += ["L1_btw2:"] + between(2) + [f"s_mov_b32 s{sR}, 2"]
    c += ["L1_disp:", f"s_cmp_eq_u32 s{sCB}, 15", "s_cbranch_scc1 L1_bNH", f"s_cmp_lt_u32 s{sCB}, 10", "s_cbranch_scc1 L1_bNQ",
          f"s_cmp_eq_u32 s{sR}, 1", "s_cbranch_scc1 L1_bVV", "s_branch L1_bNV"]
    c += ["L1_bNQ:"] + body('N', 'QK')
    c += ["L1_next:", f"s_cmp_eq_u32 s{sR}, 1", "s_cbranch_scc1 L1_btw2", f"s_cmp_eq_u32 s{sNR}, 3", "s_cbranch_scc1 L1_tail"]
    c += between(3) + [f"s_mov_b32 s{sR}, 3"]
    c += ["L1_bNH:"] + body('N', 'H')
    c += [f"s_cmp_lt_u32 s{sR}, 3", "s_cbranch_scc1 L1_next"]
    c += ["L1_tail:"] + tail() + ["L1_end:", "s_endpgm"]
    return kernel_head(name) + render(c)
```

```python
from common import *

S = {(0,0): 16, (1,0): 32, (0,1): 48, (1,1): 64}
O = [80, 96]; Q = [112, 118]; K = [124, 130]; V = [136, 144]; IDX = 152
AK0, AK1, AK2, AV, AVN = 153, 154, 155, 156, 157
VH, VL16, VTOK, VVG = 240, 241, 242, 244
IA, IG, IC = 230, 233, 236
T = 2
LV = 81920; VCH = 21504
sW, sA, sHEAD, sQB, sRTILE, sCG = 3, 4, 5, 6, 7, 24
SWS, SB2, SX, SOUT = 8, 12, 16, 20
sT = 30
PAT = "CfeeeDfweeeAeeeBeeeeeee"
SLAB = 20992; SROW = 656

def qk(dst, kf, q):
    return (f"v_mfma_f32_32x32x16_bf16 {vr(dst,16)}, {vr(kf,4)}, {vr(Q[q],4)}, 0",
            f"v_mfma_f32_32x32x8_bf16 {vr(dst,16)}, {vr(kf+4,2)}, {vr(Q[q]+4,2)}, {vr(dst,16)}")
def pv(q, vf, s):
    return (f"v_smfmac_f32_32x32x32_bf16 {vr(O[q],16)}, {vr(vf,4)}, {vr(s,8)}, v{IDX}",
            f"v_smfmac_f32_32x32x32_bf16 {vr(O[q],16)}, {vr(vf+4,4)}, {vr(s+8,8)}, v{IDX}")
def kread(kt):
    f = K[kt & 1]
    return [f"ds_read2st64_b64 {vr(f,4)}, v{AK1 if kt & 1 else AK0} offset0:{5*(kt>>1)} offset1:{5*(kt>>1)+1}",
            f"ds_read_b32 v{f+4}, v{AK2} offset:{(kt>>1)*2560 + (kt&1)*256}"]
def vread(kt):
    f = V[kt & 1]; a = AV
    if kt == 16: a = AVN; kt = 0
    return [f"ds_read_b128 {vr(f,4)}, v{a} offset:{kt*1344}", f"ds_read_b128 {vr(f+4,4)}, v{a} offset:{kt*1344+672}"]

def loop_body(pat=PAT):
    c = []
    for i in range(32):
        kt, q = divmod(i, 2)
        ktp, qp = divmod(i - 1, 2)
        sc = S[(q, kt & 1)]
        A, B = qk(S[(q, (kt + 1) & 1)], K[(kt + 1) & 1], q)
        C, D = pv(qp, V[ktp & 1], S[(qp, ktp & 1)])
        fill = kread(kt + 2) if q == 0 else vread(kt + 1)
        e = f = 0
        if i == 28: c.append("s_barrier")
        for ch in pat:
            if ch == 'A': c.append(A)
            elif ch == 'B': c.append(B)
            elif ch == 'C': c.append(C)
            elif ch == 'D': c.append(D)
            elif ch == 'e': c.append(f"v_exp_f32 v{sc+e}, v{sc+e}"); e += 1
            elif ch == 'f': c.append(fill[f]); f += 1
            elif ch == 'w' and q == 0: c.append(f"s_waitcnt lgkmcnt({f})")
    return c

def shift_split(q, m):
    t = T + 8
    return [f"v_sub_f32 v{m}, 0, v{m}",
            f"v_cvt_pk_bf16_f32 v{t}, v{m}, v{m}", f"v_and_b32 v{t}, 0xffff0000, v{t}", f"v_sub_f32 v{t}, v{m}, v{t}",
            f"v_cvt_pk_bf16_f32 v{t+1}, v{m}, v{t}", f"v_and_b32 v{t+2}, 0xffff0000, v{t+1}", f"v_sub_f32 v{t}, v{t}, v{t+2}",
            f"v_cvt_pk_bf16_f32 v{t}, v{t}, 0",
            f"v_cmp_eq_u32 vcc, 0, v{VH}", f"v_cndmask_b32 v{Q[q]+5}, v{t}, v{t+1}, vcc"]

def max16(d, s, acc=False):
    c = [f"v_max3_f32 v{d}, v{s}, v{s+1}, v{d if acc else s}"]
    for j in range(2, 16, 2): c.append(f"v_max3_f32 v{d}, v{s+j}, v{s+j+1}, v{d}")
    return c
def xhalf_max(d):
    return [f"v_mov_b32 v{d+1}, v{d}", f"v_permlane32_swap_b32 v{d}, v{d+1}", f"v_max_f32 v{d}, v{d}, v{d+1}"]

def attn_setup():
    c = [f"s_setprio 2",
         f"s_lshl_b32 s{sT}, s{sQB}, 2", f"s_add_u32 s{sT}, s{sT}, s{sA}", f"s_mul_i32 s{sT}, s{sT}, 2560",
         f"s_mul_i32 s{sT+1}, s{sHEAD}, {HS_QK}", f"s_add_u32 s{sT}, s{sT}, s{sT+1}",
         f"v_lshlrev_b32 v{AK0}, 3, v{VTOK}", f"v_lshl_add_u32 v{AK2}, v{VH}, 2, v{AK0}", f"v_add_u32 v{AK2}, 2048, v{AK2}",
         f"v_lshl_add_u32 v{AK0}, v{VH}, 10, v{AK0}", f"v_add_u32 v{AK1}, 256, v{AK0}"]
    for q in range(2):
        c += [f"buffer_load_dwordx2 {vr(Q[q],2)}, v{AK0}, {sr(SWS,4)}, s{sT} offen offset:{256*q}",
              f"buffer_load_dwordx2 {vr(Q[q]+2,2)}, v{AK0}, {sr(SWS,4)}, s{sT} offen offset:{256*q+512}",
              f"buffer_load_dword v{Q[q]+4}, v{AK2}, {sr(SWS,4)}, s{sT} offen offset:{256*q}"]
    c += [f"v_min_u32 v{AV}, 20, v{VTOK}", f"v_cmp_lt_u32 vcc, 27, v{VTOK}", f"v_cndmask_b32 v{AV}, v{AV}, 4, vcc",
          f"v_lshlrev_b32 v{AV}, 4, v{AV}", f"v_mul_u32_u24 v{T}, 336, v{VH}", f"v_add_u32 v{AV}, v{AV}, v{T}",
          f"v_mov_b32 v{VVG}, v{AV}",
          f"v_add_u32 v{AVN}, {LV + VCH}, v{AV}", f"v_add_u32 v{AV}, {LV}, v{AV}",
          f"v_mov_b32 v{IDX}, 0xdddddddd", f"v_mov_b32 v{K[0]+5}, 0x3f803f80", f"v_mov_b32 v{K[1]+5}, 0x3f803f80",
          f"v_mov_b32 v{Q[0]+5}, 0", f"v_mov_b32 v{Q[1]+5}, 0"]
    c += [f"v_mov_b32 v{r}, 0" for r in list(range(O[0], O[0]+32)) + list(range(S[(1,1)], S[(1,1)]+16)) + list(range(V[1], V[1]+8))]
    return c

def attn():
    c = attn_setup()
    c += ["s_barrier"]
    c += kread(0) + kread(1) + vread(0)
    for q in range(2): c += list(qk(S[(q,0)], K[0], q))
    for q in range(2):
        c += max16(T + 2*q, S[(q,0)]) + xhalf_max(T + 2*q) + shift_split(q, T + 2*q)
    for q in range(2): c += list(qk(S[(q,0)], K[0], q))
    c += [f"s_mov_b32 s{sT+2}, 0", "s_waitcnt lgkmcnt(0)", "s_nop 7"]
    c = fix_hazards(fix_waits(c))
    body = loop_body()
    upd = [f"v_add_u32 v{AK0}, 20480, v{AK0}", f"v_add_u32 v{AK1}, 20480, v{AK1}", f"v_add_u32 v{AK2}, 20480, v{AK2}",
           f"v_mov_b32 v{AV}, v{AVN}",
           f"s_add_u32 s{sT+2}, s{sT+2}, 1", f"s_cmp_eq_u32 s{sT+2}, 2", f"s_cselect_b32 s{sT+3}, {hx(-3*VCH)}, 0",
           f"s_add_u32 s{sT+3}, s{sT+3}, {VCH}", f"v_add_u32 v{AVN}, s{sT+3}, v{AVN}",
           f"s_cmp_lt_u32 s{sT+2}, 4", "s_cbranch_scc1 L2_loop"]
    two = [as_ins(x) for x in body + upd + body]
    chk = fix_hazards(fix_waits(two))
    assert len(chk) == len(two), "attention loop needs extra waits/pads: %d" % (len(chk) - len(two))
    c += [".p2align 6", "L2_loop:"] + body + upd
    C, D = pv(1, V[1], S[(1,1)])
    e = ["s_waitcnt lgkmcnt(0)", C, D, "L2_fin:"]
    e += [f"v_cmp_eq_u32 vcc, 0, v{VH}"]
    for q in range(2):
        e += [f"v_cndmask_b32 v{T+q}, v{O[q]+8}, v{O[q]+12}, vcc"]
    chk = []
    chk += [f"v_add_f32 v{T+2}, v{T}, v{T+1}", f"v_min_f32 v{T+3}, v{T}, v{T+1}"]
    for q in range(2):
        for j in range(12): chk += [f"v_add_f32 v{T+2}, abs(v{O[q]+j}), v{T+2}"]
    chk += [f"v_mov_b32 v{T+4}, 0x7f000000", f"v_mov_b32 v{T+5}, 0x35800000",
            f"v_cmp_lt_f32 vcc, v{T+2}, v{T+4}", f"v_cmp_gt_f32 s[36:37], v{T+3}, v{T+5}", f"s_and_b64 vcc, vcc, s[36:37]",
            f"s_cmp_eq_u64 vcc, exec", f"s_cselect_b32 s{sT+3}, 4, s{sT+2}", f"s_cmp_eq_u32 s{sT+3}, 4"]
    chk[-2] = f"s_cselect_b32 s{sT+3}, 5, s{sT+2}"
    chk += ["s_cbranch_scc1 L2_slow"]
    e += chk
    st = [f"s_lshl_b32 s{sT}, s{sQB}, 3", f"s_lshl_b32 s{sT+1}, s{sA}, 1", f"s_add_u32 s{sT}, s{sT}, s{sT+1}",
          f"s_mul_i32 s{sT}, s{sT}, 40960", f"s_add_u32 s{sT}, s{sT}, {hx(WS_O)}",
          f"s_lshl_b32 s{sT+1}, s{sHEAD}, 10", f"s_add_u32 s{sT+1}, s{sT+1}, s{sT}",
          f"s_lshr_b32 s{sT+4}, s{sHEAD}, 1", f"s_lshl_b32 s{sT+4}, s{sT+4}, 9", f"s_and_b32 s{sT+5}, s{sHEAD}, 1", f"s_lshl_b32 s{sT+5}, s{sT+5}, 3",
          f"s_add_u32 s{sT}, s{sT}, s{sT+4}", f"s_add_u32 s{sT}, s{sT}, s{sT+5}", f"s_add_u32 s{sT}, s{sT}, 32768",
          f"v_lshl_add_u32 v{T+2}, v{VH}, 30, v{VL16}"]
    for q in range(2):
        p = 16 + 8 * q
        st += [f"v_rcp_f32 v{T+q}, v{T+q}"]
        st += [f"v_mul_f32 v{O[q]+j}, v{T+q}, v{O[q]+j}" for j in range(12)]
        st += [f"v_cvt_pk_bf16_f32 v{p+j}, v{O[q]+2*j}, v{O[q]+2*j+1}" for j in range(6)]
        st += [f"buffer_store_dwordx4 {vr(p,4)}, v{VL16}, {sr(SWS,4)}, s{sT+1} offen",
               f"buffer_store_dwordx2 {vr(p+4,2)}, v{T+2}, {sr(SWS,4)}, s{sT} offen"]
        if q == 0: st += [f"s_add_u32 s{sT}, s{sT}, 40960", f"s_add_u32 s{sT+1}, s{sT+1}, 40960"]
    e += st + ["s_setprio 0", "s_branch L2_join"]
    c += fix_hazards(e, body[-12:] + upd)
    c += slow_path()
    return c

def slow_path():
    kb, vb, i = sT + 4, sT + 5, sT + 6
    kf = K[0]; vf = V[0]
    def kload():
        return [f"s_lshr_b32 s{sT}, s{i}, 1", f"s_mul_i32 s{sT}, s{sT}, 2560", f"s_and_b32 s{sT+1}, s{i}, 1", f"s_lshl_b32 s{sT+1}, s{sT+1}, 8",
                f"s_add_u32 s{sT}, s{sT}, s{sT+1}", f"s_add_u32 s{sT}, s{sT}, s{kb}",
                f"buffer_load_dwordx2 {vr(kf,2)}, v{AK0}, {sr(SWS,4)}, s{sT} offen",
                f"buffer_load_dwordx2 {vr(kf+2,2)}, v{AK0}, {sr(SWS,4)}, s{sT} offen offset:512",
                f"buffer_load_dword v{kf+4}, v{AK2}, {sr(SWS,4)}, s{sT} offen"]
    c = ["L2_slow:",
         f"s_mul_i32 s{kb}, s{sHEAD}, {HS_QK}", f"s_add_u32 s{kb}, s{kb}, {hx(WS_K)}",
         f"s_mul_i32 s{vb}, s{sHEAD}, {HS_V}", f"s_add_u32 s{vb}, s{vb}, {hx(WS_V)}",
         f"v_subrev_u32 v{AK0}, 81920, v{AK0}", f"v_subrev_u32 v{AK2}, 81920, v{AK2}",
         f"v_mov_b32 v{Q[0]+5}, 0", f"v_mov_b32 v{Q[1]+5}, 0",
         f"v_mov_b32 v{T}, 0xff800000", f"v_mov_b32 v{T+2}, 0xff800000", f"s_mov_b32 s{i}, 0"]
    l1 = ["L2_s1:"] + kload()
    for q in range(2): l1 += list(qk(S[(q,0)], kf, q))
    for q in range(2): l1 += max16(T + 2*q, S[(q,0)], acc=True)
    l1 += [f"s_add_u32 s{i}, s{i}, 1", f"s_cmp_lt_u32 s{i}, 64", "s_cbranch_scc1 L2_s1"]
    mid = []
    for q in range(2): mid += xhalf_max(T + 2*q) + shift_split(q, T + 2*q)
    mid += [f"v_mov_b32 v{r}, 0" for r in range(O[0], O[0]+32)] + [f"s_mov_b32 s{i}, 0"]
    l2 = ["L2_s2:"] + kload()
    l2 += [f"s_mul_i32 s{sT}, s{i}, 1344", f"s_add_u32 s{sT}, s{sT}, s{vb}",
           f"buffer_load_dwordx4 {vr(vf,4)}, v{VVG}, {sr(SWS,4)}, s{sT} offen",
           f"buffer_load_dwordx4 {vr(vf+4,4)}, v{VVG}, {sr(SWS,4)}, s{sT} offen offset:672"]
    for q in range(2): l2 += list(qk(S[(q,0)], kf, q))
    for q in range(2):
        l2 += [f"v_exp_f32 v{S[(q,0)]+j}, v{S[(q,0)]+j}" for j in range(16)]
        l2 += list(pv(q, vf, S[(q,0)]))
    l2 += [f"s_add_u32 s{i}, s{i}, 1", f"s_cmp_lt_u32 s{i}, 64", "s_cbranch_scc1 L2_s2",
           f"s_mov_b32 s{sT+2}, 5", "s_nop 15", "s_branch L2_fin"]
    return fix_hazards(fix_waits(c + l1 + mid + l2))

ACC = 16; FB = 96; NBUF = 4; VL2 = 243
def gload(buf, sa, sb):
    f = FB + 24 * buf
    c = [f"buffer_load_dwordx4 {vr(f,4)}, v{VL16}, {sr(SWS,4)}, s{sa} offen"]
    for j in range(4): c += [f"buffer_load_dwordx4 {vr(f+4+4*j,4)}, v{VL16}, {sr(SWS,4)}, s{sb} offen offset:{1024*j}"]
    c += [f"buffer_load_dwordx4 {vr(f+20,4)}, v{VL2}, {sr(SWS,4)}, s{sb} offen",
          f"s_add_u32 s{sa}, s{sa}, 1024", f"s_add_u32 s{sb}, s{sb}, 5120"]
    return c
def gmm(buf, first):
    f = FB + 24 * buf
    return [f"v_mfma_f32_32x32x16_bf16 {vr(ACC+16*j,16)}, {vr(f+4+4*j,4)}, {vr(f,4)}, {'0' if first else vr(ACC+16*j,16)}" for j in range(5)]
def gemm(nk, sa, sb, hooks):
    c = []
    for k in range(min(NBUF - 1, nk)): c += gload(k, sa, sb)
    for k in range(nk):
        c += hooks.get(k, [])
        mm = gmm(k % NBUF, k == 0)
        ld = gload((k + NBUF - 1) % NBUF, sa, sb) if k + NBUF - 1 < nk else []
        for j in range(5):
            c += [mm[j]]
            if ld: c += [ld[j]] if j < 4 else ld[4:]
    return c
def slab_write():
    a = T
    c = [f"v_mul_u32_u24 v{a}, {SROW}, v{VTOK}", f"v_lshl_add_u32 v{a}, v{VH}, 4, v{a}",
         f"s_mul_i32 s{sT}, s{sA}, {SLAB}", f"v_add_u32 v{a}, s{sT}, v{a}"]
    for j in range(5):
        for q in range(4):
            c += [f"ds_write_b128 v{a}, {vr(ACC+16*j+4*q,4)} offset:{128*j+32*q}"]
    return c
def item_addr():
    c = [f"v_lshrrev_b32 v{T}, 4, v{VL16}", f"s_lshl_b32 s{sT}, s{sW}, 2",
         f"s_lshl_b32 s{sT+1}, s{sRTILE}, 5", f"s_mul_i32 s{sT+1}, s{sT+1}, 1280", f"s_mul_i32 s{sT+2}, s{sCG}, 320", f"s_add_u32 s{sT+1}, s{sT+1}, s{sT+2}"]
    for p in range(3):
        c += [f"v_add_u32 v{T+1}, {64*p}, v{T}"]
        if p == 2: c += [f"v_min_u32 v{T+1}, 159, v{T+1}"]
        c += [f"v_mul_u32_u24 v{T+2}, 1639, v{T+1}", f"v_lshrrev_b32 v{T+2}, 16, v{T+2}",
              f"v_mul_u32_u24 v{T+3}, 40, v{T+2}", f"v_sub_u32 v{T+1}, v{T+1}, v{T+3}",
              f"v_add_u32 v{T+2}, s{sT}, v{T+2}",
              f"v_mul_u32_u24 v{IA+p}, {SROW}, v{T+2}", f"v_lshl_add_u32 v{IA+p}, v{T+1}, 4, v{IA+p}",
              f"v_lshlrev_b32 v{IC+p}, 3, v{T+1}",
              f"v_mul_u32_u24 v{IG+p}, 1280, v{T+2}", f"v_add3_u32 v{IG+p}, v{IG+p}, v{IC+p}, s{sT+1}",
              f"v_add_u32 v{IC+p}, s{sT+2}, v{IC+p}"]
        if p == 2: c += [f"v_lshl_add_u32 v{IG+p}, v{VH}, 30, v{IG+p}"]
    return c
def reduce4(dst):
    c = []
    for p in range(3):
        for s in range(4):
            c += [f"ds_read_b128 {vr(dst+16*p+4*s,4)}, v{IA+p} offset:{SLAB*s}"]
    for p in range(3):
        b = dst + 16 * p
        for i in range(4):
            c += [f"v_add_f32 v{b+i}, v{b+i}, v{b+4+i}", f"v_add_f32 v{b+8+i}, v{b+8+i}, v{b+12+i}"]
        c += [f"v_add_f32 v{b+i}, v{b+i}, v{b+8+i}" for i in range(4)]
    return c
def unpack(d, s):
    return [f"v_lshlrev_b32 v{d}, 16, v{s}", f"v_and_b32 v{d+1}, 0xffff0000, v{s}",
            f"v_lshlrev_b32 v{d+2}, 16, v{s+1}", f"v_and_b32 v{d+3}, 0xffff0000, v{s+1}"]

def common_prologue(end):
    return ["s_cmp_ge_u32 s2, 256", f"s_cbranch_scc1 {end}",
         "s_load_dwordx2 s[60:61], s[0:1], 0", "s_load_dwordx4 s[64:67], s[0:1], 56", "s_load_dwordx2 s[68:69], s[0:1], 80",
         f"v_lshrrev_b32 v1, 6, v0", f"v_and_b32 v0, 63, v0", f"v_readfirstlane_b32 s{sW}, v1",
         f"v_lshlrev_b32 v{VL16}, 4, v0", f"v_lshrrev_b32 v{VH}, 5, v0", f"v_and_b32 v{VTOK}, 31, v0", f"v_add_u32 v{VL2}, 4096, v{VL16}",
         f"s_and_b32 s{sA}, s{sW}, 3",
         f"s_and_b32 s{sT}, s2, 7", f"s_lshr_b32 s{sT+1}, s2, 3",
         f"s_lshl_b32 s{sHEAD}, s{sT}, 2", f"s_lshr_b32 s{sT+2}, s{sT+1}, 3", f"s_add_u32 s{sHEAD}, s{sHEAD}, s{sT+2}", f"s_and_b32 s{sQB}, s{sT+1}, 7",
         f"s_lshl_b32 s{sRTILE}, s{sT}, 3", f"s_lshr_b32 s{sT+2}, s{sT+1}, 2", f"s_add_u32 s{sRTILE}, s{sRTILE}, s{sT+2}", f"s_and_b32 s{sCG}, s{sT+1}, 3",
         "s_waitcnt lgkmcnt(0)"] + srd(SWS, 68, WS_SIZE) + srd(SB2, 64, 1280) + srd(SX, 60, 2621440) + srd(SOUT, 66, 2621440)

def kvdma(n, so, lds_base):
    c = []
    for j in range(n):
        c += [f"s_add_u32 m0, s{sT+8}, {lds_base + 4096*j}",
              f"buffer_load_dwordx4 v{VL16}, {sr(SWS,4)}, s{so} offen lds", f"s_add_u32 s{so}, s{so}, 4096"]
    return c

def kernel2(name):
    c = common_prologue("L2_end")
    c += [f"s_cmp_ge_u32 s{sW}, 4", "s_cbranch_scc1 L2_gemm"]
    c = fix_hazards(c)
    c += attn()
    sk, sv, sa, sb = sT + 9, sT + 10, sT + 11, sT + 12
    g = ["L2_gemm:", f"s_lshl_b32 s{sT+8}, s{sA}, 10",
         f"s_mul_i32 s{sk}, s{sHEAD}, {HS_QK}", f"s_add_u32 s{sk}, s{sk}, {hx(WS_K)}", f"s_add_u32 s{sk}, s{sk}, s{sT+8}",
         f"s_mul_i32 s{sv}, s{sHEAD}, {HS_V}", f"s_add_u32 s{sv}, s{sv}, {hx(WS_V)}", f"s_add_u32 s{sv}, s{sv}, s{sT+8}"]
    g += kvdma(5, sk, 0) + kvdma(6, sv, LV)
    g += kvdma(5, sk, 20480) + kvdma(5, sv, LV + 24576)
    g += ["s_waitcnt vmcnt(10)", "s_barrier"]
    g += kvdma(10, sk, 40960) + kvdma(5, sv, LV + 45056)
    g += [f"s_mul_i32 s{sa}, s{sRTILE}, 108", f"s_mul_i32 s{sT}, s{sA}, 27", f"s_add_u32 s{sa}, s{sa}, s{sT}", f"s_lshl_b32 s{sa}, s{sa}, 10",
          f"s_add_u32 s{sa}, s{sa}, {hx(WS_H)}",
          f"s_mul_i32 s{sb}, s{sCG}, 108", f"s_add_u32 s{sb}, s{sb}, s{sT}", f"s_mul_i32 s{sb}, s{sb}, 5120", f"s_add_u32 s{sb}, s{sb}, {hx(WS_W2F)}"]
    v3 = [f"s_sub_u32 s{sv}, s{sv}, 1024"] + kvdma(5, sv, LV)
    v3 += [f"s_cmp_eq_u32 s{sA}, 0", f"s_cselect_b32 s{sT}, 0, {65536 - 20480}", f"s_add_u32 s{sT}, s{sT}, s{sT+8}", f"s_add_u32 m0, s{sT}, {LV + 20480}",
           f"buffer_load_dwordx4 v{VL16}, {sr(SWS,4)}, s{sv} offen lds"]
    hooks = {7: ["s_barrier"], 14: ["s_barrier"] + v3, 21: ["s_barrier"]}
    g += gemm(27, sa, sb, hooks)
    g += ["s_barrier"]
    g += ["s_barrier"] + slab_write() + ["s_waitcnt lgkmcnt(0)", "s_branch L2_red"]
    c += fix_hazards(fix_waits(g))
    r = ["L2_join:", "s_barrier", "L2_red:"] + item_addr()
    for p in range(3): r += [f"buffer_load_dwordx2 {vr(80+2*p,2)}, v{IC+p}, {sr(SB2,4)}, 0 offen"]
    r += ["s_barrier"] + reduce4(16)
    r += [f"s_mov_b32 s{sT}, {hx(WS_G)}"]
    for p in range(3):
        b = 16 + 16 * p
        r += unpack(b + 4, 80 + 2*p)
        r += [f"v_add_f32 v{b+i}, v{b+i}, v{b+4+i}" for i in range(4)]
        r += [f"v_mul_f32 v{b+4+i}, {fl(-LOG2E)}, v{b+i}" for i in range(4)]
        r += [f"v_exp_f32 v{b+4+i}, v{b+4+i}" for i in range(4)]
        r += [f"v_add_f32 v{b+4+i}, 1.0, v{b+4+i}" for i in range(4)]
        r += [f"v_rcp_f32 v{b+4+i}, v{b+4+i}" for i in range(4)]
        r += [f"v_mul_f32 v{b+i}, v{b+i}, v{b+4+i}" for i in range(4)]
        r += [f"v_cvt_pk_bf16_f32 v{b+8}, v{b}, v{b+1}", f"v_cvt_pk_bf16_f32 v{b+9}, v{b+2}, v{b+3}",
              f"buffer_store_dwordx2 {vr(b+8,2)}, v{IG+p}, {sr(SWS,4)}, s{sT} offen"]
    c += fix_hazards(fix_waits(r)) + ["L2_end:", "s_endpgm"]
    return kernel_head(name) + render(c)

def kernel3(name):
    c = common_prologue("L3_end")
    sa, sb = sT + 11, sT + 12
    c += item_addr() + [f"s_mov_b32 s{sT}, {hx(WS_G)}"]
    for p in range(3):
        c += [f"buffer_load_dwordx2 {vr(200+2*p,2)}, v{IG+p}, {sr(SX,4)}, 0 offen",
              f"buffer_load_dwordx2 {vr(206+2*p,2)}, v{IG+p}, {sr(SWS,4)}, s{sT} offen"]
    c += [f"s_cmp_lt_u32 s{sW}, 4", "s_cbranch_scc1 L3_red"]
    g = [f"s_mul_i32 s{sa}, s{sRTILE}, 40", f"s_mul_i32 s{sT}, s{sA}, 10", f"s_add_u32 s{sa}, s{sa}, s{sT}", f"s_lshl_b32 s{sa}, s{sa}, 10",
         f"s_add_u32 s{sa}, s{sa}, {hx(WS_O)}",
         f"s_mul_i32 s{sb}, s{sCG}, 40", f"s_add_u32 s{sb}, s{sb}, s{sT}", f"s_mul_i32 s{sb}, s{sb}, 5120", f"s_add_u32 s{sb}, s{sb}, {hx(WS_WOF)}"]
    g += gemm3(sa, sb) + slab_write() + ["s_waitcnt lgkmcnt(0)"]
    c = fix_hazards(c) + fix_hazards(fix_waits(g))
    r = ["L3_red:", "s_barrier"] + reduce4(16) + ["s_waitcnt vmcnt(0)"]
    for p in range(3):
        b = 16 + 16 * p
        r += unpack(b + 4, 200 + 2*p) + unpack(b + 8, 206 + 2*p)
        r += [f"v_fma_f32 v{b+i}, v{b+i}, v{b+8+i}, v{b+4+i}" for i in range(4)]
        r += [f"v_cvt_pk_bf16_f32 v{b+12}, v{b}, v{b+1}", f"v_cvt_pk_bf16_f32 v{b+13}, v{b+2}, v{b+3}",
              f"buffer_store_dwordx2 {vr(b+12,2)}, v{IG+p}, {sr(SOUT,4)}, 0 offen"]
    c += fix_hazards(fix_waits(r)) + ["L3_end:", "s_endpgm"]
    return kernel_head(name) + render(c)
def gemm3(sa, sb):
    return gemm(10, sa, sb, {})
```

```python
import sys
import p1, p2
from common import *
HEAD = open("recurrent_scan__mha_block__mixer_channel_mlp__prompt.s.ref").read().split("; Override")[0]
def build(extra=0):
    s = HEAD
    s += "; @launch kernel=k1_kernel grid=(256,1,1) block=(512,1,1) lds=163840\n"
    s += "; @launch kernel=k2_kernel grid=(256,1,1) block=(512,1,1) lds=163840\n"
    s += "; @launch kernel=k3_kernel grid=(256,1,1) block=(512,1,1) lds=83968\n"
    for i in range(extra):
        s += "; @launch kernel=k4_kernel grid=(256,1,1) block=(64,1,1) lds=0\n"
    s += '.amdgcn_target "amdgcn-amd-amdhsa--gfx950"\n'
    s += p1.kernel("k1_kernel") + p2.kernel2("k2_kernel") + p2.kernel3("k3_kernel")
    if extra: s += kernel_head("k4_kernel") + "    s_endpgm\n"
    s += kernel_desc("k1_kernel", 256) + kernel_desc("k2_kernel", 256) + kernel_desc("k3_kernel", 256)
    if extra: s += kernel_desc("k4_kernel", 8)
    return s
if __name__ == "__main__":
    out = sys.argv[1]; extra = int(sys.argv[2]) if len(sys.argv) > 2 else 0
    open(out, "w").write(build(extra))
```

```python
import re

RE_RANGE = re.compile(r'^([vsa])\[(\d+):(\d+)\]$')
RE_ONE = re.compile(r'^([vsa])(\d+)$')

def regs_of(op):
    op = op.strip()
    neg = op.lstrip('-')
    if neg.startswith('abs(') and neg.endswith(')'): neg = neg[4:-1]
    if neg.startswith('|') and neg.endswith('|'): neg = neg[1:-1]
    m = RE_RANGE.match(neg)
    if m: return {(m.group(1), i) for i in range(int(m.group(2)), int(m.group(3)) + 1)}
    m = RE_ONE.match(neg)
    if m: return {(m.group(1), int(m.group(2)))}
    if neg == 'vcc': return {('s', 'vcc')}
    if neg == 'exec': return {('s', 'exec')}
    if neg == 'm0': return {('s', 'm0')}
    return set()

TRANS = ('v_exp_', 'v_log_', 'v_rcp_', 'v_rsq_', 'v_sqrt_', 'v_sin_', 'v_cos_')

class Ins:
    def __init__(self, text, maybe=False, nowait=False):
        self.text = text.strip()
        self.maybe = maybe
        self.nowait = nowait
        self.opaque = False
        t = self.text.split(';')[0].strip()
        self.label = t.endswith(':') or t.startswith('.') or t == ''
        self.w = set(); self.r = set()
        self.kind = 'other'
        if self.label:
            self.kind = 'label'; self.mn = ''
            return
        parts = t.split(None, 1)
        self.mn = mn = parts[0]
        rest = parts[1] if len(parts) > 1 else ''
        ops = []; depth = 0; cur = ''
        for ch in rest:
            if ch in '[(': depth += 1
            if ch in '])': depth -= 1
            if ch == ',' and depth == 0: ops.append(cur.strip()); cur = ''
            else: cur += ch
        if cur.strip(): ops.append(cur.strip())
        mods = ''
        if ops:
            sp = ops[-1].split(None, 1)
            ops[-1] = sp[0]
            mods = sp[1] if len(sp) > 1 else ''
        self.ops = ops; self.mods = mods
        R = [regs_of(o) for o in ops]
        if mn.startswith('v_mfma') or mn.startswith('v_smfmac'):
            self.kind = 'mfma'
            self.passes = 8 if '32x32' in mn else 4
            self.w = set(R[0]); self.A = R[1]; self.B = R[2]
            if mn.startswith('v_smfmac'):
                self.C = set(R[0]); self.B = R[2] | R[3]
            else:
                self.C = R[3]
            self.r = self.A | self.B | self.C
        elif mn.startswith('v_'):
            self.kind = 'valu'
            self.trans = mn.startswith(TRANS)
            self.dot = mn.startswith('v_dot')
            if mn.startswith('v_cmp'):
                self.w = set(R[0]);
                for x in R[1:]: self.r |= x
                if mn.startswith('v_cmpx'): self.w.add(('s', 'exec'))
            elif mn.startswith('v_permlane') and 'swap' in mn:
                self.w = R[0] | R[1]; self.r = R[0] | R[1]
            elif '_co_' in mn:
                self.w = R[0] | R[1]
                for x in R[2:]: self.r |= x
            else:
                self.w = set(R[0])
                for x in R[1:]: self.r |= x
                if mn.startswith(('v_fmac', 'v_dot2c', 'v_mac', 'v_pk_fmac')) or 'UNUSED_PRESERVE' in mods:
                    self.r |= R[0]
        elif mn.startswith('ds_'):
            self.kind = 'ds'
            if mn.startswith(('ds_read', 'ds_bpermute', 'ds_permute', 'ds_swizzle')) or '_rtn_' in mn:
                self.w = set(R[0])
                for x in R[1:]: self.r |= x
            else:
                for x in R: self.r |= x
        elif mn.startswith(('buffer_', 'global_')):
            self.kind = 'vmem'
            self.lds = (' lds' in ' ' + mods) or '_lds_' in mn
            self.store = 'store' in mn or ('atomic' in mn)
            if mn in ('buffer_wbl2', 'buffer_inv'):
                pass
            elif self.lds:
                for x in R: self.r |= x
                self.r.add(('s', 'm0'))
            elif 'load' in mn:
                self.w = set(R[0])
                for x in R[1:]: self.r |= x
                if 'd16' in mn: self.r |= R[0]
            else:
                for x in R: self.r |= x
                if 'atomic' in mn and 'sc0' in mods: self.w = set(R[0])
                self.data = R[0] if mn.startswith('buffer_') else R[1]
        elif mn.startswith('s_load') or mn.startswith('s_buffer_load') or mn.startswith('s_memtime') or mn.startswith('s_memrealtime'):
            self.kind = 'smem'
            self.w = set(R[0])
            for x in R[1:]: self.r |= x
        elif mn == 's_waitcnt':
            self.kind = 'wait'
            f = rest
            m = re.search(r'vmcnt\((\d+)\)', f); self.vm = int(m.group(1)) if m else None
            m = re.search(r'lgkmcnt\((\d+)\)', f); self.lg = int(m.group(1)) if m else None
        elif mn == 's_nop':
            self.kind = 'nop'; self.n = int(ops[0], 0) + 1
        elif mn.startswith('s_'):
            self.kind = 'salu'
            if mn.startswith(('s_cmp', 's_cbranch', 's_branch', 's_barrier', 's_endpgm', 's_setprio', 's_sleep', 's_bitcmp')):
                for x in R: self.r |= x
            else:
                if R:
                    self.w = set(R[0])
                    for x in R[1:]: self.r |= x
                if 'saveexec' in mn: self.w.add(('s', 'exec'))
    def states(self):
        if self.kind == 'label' or self.maybe: return 0
        if self.kind == 'nop': return self.n
        return 1
    def __repr__(self): return self.text

def isv(S): return {x for x in S if x[0] in 'va'}
def iss(S): return {x for x in S if x[0] == 's'}

def need(p, c):
    n = 0
    if p.kind == 'valu':
        pv = isv(p.w); ps = iss(p.w)
        if c.kind == 'mfma':
            if pv & c.r: n = max(n, 3 if p.dot else 2)
            if ('s', 'exec') in ps: n = max(n, 4)
        if c.kind == 'valu':
            if p.trans and not c.trans and (pv & c.r): n = max(n, 1)
            if p.dot and (pv & (c.r | c.w)):
                if c.mn != p.mn: n = max(n, 3)
                else:
                    srcs = set()
                    for o in c.ops[1:3]: srcs |= regs_of(o)
                    if pv & srcs: n = max(n, 3)
            if c.mn.startswith(('v_readlane', 'v_readfirstlane')) and (pv & c.r): n = max(n, 1)
            if c.mn.startswith('v_permlane') and (pv & c.r): n = max(n, 2)
            if ('dpp' in c.mn or 'quad_perm' in c.mods or 'row_' in c.mods) and (pv & c.r): n = max(n, 2)
            if ps & c.r: n = max(n, 4 if c.mn.startswith(('v_readlane', 'v_writelane')) else 2)
            if ('sdwa' in p.mn or 'op_sel:' in p.mods) and (pv & (c.r | c.w)): n = max(n, 1)
            if ('s', 'exec') in ps and c.mn.startswith(('v_readlane', 'v_readfirstlane', 'v_writelane', 'v_permlane')): n = max(n, 4)
        if c.kind in ('vmem', 'ds') and p.dot and (pv & c.r): n = max(n, 3)
        if c.kind == 'vmem' and (ps & c.r): n = max(n, 5)
        if c.kind in ('salu',) and (ps & c.r): n = max(n, 1)
    if p.kind == 'mfma':
        big = p.passes == 8
        if c.kind == 'mfma':
            if p.w & (c.A | c.B): n = max(n, 12 if big else 8)
            if p.w & c.C:
                if not (p.w == c.C and p.passes == c.passes): n = max(n, 10 if big else 6)
            elif p.w & c.w and p.passes != c.passes: n = max(n, 10 if big else 6)
        elif c.kind == 'valu':
            if p.w & (c.r | c.w): n = max(n, 12 if big else 8)
            if p.C & c.w: n = max(n, 7 if big else 3)
        elif c.kind in ('vmem', 'ds'):
            if p.w & (c.r | c.w): n = max(n, 12 if big else 8)
    if p.kind == 'salu' and ('s', 'm0') in p.w and c.kind == 'vmem' and getattr(c, 'lds', False): n = max(n, 1)
    if p.kind == 'vmem' and getattr(p, 'store', False) and hasattr(p, 'data') and len(p.data) >= 3:
        if c.kind == 'valu' and (p.data & c.w): n = max(n, 2)
        elif c.kind != 'valu' and (p.data & c.w): n = max(n, 1)
    return n

def as_ins(x):
    return x if isinstance(x, Ins) else Ins(x)

def fix_hazards(code, pre=(), log=None):
    out = [as_ins(x) for x in pre]
    npre = len(out)
    for c in code:
        c = as_ins(c)
        if c.kind not in ('label', 'nop', 'wait') and not c.opaque:
            d = 0; worst = 0
            for p in reversed(out):
                if d >= 13: break
                k = need(p, c) - d
                if k > worst: worst = k; wp = p
                d += p.states()
            if worst > 0:
                if log is not None: log.append(f"pad {worst}: {wp} -> {c}")
                out.append(Ins(f"s_nop {worst-1}"))
        out.append(c)
    return out[npre:]

def fix_waits(code, pend_lg=(), pend_vm=(), ret=False):
    lg = [set(x) for x in pend_lg]; vm = [set(x) for x in pend_vm]
    out = []
    for c in code:
        c = as_ins(c)
        if c.opaque: out.append(c); continue
        if c.kind == 'wait':
            if c.vm is not None: vm = vm[len(vm) - c.vm:] if c.vm < len(vm) and c.vm > 0 else ([] if c.vm == 0 else vm)
            if c.lg is not None: lg = lg[len(lg) - c.lg:] if c.lg < len(lg) and c.lg > 0 else ([] if c.lg == 0 else lg)
            out.append(c); continue
        if c.kind == 'label': out.append(c); continue
        touched = c.r | c.w
        nl = None; nv = None
        tl = c.r if c.kind == 'ds' else touched
        tv = c.r if c.kind == 'vmem' else touched
        for i in range(len(lg) - 1, -1, -1):
            if lg[i] & tl: nl = len(lg) - 1 - i; break
        for i in range(len(vm) - 1, -1, -1):
            if vm[i] & tv: nv = len(vm) - 1 - i; break
        if nl is not None or nv is not None:
            t = "s_waitcnt"
            if nv is not None:
                nv = min(nv, 63); t += f" vmcnt({nv})"; vm = vm[len(vm) - nv:] if nv else []
            if nl is not None:
                nl = min(nl, 15); t += f" lgkmcnt({nl})"; lg = lg[len(lg) - nl:] if nl else []
            out.append(Ins(t))
        if c.kind == 'ds': lg.append(set(c.w))
        elif c.kind == 'vmem': vm.append(set(c.w))
        elif c.kind == 'smem': raise Exception("smem in fix_waits region: " + c.text)
        out.append(c)
    if ret: return out, lg, vm
    return out

def interleave(main, fill, start=0, end=None, is_anchor=lambda i: i.kind == 'mfma'):
    main = [as_ins(x) for x in main]
    anchors = [i for i, x in enumerate(main) if is_anchor(x) and not x.maybe]
    if end is None: end = len(anchors)
    sel = anchors[start:end]
    n = len(sel)
    buckets = {a: [] for a in sel}
    for j, f in enumerate(fill):
        a = sel[min(n - 1, j * n // len(fill))]
        buckets[a] += [as_ins(y) for y in (f if isinstance(f, (list, tuple)) else [f])]
    out = []
    for i, x in enumerate(main):
        out.append(x)
        if i in buckets: out += buckets[i]
    return out

def render(code):
    s = []
    for c in code:
        c = as_ins(c)
        s.append(c.text if c.kind == 'label' else "    " + c.text)
    return "\n".join(s) + "\n"

def vr(b, n=1): return f"v{b}" if n == 1 else f"v[{b}:{b+n-1}]"
def sr(b, n=1): return f"s{b}" if n == 1 else f"s[{b}:{b+n-1}]"
def vset(b, n): return {('v', i) for i in range(b, b + n)}

def opaque(code):
    out = []
    for x in fix_hazards(code):
        x = as_ins(x); x.opaque = True; x.maybe = True; out.append(x)
    return out
```

```python
from asmlib import *
import struct
def f2u(x): return struct.unpack('<I', struct.pack('<f', x))[0]
def hx(x): return f"0x{x & 0xffffffff:08x}"
def fl(x): return hx(f2u(x))

WS_Q = 0
WS_K = 0x280000
WS_V = 0x500000
WS_H = 0x800000
WS_W2F = 0x1000000
WS_WOF = 0x1280000
WS_O = 0x1400000
WS_G = 0x1700000
WS_SIZE = 0x2000000
HS_QK = 81920
HS_V = 86016
OOB = 0x40000000

LOG2E = 1.4426950408889634
QSCALE = 20 ** -0.5 * LOG2E
GC1 = -2 * 0.7978845608028654 * LOG2E
GC2 = GC1 * 0.044715

def srd(d, lo, size):
    return [f"s_mov_b32 s{d}, s{lo}", f"s_mov_b32 s{d+1}, s{lo+1}", f"s_mov_b32 s{d+2}, {hx(size)}", f"s_mov_b32 s{d+3}, 0x00020000"]

def kernel_desc(name, vgpr, sgpr=96):
    return f"""
.section .rodata,"a"
.p2align 6
.amdhsa_kernel {name}
  .amdhsa_next_free_vgpr {vgpr}
  .amdhsa_next_free_sgpr {sgpr}
  .amdhsa_accum_offset {(vgpr + 3) // 4 * 4}
  .amdhsa_group_segment_fixed_size 0
  .amdhsa_kernarg_size 88
  .amdhsa_user_sgpr_count 2
  .amdhsa_user_sgpr_kernarg_segment_ptr 1
  .amdhsa_system_sgpr_workgroup_id_x 1
.end_amdhsa_kernel
"""
def kernel_head(name):
    return f""".text
.globl {name}
.p2align 8
.type {name},@function
{name}:
"""

import os
STAMP = int(os.environ.get("STAMP", "0"))
class Stamp(Ins):
    pass
def stamp(j, clk=False):
    if not STAMP: return []
    i = Ins("s_nop 0"); i.text = f"{'s_memtime' if (clk != (STAMP == 2)) else 's_memrealtime'} s[{72+2*j}:{73+2*j}]"
    return [i]
def stamp_flush(sws, swave, n=12, base=0):
    if not STAMP: return []
    c = ["s_waitcnt lgkmcnt(0)", f"s_lshl_b32 s70, s2, 3", f"s_add_u32 s70, s70, s{swave}", "s_lshl_b32 s70, s70, 7", f"s_add_u32 s70, s70, {0x1f00000 + base}"]
    for j in range(n):
        c += [f"v_mov_b32 v0, s{72+2*j}", f"v_mov_b32 v1, s{73+2*j}", f"buffer_store_dwordx2 v[0:1], off, s[{sws}:{sws+3}], s70 offset:{8*j}", "s_nop 1"]
    return c

def opt(name, default=0):
    v = os.environ.get(name)
    if v is None: return default
    return type(default)(v)
```

```python
from common import *

sW, sA, sRB, sCB = 3, 4, 6, 7
SX, SWD, SWS, SB1, SDBG, SB2, SOUT = 8, 12, 16, 20, 24, 28, 32
sW1, sW2, sWO = 36, 38, 40
sWOFF, sST, sR, sNR, sCT, sHU, sQKROW, sVOFF, sHOFF, sXOFF, sBOFF, sTASK = range(42, 54)
sHEAD, sQB, sRTILE, sCG = 54, 55, 56, 57
sT = 58
XA, XB, MISC = 81920, 114688, 147456
HAND = XB
XBUF = [49152, XA, XB, XA, XB]
L_PART = MISC; L_RS = MISC + 2048; L_Q = MISC + 4096; L_JUNK = MISC + 4096 + 10240
LV = 81920; VCH = 21504
SLAB = 20992; SROW = 656
GSL = [0, SLAB, LV + VCH, LV + VCH + SLAB - 0]
WS_F2 = 0x1c00000
WS_FR = 0x1c40000
WS_F3 = 0x1c80000
WS_F1 = 0x1cc0000
WS_EP = 0x1cf0000
sN = 5
SC = " sc1"
SPIN = 100000

VL16, VH, VTOK = 13, 14, 15

class Tag(Ins):
    def __init__(self, name, kind):
        Ins.__init__(self, ""); self.name = name; self.tk = kind
def mark(name): return Tag(name, 'mark')
def waitfor(name, extra="", older=0):
    t = Tag(name, 'wait'); t.extra = extra; t.older = older; return t
def resolve(code):
    out = []; n = 0; at = {}
    for x in code:
        x = as_ins(x)
        if isinstance(x, Tag):
            if x.tk == 'mark': at[x.name] = n
            else:
                k = n - at[x.name] if x.name in at else n + x.older
                assert k <= 63, k
                out.append(Ins(f"s_waitcnt vmcnt({k}){x.extra}"))
            continue
        if x.kind == 'vmem' and not x.opaque: n += 1
        out.append(x)
    return out
def flat(c):
    o = []
    for y in c: o += flat(y) if isinstance(y, (list, tuple)) else [y]
    return o
def fin(c, pend_lg=(), pre=()):
    return fix_hazards(fix_waits(resolve(flat(c)), pend_lg=pend_lg), pre)

X = 96; ACC = [64, 80]; WF = 16; VT = [2, 3]; VT4 = [4, 5]; VXA = 6; VHW = 7; TA = 8
LA = 6
SEQ = [(0, k) for k in range(4)] + [(1, k) for k in range(4)]
for k in range(4, 36): SEQ += [(0, k), (1, k)]
SEQ += [(0, k) for k in range(36, 40)] + [(1, k) for k in range(36, 40)]

def a_read(n):
    g, k = SEQ[n % 80]; f = WF + 4 * (n % 8)
    s, l = divmod(k, 8)
    a = VT4[g] if s == 4 else VT[g]
    o = (0 if s == 4 else s * 16384) + l * 2048
    return [f"ds_read_b64_tr_b16 {vr(f,2)}, v{a} offset:{o}", f"ds_read_b64_tr_b16 {vr(f+2,2)}, v{a} offset:{o+512}"]
def a_mfma(n, orient):
    g, k = SEQ[n]; f = WF + 4 * (n % 8); x = X + 4 * k
    a, b = (vr(f,4), vr(x,4)) if orient == 'N' else (vr(x,4), vr(f,4))
    i = Ins(f"v_mfma_f32_32x32x16_bf16 {vr(ACC[g],16)}, {a}, {b}, {'0' if k == 0 else vr(ACC[g],16)}")
    if n % 2 == 0: i.r = i.r | vset(WF + 4 * ((n + 1) % 8), 4)
    return i
def a_hand(g, q): return f"ds_write_b128 v{VHW}, {vr(ACC[g]+4*q,4)} offset:{4096*g + 1024*q}"
A_PEND = []
for n in range(4): A_PEND += [vset(WF+4*n,2), vset(WF+4*n+2,2)]
A_PEND += [set(), set(), vset(WF+16,2), vset(WF+18,2), set(), set(), vset(WF+20,2), vset(WF+22,2)]
def a_tail_ops(n):
    return [a_hand(0, 0), a_hand(0, 1)] if n == 78 else [a_hand(0, 2), a_hand(0, 3)] if n == 79 else []
def a_pre():
    return flat([[a_mfma(n, 'N')] + a_tail_ops(n) + a_read(n + LA) for n in range(74, 80)])

def a_body(orient):
    c = []
    for n in range(80):
        if n in (16, 32, 48, 64): c += ["s_barrier"]
        c += [a_mfma(n, orient)]
        if n == 2: c += [a_hand(1, 0), a_hand(1, 1)]
        if n == 3: c += [a_hand(1, 2), a_hand(1, 3)]
        c += a_tail_ops(n) + a_read(n + LA)
        if n == 6: c += ["s_waitcnt lgkmcnt(8)", "s_barrier"]
    return fin(c, A_PEND, a_pre())

def a_round0(orient):
    c = []
    for s in range(5):
        c += ["s_barrier"]
        if s == 0: c += stamp(2)
        c += [f"v_add_u32 v{TA}, {XBUF[s]}, v{VXA}"]
        xr = []
        for i in range(8):
            xr.append(([f"v_xor_b32 v{TA+1}, {32*i}, v{TA}"] if i else []) + [f"ds_read_b128 {vr(X+32*s+4*i,4)}, v{TA+1 if i else TA}"])
        n0 = 16 * s
        c += xr[0] + a_read(n0) + a_read(n0 + 1) + xr[1:] + a_read(n0 + 2)
        for n in range(n0, n0 + 16):
            m = a_mfma(n, orient)
            c += [m]
            if n == n0: c += a_read(n + 3)
            if n == n0 + 1:
                if s < 3: c += ["s_waitcnt lgkmcnt(4)", "s_barrier"]
                c += a_read(n + 3) + a_read(n + 4) + a_read(n + 5)
            if s == 4 and n == 72: c += ["s_barrier"]
            c += a_tail_ops(n)
            if n > n0 and (n + LA < n0 + 16 or s == 4): c += a_read(n + LA)
    return fin(c)

def a_setup():
    t = TA
    return [f"v_bfe_u32 v{t}, v0, 2, 2", f"v_lshl_add_u32 v{t+1}, v{VH}, 3, v{t}", f"v_lshlrev_b32 v{t+1}, 7, v{t+1}",
            f"v_lshrrev_b32 v{t}, 1, v{t}", f"v_lshl_add_u32 v{t+1}, v{t}, 6, v{t+1}",
            f"v_bfe_u32 v{t}, v0, 4, 1", f"v_lshl_add_u32 v{t+1}, v{t}, 5, v{t+1}",
            f"v_and_b32 v{t}, 3, v0", f"v_lshl_add_u32 v{VT[0]}, v{t}, 3, v{t+1}", f"v_xor_b32 v{VT[1]}, 64, v{VT[0]}",
            f"v_add_u32 v{VT4[0]}, 0x10000, v{VT[0]}", f"v_add_u32 v{VT4[1]}, 0x10000, v{VT[1]}",
            f"v_and_b32 v{t}, 15, v0", f"v_xor_b32 v{t}, v{t}, v{VH}", f"v_lshlrev_b32 v{t}, 4, v{t}",
            f"v_lshl_add_u32 v{t}, v{VTOK}, 8, v{t}", f"s_lshl_b32 s{sT}, s{sA}, 13", f"v_add_u32 v{VXA}, s{sT}, v{t}",
            f"s_add_u32 s{sT}, s{sT}, {HAND}", f"v_add_u32 v{VHW}, s{sT}, v{VL16}"]

def a_relayout():
    t = TA; u = sT
    c = [f"v_and_b32 v{t}, 0x1ff, v{VT[0]}",
         f"s_mul_i32 s{u+2}, s{sTASK}, 6554", f"s_lshr_b32 s{u+2}, s{u+2}, 16",
         f"s_mul_i32 s{u}, s{u+2}, 10", f"s_sub_u32 s{u}, s{sTASK}, s{u}", f"s_lshl_b32 s{u+11}, s{u}, 1",
         f"s_cmp_lt_u32 s{u+2}, 3", f"s_cselect_b32 s{u+3}, 108, 40", f"s_cselect_b32 s{u+4}, 0, {hx(WS_WOF - WS_W2F)}",
         f"s_cselect_b32 s{u+5}, 16, 20", f"s_cselect_b32 s{u+6}, 64, 32", f"s_cselect_b32 s{u+7}, s{u+2}, 0",
         f"s_mul_i32 s{u+7}, s{u+7}, 40", f"s_sub_u32 s{u+8}, s{u+3}, s{u+7}",
         f"s_mul_i32 s{u+7}, s{u+7}, 5120", f"s_add_u32 s{u+4}, s{u+4}, s{u+7}", f"s_add_u32 s{u+4}, s{u+4}, {hx(WS_W2F)}",
         f"s_mul_i32 s{u+3}, s{u+3}, 5120"]
    for g, d in ((0, sR), (1, sCT)):
        c += [f"s_add_u32 s{u}, s{u+11}, {g}", f"s_mul_i32 s{u+1}, s{u}, 52429", f"s_lshr_b32 s{u+1}, s{u+1}, 18",
              f"s_mul_i32 s{u+2}, s{u+1}, 5", f"s_sub_u32 s{u}, s{u}, s{u+2}", f"s_lshl_b32 s{u}, s{u}, 10",
              f"s_mul_i32 s{u+1}, s{u+1}, s{u+3}", f"s_add_u32 s{d}, s{u}, s{u+1}", f"s_add_u32 s{d}, s{d}, s{u+4}"]
    c += [f"s_mul_i32 s{u+9}, s{sA}, 10", f"s_add_u32 s{u+10}, s{u+9}, 10", f"s_min_u32 s{u+10}, s{u+10}, s{u+8}",
          "LA_rloop:", f"s_cmp_ge_u32 s{u+9}, s{u+10}", "s_cbranch_scc1 LA_rdone",
          f"s_mul_i32 s{u}, s{u+9}, s{u+5}", f"s_sub_u32 s{u+1}, s{u+9}, 32", f"s_mul_i32 s{u+1}, s{u+1}, 80", f"s_add_u32 s{u+1}, s{u+1}, 16",
          f"s_cmp_lt_u32 s{u+9}, s{u+6}", f"s_cselect_b32 s{u}, s{u}, s{u+1}", f"s_cselect_b32 s{u+1}, 4, 40", f"s_cselect_b32 s{u+2}, 8, 20",
          f"s_lshl_b32 s{u}, s{u}, 7", f"s_lshl_b32 s{u+1}, s{u+1}, 7", f"s_lshl_b32 s{u+2}, s{u+2}, 7",
          f"v_mad_u32_u24 v{t+1}, v{VH}, s{u+1}, v{t}", f"v_add_u32 v{t+1}, s{u}, v{t+1}", f"v_add_u32 v{t+2}, s{u+2}, v{t+1}",
          f"v_xor_b32 v{t+3}, 64, v{t+1}", f"v_xor_b32 v{t+4}, 64, v{t+2}",
          f"ds_read_b64_tr_b16 v[96:97], v{t+1}", f"ds_read_b64_tr_b16 v[98:99], v{t+2}",
          f"ds_read_b64_tr_b16 v[100:101], v{t+3}", f"ds_read_b64_tr_b16 v[102:103], v{t+4}",
          f"s_mul_i32 s{u}, s{u+9}, 5120", f"s_add_u32 s{u+1}, s{u}, s{sCT}", f"s_add_u32 s{u}, s{u}, s{sR}", f"s_add_u32 s{u+9}, s{u+9}, 1",
          "s_waitcnt lgkmcnt(0)",
          f"buffer_store_dwordx4 v[96:99], v{VL16}, {sr(SWS,4)}, s{u} offen{SC}",
          f"buffer_store_dwordx4 v[100:103], v{VL16}, {sr(SWS,4)}, s{u+1} offen{SC}",
          "s_branch LA_rloop", "LA_rdone:", "s_waitcnt vmcnt(0)"]
    return fix_hazards(c)

E = [16, 32]; XT = 48; CF = 80; CSA = 96; CSD = [100, 104]; CSI = 108; EXTX = 110; RSA = 112; RS2 = 114
VW = 116; VX = 120; VC = [124, 125]; VC4 = [126, 127]; VST = 128; GC = 130; VPW = 134; VPR = 135
VBIAS = [136, 137]; VBOFF = 138; VRS = 139; VRSW = 140; BXA = 141; VHR = 142; DA = 144; ONE = 152
TB = 160

def wdma(slot):
    c = [f"s_lshl_b32 s{sT}, s{sA}, 12", f"s_add_u32 m0, s{sT}, {slot*16384}"]
    c += [f"buffer_load_dwordx4 v{VW+e}, {sr(SWD,4)}, s{sWOFF} offen offset:{1024*e} lds" for e in range(4)]
    c += [f"s_add_u32 s{sWOFF}, s{sWOFF}, s{sST}"]
    return c
def xdma(stage):
    c = [f"s_lshl_b32 s{sT}, s{sA}, 13", f"s_add_u32 m0, s{sT}, {XBUF[stage]}"]
    c += [f"buffer_load_dwordx4 v{VX+q}, {sr(SX,4)}, s{sXOFF} offen offset:{1024*q} lds" for q in range(4)]
    c += [f"s_add_u32 m0, m0, 4096", f"s_add_u32 s{sT}, s{sXOFF}, 20480"]
    c += [f"buffer_load_dwordx4 v{VX+q}, {sr(SX,4)}, s{sT} offen offset:{1024*q} lds" for q in range(4)]
    c += [f"s_add_u32 s{sXOFF}, s{sXOFF}, 256"]
    return c
def set_w(ptr, size, stride, col):
    t = TB
    c = [f"s_mov_b32 s{SWD}, s{ptr}", f"s_mov_b32 s{SWD+1}, s{ptr+1}", f"s_mov_b32 s{SWD+2}, {size}",
         f"s_mov_b32 s{sST}, {stride*128}", f"s_mul_i32 s{sWOFF}, s{sA}, {stride*32}", f"s_add_u32 s{sWOFF}, s{sWOFF}, s{col}",
         f"v_lshrrev_b32 v{t}, 7, v{VL16}", f"v_mul_u32_u24 v{VW}, {stride}, v{t}",
         f"v_lshrrev_b32 v{t}, 2, v{VL16}", f"v_xor_b32 v{t}, v{t}, v{VL16}",
         f"v_and_b32 v{t}, 0x40, v{t}", f"v_and_b32 v{t+1}, 0x30, v{VL16}", f"v_add3_u32 v{VW}, v{VW}, v{t}, v{t+1}"]
    c += [f"v_add_u32 v{VW+e}, {e*(8*stride-1024)}, v{VW}" for e in range(1, 4)]
    return c
def b_csread(s):
    c = []
    for g in range(2):
        a = VC4[g] if s == 4 else VC[g]; o = 0 if s == 4 else s * 16384
        for j in range(4):
            c += [f"ds_read_b64_tr_b16 {vr(CF+8*g+2*j,2)}, v{a} offset:{o + (j>>1)*2048 + (j&1)*512}"]
    return c
def b_csm(): return [f"v_smfmac_f32_16x16x64_bf16 {vr(CSD[g],4)}, {vr(CSA,4)}, {vr(CF+8*g,8)}, v{CSI}" for g in range(2)]
def b_bias(): return [f"buffer_load_short_d16_hi v{VBIAS[g]}, v{VBOFF}, {sr(SB1,4)}, s{sBOFF} offen offset:{64*g}" for g in range(2)]
def b_partw():
    c = []
    for g in range(2):
        t = TB + 38 + g
        c += [f"v_add_f32 v{t}, v{CSD[g]}, v{CSD[g]+1}", f"v_add_f32 v{t}, v{t}, v{VBIAS[g]}", f"ds_write_b32 v{VPW}, v{t} offset:{1024*g}",
              f"v_mov_b32 v{CSD[g]}, 0", f"v_mov_b32 v{CSD[g]+1}, 0"]
    return c
def b_take():
    c = [f"ds_read_b128 {vr(TB+4*g,4)}, v{VPR} offset:{1024*g}" for g in range(2)]
    c += [f"ds_read_b128 {vr(E[g]+4*q,4)}, v{VHR} offset:{4096*g+1024*q}" for g in range(2) for q in range(4)]
    return c
def b_ext(orient):
    c = []
    for g in range(2):
        t = TB + 4 * g
        c += [f"v_add_f32 v{t}, v{t}, v{t+1}", f"v_add_f32 v{t+2}, v{t+2}, v{t+3}", f"v_add_f32 v{t}, v{t}, v{t+2}",
              f"v_cvt_pk_bf16_f32 v{t+3}, v{t}, 0", f"v_lshlrev_b32 v{t+1}, 16, v{t+3}", f"v_sub_f32 v{t+1}, v{t}, v{t+1}",
              f"v_cvt_pk_bf16_f32 v{t+2}, v{t}, v{t+1}"]
    for g in range(2):
        t = TB + 4 * g
        a, b = (vr(t+2,2), vr(EXTX,2)) if orient == 'N' else (vr(EXTX,2), vr(t+2,2))
        c += [f"v_mfma_f32_32x32x8_bf16 {vr(E[g],16)}, {a}, {b}, {vr(E[g],16)}"]
    return c
def pk(op, d, *src): return f"v_pk_{op}_f32 {vr(d,2)}, " + ", ".join(s if isinstance(s, str) else vr(s,2) for s in src)

def epi_qk(g):
    c = []; e = E[g]
    for p in range(2):
        a = e + 8 * p; o = TB + 8 + 4 * p + 8 * g; t = TB + 24 + 2 * p + 4 * g
        c += [[f"s_lshl_b32 s{sT+1}, s{sCT}, 3", f"s_add_u32 s{sT+1}, s{sT+1}, {8*g + 4*p}", f"v_add_u32 v{t}, s{sT+1}, v{VST+1}"],
              f"v_mul_u32_u24 v{t+1}, 13108, v{t}", f"v_lshrrev_b32 v{t+1}, 16, v{t+1}",
              f"v_mul_u32_u24 v{t+1}, {HS_QK - 2560}, v{t+1}", f"v_lshl_add_u32 v{t}, v{t}, 9, v{t+1}", f"v_add_u32 v{t}, v{t}, v{VST}"]
        c += [f"v_mul_f32 v{a+i}, v{RSA}, v{a+i}" for i in range(8)]
        c += [f"v_cvt_pk_bf16_f32 v{o+i}, v{a+2*i}, v{a+2*i+1}" for i in range(4)]
        c += [f"v_permlane16_swap_b32 v{o}, v{o+2}", f"v_permlane16_swap_b32 v{o+1}, v{o+3}",
              f"buffer_store_dwordx4 {vr(o,4)}, v{t}, {sr(SWS,4)}, s{sQKROW} offen{SC}"]
    return c
def epi_v(g):
    e = E[g]; ad = TB + 24 + 4 * g; a2 = ad + 1; r = XT; p = TB + 8 + 8 * g
    c = [[f"s_lshl_b32 s{sT+1}, s{sCT}, 5", f"s_sub_u32 s{sT+1}, s{sT+1}, {1280 - 32*g}", f"v_add_u32 v{a2}, s{sT+1}, v{VTOK}"],
         f"v_mul_u32_u24 v{ad}, 3277, v{a2}", f"v_lshrrev_b32 v{ad}, 16, v{ad}",
         f"v_mul_u32_u24 v{ad+2}, 20, v{ad}", f"v_sub_u32 v{a2}, v{a2}, v{ad+2}",
         f"v_mul_u32_u24 v{ad}, {HS_V}, v{ad}", f"v_lshl_add_u32 v{ad}, v{a2}, 4, v{ad}",
         f"v_mul_u32_u24 v{ad+2}, 336, v{VH}", f"v_add_u32 v{ad}, v{ad}, v{ad+2}",
         f"v_lshlrev_b32 v{a2}, 25, v{a2}", f"v_add_u32 v{a2}, v{a2}, v{ad}",
         f"buffer_store_dwordx4 {vr(ONE,4)}, v{a2}, {sr(SWS,4)}, s{sVOFF} offen offset:320{SC}",
         f"buffer_store_dwordx4 {vr(ONE,4)}, v{a2}, {sr(SWS,4)}, s{sVOFF} offen offset:992{SC}"]
    c += [f"v_mul_f32 v{e+i}, v{r+i}, v{e+i}" for i in range(16)]
    c += [f"v_cvt_pk_bf16_f32 v{p+i}, v{e+2*i}, v{e+2*i+1}" for i in range(8)]
    c += [f"buffer_store_dwordx4 {vr(p+4*j,4)}, v{ad}, {sr(SWS,4)}, s{sVOFF} offen offset:{672*j}{SC}" for j in range(2)]
    return c
def epi_h(g):
    c = []
    for hf in range(2):
        a = E[g] + 8 * hf; t = XT + 8 * hf + 16 * g; p = TB + 8 + 4 * hf + 8 * g
        R = range(4)
        R8 = range(8)
        c += [f"v_mul_f32 v{a+i}, v{RS2}, v{a+i}" for i in R8]
        c += [f"v_mul_f32 v{t+i}, v{a+i}, v{a+i}" for i in R8]
        c += [f"v_fmaak_f32 v{t+i}, v{t+i}, v{GC}, {fl(GC1)}" for i in R8]
        c += [f"v_mul_f32 v{t+i}, v{t+i}, v{a+i}" for i in R8]
        c += [f"v_exp_f32 v{t+i}, v{t+i}" for i in R8]
        c += [f"v_add_f32 v{t+i}, 1.0, v{t+i}" for i in R8]
        c += [f"v_rcp_f32 v{t+i}, v{t+i}" for i in R8]
        c += [f"v_mul_f32 v{a+i}, v{a+i}, v{t+i}" for i in R8]
        c += [f"v_cvt_pk_bf16_f32 v{p+i}, v{a+2*i}, v{a+2*i+1}" for i in R]
        c += [[f"s_lshl_b32 s{sT+1}, s{sCT}, 11", f"s_add_u32 s{sT+1}, s{sT+1}, s{sHOFF}",
               f"buffer_store_dwordx4 {vr(p,4)}, v{VL16}, {sr(SWS,4)}, s{sT+1} offen offset:{2048*g + 1024*hf}{SC}"]]
    return c
EPI = {'QK': epi_qk, 'V': epi_v, 'H': epi_h}

def poll_load(t, voff, soff, n=1):
    return f"buffer_load_dword{'x4' if n == 4 else ''} {vr(t,n)}, v{voff}, {sr(SWS,4)}, {soff} offen{SC}"
def poll_check(lab, t, voff, soff, n=1):
    c = [f"s_mov_b32 s{sT+2}, {SPIN}", f"{lab}:"]
    c += [f"v_xor_b32 v{t+i}, s{sN}, v{t+i}" for i in range(n)]
    if n == 4: c += [f"v_or3_b32 v{t}, v{t}, v{t+1}, v{t+2}", f"v_or_b32 v{t}, v{t}, v{t+3}"]
    c += [f"v_cmp_ne_u32 vcc, 0, v{t}", "s_nop 0", "s_cmp_eq_u64 vcc, 0", f"s_cbranch_scc1 {lab}_x"]
    c += opaque([f"s_sleep {opt('SLEEP', 4)}", poll_load(t, voff, soff, n), f"s_sub_u32 s{sT+2}, s{sT+2}, 1", "s_waitcnt vmcnt(0)", f"s_cbranch_scc0 {lab}"])
    c += [f"{lab}_x:"]
    return c
def kvdma(n, so, lds_base):
    c = []
    for j in range(n):
        c += [f"s_add_u32 m0, s{sT+8}, {lds_base + 4096*j}",
              f"buffer_load_dwordx4 v{VL16}, {sr(SWS,4)}, s{so} offen{SC} lds", f"s_add_u32 s{so}, s{so}, 4096"]
    return c
sK, sV = sT + 9, sT + 10
PF, PA = 200, 204
def f1_load(): return [f"v_lshlrev_b32 v{PA}, 3, v{VL16}", f"s_mov_b32 s{sT+3}, {hx(WS_F1)}", poll_load(PF, PA, f"s{sT+3}", 4)]
def b_first_kv(lab):
    c = poll_check(lab, PF, PA, f"s{sT+3}", 4)
    c += [f"s_lshl_b32 s{sT+8}, s{sA}, 10",
          f"s_mul_i32 s{sK}, s{sHEAD}, {HS_QK}", f"s_add_u32 s{sK}, s{sK}, s{sT+8}",
          f"s_mul_i32 s{sT+1}, s{sQB}, 10240", f"s_add_u32 s{sT+1}, s{sT+1}, s{sK}", f"s_add_u32 s{sK}, s{sK}, {hx(WS_K)}",
          f"s_mul_i32 s{sV}, s{sHEAD}, {HS_V}", f"s_add_u32 s{sV}, s{sV}, {hx(WS_V)}", f"s_add_u32 s{sV}, s{sV}, s{sT+8}"]
    c += kvdma(3, sT + 1, L_Q) + kvdma(5, sK, 0) + kvdma(6, sV, LV) + [mark("kv0")]
    return c
def flag_store(soff, t=TB+36):
    return [f"v_lshlrev_b32 v{t}, 21, v{VL16}", f"v_mov_b32 v{t+1}, s{sN}",
            f"buffer_store_dword v{t+1}, v{t}, {sr(SWS,4)}, {soff} offen{SC}"]
def split(lst, weights):
    tot = sum(weights); out = []; acc = 0
    for w in weights:
        out.append(lst[len(lst)*acc//tot: len(lst)*(acc+w)//tot]); acc += w
    return out

def b_body(etype, lab):
    last = etype == 'H3'
    f = EPI['H' if last else etype]
    wts = {'QK': [1, 1, 0, 0, 0], 'V': [1, 1, 0, 0, 0], 'H': [1, 3, 3, 3, 3], 'H3': [2, 4, 1, 4, 3]}[etype]
    sl = split(f(0) + f(1), wts)
    c = []
    for s in range(5):
        if s == 4 and not last: c += [waitfor("s1" if etype != 'H' else "w1", " lgkmcnt(0)")]
        elif s == 4: c += ["s_waitcnt lgkmcnt(0)"]
        else: c += [waitfor(f"w{s-3}", " lgkmcnt(0)", older=4 * max(0, 2 - s))]
        c += ["s_barrier"]
        if s == 0: c += b_take()
        if s == 4 and not last:
            c += [f"s_lshl_b32 s{sT+1}, s{sA}, 2", f"s_add_u32 s{sT+1}, s{sT+1}, s{sR}", f"s_cmp_eq_u32 s{sT+1}, 2", f"s_cbranch_scc0 {lab}_nf"]
            c += opaque([f"s_and_b32 s{sT+1}, s2, 63", f"s_lshl_b32 s{sT+1}, s{sT+1}, 7", f"s_lshr_b32 s{sT+2}, s2, 6", f"s_lshl_b32 s{sT+2}, s{sT+2}, 2",
                         f"s_add_u32 s{sT+1}, s{sT+1}, s{sT+2}", f"s_add_u32 s{sT+1}, s{sT+1}, {hx(WS_F1)}"] + flag_store(f"s{sT+1}")) + [f"{lab}_nf:"]
        if s == 0 or not last: c += wdma((s - 1) % 5) + [mark(f"w{s}")]
        if s == 0: c += b_bias() + ([] if last else switch_w(lab))
        if s == 2 and last: c += f1_load()
        c += b_csread(s)
        if s == 0:
            if etype == 'V': c += [f"ds_read_b128 {vr(XT+4*q,4)}, v{VRS} offset:{32*q}" for q in range(4)]
            c += b_ext('V' if etype == 'V' else 'N') + b_csm() + sl[0]
        else:
            h = min(len(sl[s]), 10)
            c += sl[s][:h] + b_csm() + sl[s][h:]
        if s == 1: c += [mark("s1")]
        if s == 2 and last: c += b_first_kv(f"{lab}_p")
        if s == 4: c += b_partw()
    return c

def switch_w(lab):
    c = [f"s_cmp_eq_u32 s{sR}, 2", f"s_cbranch_scc1 {lab}_s2",
         f"s_cmp_eq_u32 s{sCB}, 15", f"s_cselect_b32 s{sT+1}, 2, 0", f"s_add_u32 s{sT+1}, s{sT+1}, s{sHU}", f"s_lshl_b32 s{sT+1}, s{sT+1}, 7"]
    c += set_w(sW1, 640*3456, 3456, sT+1)
    c += [f"s_branch {lab}_sd", f"{lab}_s2:", f"s_cmp_eq_u32 s{sNR}, 3", f"s_cbranch_scc1 {lab}_sr",
          f"s_sub_u32 s{sWOFF}, s{sWOFF}, {640*3456 - 128}", f"s_branch {lab}_sd", f"{lab}_sr:",
          f"s_mul_i32 s{sT+2}, s{sTASK}, 6554", f"s_lshr_b32 s{sT+2}, s{sT+2}, 16", f"s_mul_i32 s{sT+3}, s{sT+2}, 10", f"s_sub_u32 s{sT+3}, s{sTASK}, s{sT+3}",
          f"s_lshl_b32 s{sT+1}, s{sT+3}, 7", f"s_mul_i32 s{sT+3}, s{sT+2}, {640*1280}", f"s_cmp_lt_u32 s{sT+2}, 3",
          f"s_cselect_b32 s{sT+3}, s{sT+3}, 0", f"s_add_u32 s{sT+1}, s{sT+1}, s{sT+3}"]
    c += set_w(sW2, 1728*1280, 1280, sT+1)
    c += [f"s_cmp_lt_u32 s{sTASK}, 30", f"s_cbranch_scc1 {lab}_sd",
          f"s_mov_b32 s{SWD}, s{sWO}", f"s_mov_b32 s{SWD+1}, s{sWO+1}",
          f"s_cmp_lt_u32 s{sTASK}, 40", f"s_cselect_b32 s{SWD+2}, {640*1280}, 0", f"{lab}_sd:"]
    return opaque([x.replace(f"v{TB+1}", f"v{TB+37}").replace(f"v{TB}", f"v{TB+36}") for x in c])

def rbf(d, s): return [f"v_cvt_pk_bf16_f32 v{d}, v{s}, v{s}", f"v_and_b32 v{d}, 0xffff0000, v{d}"]
def b_dots():
    c = [f"v_smfmac_f32_16x16x64_bf16 {vr(DA,4)}, {vr(CSA,4)}, {vr(XT+8*i,8)}, v{CSI}" for i in range(4)]
    for i in range(0, 32, 2):
        t = TB + 4
        c += [f"v_lshlrev_b32 v{t}, 16, v{XT+i}", f"v_and_b32 v{t+1}, 0xffff0000, v{XT+i}",
              f"v_lshlrev_b32 v{t+2}, 16, v{XT+i+1}", f"v_and_b32 v{t+3}, 0xffff0000, v{XT+i+1}"]
        c += [f"v_fmac_f32 v{DA+4+j}, v{t+j}, v{t+j}" for j in range(4)]
    return c
def b_stats():
    m, v, d, u = DA, DA + 4, TB, TB + 1
    c = [f"v_add_f32 v{m}, v{m}, v{m+1}", f"v_add_f32 v{v}, v{v}, v{v+1}", f"v_add_f32 v{v+2}, v{v+2}, v{v+3}",
         f"v_add_f32 v{v}, v{v}, v{v+2}",
         f"v_permlane32_swap_b32 v{m}, v{v}", f"v_add_f32 v{m}, v{m}, v{v}", f"v_mul_f32 v{m}, {fl(1/640)}, v{m}", f"v_mov_b32 v{v}, v{m}",
         f"v_permlane32_swap_b32 v{m}, v{v}",
         f"v_fma_f32 v{v}, -v{m}, v{m}, v{v}", f"v_max_f32 v{v}, 0, v{v}"]
    c += rbf(d, v) + [f"v_add_f32 v{d}, {fl(1e-5)}, v{d}"] + rbf(d, d) + [f"v_sqrt_f32 v{d}, v{d}"] + rbf(d, d)
    c += [f"v_rcp_f32 v{u}, v{d}", f"ds_write_b32 v{VRSW}, v{u}",
          f"v_mul_f32 v{RSA}, v{RSA}, v{u}",
          f"v_mul_f32 v{v}, v{v}, v{u}", f"v_mul_f32 v{v}, v{v}, v{u}"]
    c += rbf(v, v) + [f"v_add_f32 v{v}, {fl(1e-5)}, v{v}"] + rbf(v, v) + [f"v_sqrt_f32 v{v}, v{v}"] + rbf(v, v)
    c += [f"v_mul_f32 v{d}, v{d}, v{v}", f"v_rcp_f32 v{RS2}, v{d}", f"v_sub_f32 v{m}, 0, v{m}",
          f"v_cmp_eq_u32 vcc, 0, v{VH}", f"v_cndmask_b32 v{m}, v{d}, v{m}, vcc",
          f"v_cvt_pk_bf16_f32 v{EXTX}, v{m}, v{m}", f"v_and_b32 v{d}, 0xffff0000, v{EXTX}",
          f"v_sub_f32 v{m}, v{m}, v{d}", f"v_cvt_pk_bf16_f32 v{EXTX+1}, v{m}, 0"]
    return c

def b_start():
    t = TB
    c = xdma(0)
    c += [f"s_mov_b32 s{sBOFF}, 0", f"s_cmp_eq_u32 s{sCB}, 15", "s_cbranch_scc1 LB_w1first", f"s_lshl_b32 s{sT+1}, s{sCB}, 8"]
    c += set_w(sT + 10, 640*3840, 3840, sT+1)
    c += [f"s_lshl_b32 s{sCT}, s{sCB}, 2", "s_branch LB_wset", "LB_w1first:", f"s_lshl_b32 s{sBOFF}, s{sHU}, 7"]
    c += set_w(sW1, 640*3456, 3456, sBOFF)
    c += [f"s_mov_b32 s{SB1+2}, 3456", f"s_lshl_b32 s{sCT}, s{sHU}, 1", "LB_wset:"]
    c += wdma(0) + [mark("d0")] + xdma(1) + wdma(1) + [mark("d1")]
    c += [x.replace(f"v{TA+1}", f"v{t+1}").replace(f"v{TA}", f"v{t}") for x in a_setup()[:8]]
    c += [f"v_lshl_add_u32 v{t+1}, v{t}, 3, v{t+1}", f"s_lshl_b32 s{sT}, s{sA}, 12", f"v_add_u32 v{VC[0]}, s{sT}, v{t+1}", f"v_xor_b32 v{VC[1]}, 64, v{VC[0]}",
          f"v_add_u32 v{VC4[0]}, 0x10000, v{VC[0]}", f"v_add_u32 v{VC4[1]}, 0x10000, v{VC[1]}",
          f"v_and_b32 v{t}, 15, v0", f"v_lshlrev_b32 v{VST}, 4, v{t}", f"v_xor_b32 v{t}, v{t}, v{VH}", f"v_lshlrev_b32 v{t}, 4, v{t}",
          f"v_lshl_add_u32 v{t}, v{VTOK}, 8, v{t}", f"s_lshl_b32 s{sT}, s{sA}, 13", f"v_add_u32 v{BXA}, s{sT}, v{t}",
          f"s_add_u32 s{sT}, s{sT}, {HAND}", f"v_add_u32 v{VHR}, s{sT}, v{VL16}",
          f"v_bfe_u32 v{t}, v0, 4, 1", f"v_lshl_add_u32 v{VST+1}, v{t}, 1, v{VH}",
          f"s_lshl_b32 s{sT}, s{sA}, 7", f"s_add_u32 s{sT}, s{sT}, {L_RS}", f"v_lshl_add_u32 v{VRSW}, v{VTOK}, 2, s{sT}", f"v_lshl_add_u32 v{VRS}, v{VH}, 4, s{sT}",
          f"v_add_u32 v{VPR}, {L_PART}, v{VL16}", f"s_lshl_b32 s{sT}, s{sA}, 2", f"v_add_u32 v{VPW}, s{sT}, v{VPR}",
          f"v_lshlrev_b32 v{VBOFF}, 1, v{VTOK}", f"s_lshl_b32 s{sT}, s{sA}, 20", f"v_add_u32 v{VBOFF}, s{sT}, v{VBOFF}",
          f"v_xor_b32 v{t}, 1, v{VH}", f"v_lshl_add_u32 v{VBOFF}, v{t}, 24, v{VBOFF}",
          f"s_cmp_lt_u32 s{sCB}, 5", f"s_cselect_b32 s{sT}, {fl(QSCALE)}, 1.0", f"v_mov_b32 v{RSA}, s{sT}",
          f"v_mov_b32 v{GC}, {fl(GC2)}"]
    c += [f"v_mov_b32 v{ONE+i}, 0x3f803f80" for i in range(4)]
    c += [f"v_and_b32 v{t}, 14, v0",
          f"v_cmp_eq_u32 vcc, 0, v{t}", f"v_cndmask_b32 v{CSA}, 0, v{ONE}, vcc", f"v_mov_b32 v{CSA+1}, v{CSA}",
          f"v_cmp_eq_u32 vcc, 4, v{t}", f"v_cndmask_b32 v{CSA+2}, 0, v{ONE}, vcc", f"v_mov_b32 v{CSA+3}, v{CSA+2}",
          f"v_and_b32 v{t}, 1, v0", f"v_mul_u32_u24 v{t}, 0xaaaa, v{t}", f"v_add_u32 v{CSI}, 0x4444, v{t}"]
    c += [f"v_mov_b32 v{r}, 0" for r in list(range(CSD[0], CSD[0]+8)) + list(range(DA, DA+8))]
    c += [f"s_lshl_b32 s{sT}, s{sRB}, 2", f"s_add_u32 s{sT}, s{sT}, s{sA}",
          f"s_lshr_b32 s{sT+1}, s{sT}, 1", f"s_mul_i32 s{sQKROW}, s{sT+1}, 2560", f"s_and_b32 s{sT+1}, s{sT}, 1",
          f"s_lshl_b32 s{sT+1}, s{sT+1}, 8", f"s_add_u32 s{sQKROW}, s{sQKROW}, s{sT+1}",
          f"s_mul_i32 s{sVOFF}, s{sT}, 1344", f"s_add_u32 s{sVOFF}, s{sVOFF}, {hx(WS_V)}",
          f"s_mul_i32 s{sHOFF}, s{sT}, {108*1024}", f"s_add_u32 s{sHOFF}, s{sHOFF}, {hx(WS_H)}"]
    c += xdma(2) + wdma(2) + [mark("d2")] + b_bias() + stamp(1) + ["s_waitcnt lgkmcnt(0)", f"s_add_u32 s{sN}, s{sN}, 1"]
    for s in range(5):
        c += [waitfor(f"d{s}", " lgkmcnt(0)"), "s_barrier"]
        if s == 0: c += stamp(2)
        c += [f"v_add_u32 v{t}, {XBUF[s]}, v{BXA}"]
        for i in range(8):
            c += ([f"v_xor_b32 v{t+1}, {32*i}, v{t}"] if i else []) + [f"ds_read_b128 {vr(XT+4*i,4)}, v{t+1 if i else t}"]
        if s < 3: c += ["s_waitcnt lgkmcnt(0)", "s_barrier"]
        if s == 0: c += wdma(3) + wdma(4) + [f"s_mul_i32 s{sT}, s{sST}, 5", f"s_sub_u32 s{sWOFF}, s{sWOFF}, s{sT}", f"s_add_u32 s{sWOFF}, s{sWOFF}, 128"]
        if s == 1: c += xdma(3) + [mark("d3")]
        if s == 2: c += xdma(4) + [mark("d4")] + wdma(0) + [mark("w10")]
        if s == 3: c += wdma(1) + wdma(2)
        if s == 4: c += wdma(3)
        d = b_dots()
        c += b_csread(s) + d[:28] + b_csm()
        if s == 4: c += [waitfor("w10"), "s_barrier"]
        c += d[28:]
        if s == 4: c += b_stats() + b_partw()
    return fin(c)

def prologue():
    t = TB
    c = ["s_cmp_ge_u32 s2, 256", "s_cbranch_scc1 L_end",
         f"s_load_dwordx2 {sr(SX,2)}, s[0:1], 0", f"s_load_dwordx2 {sr(sT+10,2)}, s[0:1], 8", f"s_load_dwordx2 {sr(sW1,2)}, s[0:1], 32",
         f"s_load_dwordx2 {sr(SWS,2)}, s[0:1], 80", f"s_load_dwordx2 {sr(SB1,2)}, s[0:1], 40", f"s_load_dwordx2 {sr(sWO,2)}, s[0:1], 16",
         f"s_load_dwordx2 {sr(sW2,2)}, s[0:1], 48", f"s_load_dwordx2 {sr(SB2,2)}, s[0:1], 56", f"s_load_dwordx2 {sr(SOUT,2)}, s[0:1], 64",
         f"v_lshrrev_b32 v1, 6, v0", f"v_and_b32 v0, 63, v0", f"v_readfirstlane_b32 s{sW}, v1",
         f"v_lshlrev_b32 v{VL16}, 4, v0", f"v_lshrrev_b32 v{VH}, 5, v0", f"v_and_b32 v{VTOK}, 31, v0",
         f"s_and_b32 s{sA}, s{sW}, 3", f"s_lshr_b32 s{sT+3}, s2, 3", f"s_and_b32 s{sT}, s2, 7",
         f"s_and_b32 s{sRB}, s2, 3", f"s_lshl_b32 s{sRB}, s{sRB}, 2", f"s_and_b32 s{sCG}, s{sT+3}, 3", f"s_add_u32 s{sRB}, s{sRB}, s{sCG}",
         f"s_lshr_b32 s{sT+1}, s{sT+3}, 2", f"s_lshl_b32 s{sCB}, s{sT+1}, 1", f"s_lshr_b32 s{sT+2}, s{sT}, 2", f"s_add_u32 s{sCB}, s{sCB}, s{sT+2}",
         f"s_lshl_b32 s{sRTILE}, s{sT}, 3", f"s_add_u32 s{sRTILE}, s{sRTILE}, s{sT+1}",
         f"s_lshl_b32 s{sHEAD}, s{sT}, 2", f"s_lshr_b32 s{sT+2}, s{sT+3}, 3", f"s_add_u32 s{sHEAD}, s{sHEAD}, s{sT+2}", f"s_and_b32 s{sQB}, s{sT+3}, 7",
         f"s_mul_i32 s{sTASK}, s{sT}, 5", f"s_sub_u32 s{sT+1}, s{sT+3}, 16", f"s_add_u32 s{sTASK}, s{sTASK}, s{sT+1}",
         f"s_cmp_lt_u32 s{sT+1}, 5", f"s_cselect_b32 s{sTASK}, s{sTASK}, 99",
         f"s_lshl_b32 s{sHU}, s{sCB}, 1", f"s_add_u32 s{sT}, s{sCB}, 8", f"s_cmp_lt_u32 s{sCB}, 8", f"s_cselect_b32 s{sHU}, s{sHU}, s{sT}",
         f"s_cselect_b32 s{sNR}, 4, 3", f"s_cmp_eq_u32 s{sCB}, 15", f"s_cselect_b32 s{sNR}, 4, s{sNR}",
         f"s_lshl_b32 s{sT}, s{sRB}, 2", f"s_add_u32 s{sT}, s{sT}, s{sA}", f"s_mul_i32 s{sXOFF}, s{sT}, {32*1280}",
         f"v_lshrrev_b32 v{t}, 4, v0", f"v_xor_b32 v{t+1}, v{t}, v0", f"v_and_b32 v{t+1}, 15, v{t+1}", f"v_lshlrev_b32 v{t+1}, 4, v{t+1}",
         f"v_mul_u32_u24 v{t}, 1280, v{t}"]
    for q in range(4):
        c += [f"v_xor_b32 v{t+2}, {64*q}, v{t+1}", f"v_add3_u32 v{VX+q}, v{t}, v{t+2}, 0" if q == 0 else f"v_add_u32 v{t+2}, {4096*q}, v{t+2}"]
        if q: c += [f"v_add_u32 v{VX+q}, v{t}, v{t+2}"]
    for d, size in ((SX, 2621440), (SWD, 0), (SWS, WS_SIZE), (SB1, 0), (SB2, 1280), (SOUT, 2621440)):
        c += [f"s_mov_b32 s{d+2}, {hx(size)}", f"s_mov_b32 s{d+3}, 0x00020000"]
    c += ["s_waitcnt lgkmcnt(0)", f"s_add_u32 s{SDBG}, s{SWS}, {hx(WS_EP)}", f"s_addc_u32 s{SDBG+1}, s{SWS+1}, 0", f"s_load_dword s{sN}, {sr(SDBG,2)}, 0"]
    return fix_hazards(c)

S = {(0,0): 16, (1,0): 32, (0,1): 48, (1,1): 64}
O = [80, 96]; Q = [112, 118]; K = [124, 130]; V = [136, 144]; IDX = 152
AK0, AK1, AK2, AV, AVN, VVG = 153, 154, 155, 156, 157, 158
T = 2
PAT = opt("PAT", "CfeeeDfweeeAeeeBeeeeeee")
WOF = 96; RED = 16; OF = [64 + 4*i for i in range(8)] + [216, 220]; GR = 224; XV = 236; BV = 242; IA = 248; IG = 251; VL2 = 254

def qk(dst, kf, q):
    return (f"v_mfma_f32_32x32x16_bf16 {vr(dst,16)}, {vr(kf,4)}, {vr(Q[q],4)}, 0",
            f"v_mfma_f32_32x32x8_bf16 {vr(dst,16)}, {vr(kf+4,2)}, {vr(Q[q]+4,2)}, {vr(dst,16)}")
def pv(q, vf, s):
    return (f"v_smfmac_f32_32x32x32_bf16 {vr(O[q],16)}, {vr(vf,4)}, {vr(s,8)}, v{IDX}",
            f"v_smfmac_f32_32x32x32_bf16 {vr(O[q],16)}, {vr(vf+4,4)}, {vr(s+8,8)}, v{IDX}")
def kread(kt):
    f = K[kt & 1]
    return [f"ds_read2st64_b64 {vr(f,4)}, v{AK1 if kt & 1 else AK0} offset0:{5*(kt>>1)} offset1:{5*(kt>>1)+1}",
            f"ds_read_b32 v{f+4}, v{AK2} offset:{(kt>>1)*2560 + (kt&1)*256}"]
def vread(kt):
    f = V[kt & 1]; a = AV
    if kt == 16: a = AVN; kt = 0
    return [f"ds_read_b128 {vr(f,4)}, v{a} offset:{kt*1344}", f"ds_read_b128 {vr(f+4,4)}, v{a} offset:{kt*1344+672}"]
def loop_body(pat=PAT):
    c = []
    for i in range(32):
        kt, q = divmod(i, 2); ktp, qp = divmod(i - 1, 2)
        sc = S[(q, kt & 1)]
        A, B = qk(S[(q, (kt + 1) & 1)], K[(kt + 1) & 1], q)
        C, D = pv(qp, V[ktp & 1], S[(qp, ktp & 1)])
        fill = kread(kt + 2) if q == 0 else vread(kt + 1)
        e = f = 0
        for ch in pat:
            if ch == 'A': c.append(A)
            elif ch == 'B': c.append(B)
            elif ch == 'C': c.append(C)
            elif ch == 'D': c.append(D)
            elif ch == 'e': c.append(f"v_exp_f32 v{sc+e}, v{sc+e}"); e += 1
            elif ch == 'f':
                if i == 28 and f == 0: c += ["s_waitcnt lgkmcnt(2)", "s_barrier"]
                c.append(fill[f]); f += 1
            elif ch == 'w' and q == 0: c.append(f"s_waitcnt lgkmcnt({f})")
    return c
def shift_split(q, m):
    t = T + 6
    return [f"v_sub_f32 v{m}, 0, v{m}",
            f"v_cvt_pk_bf16_f32 v{t}, v{m}, v{m}", f"v_and_b32 v{t}, 0xffff0000, v{t}", f"v_sub_f32 v{t}, v{m}, v{t}",
            f"v_cvt_pk_bf16_f32 v{t+1}, v{m}, v{t}", f"v_and_b32 v{t+2}, 0xffff0000, v{t+1}", f"v_sub_f32 v{t}, v{t}, v{t+2}",
            f"v_cvt_pk_bf16_f32 v{t}, v{t}, 0",
            f"v_cmp_eq_u32 vcc, 0, v{VH}", f"v_cndmask_b32 v{Q[q]+5}, v{t}, v{t+1}, vcc"]
def max16(d, s, acc=False):
    c = [f"v_max3_f32 v{d}, v{s}, v{s+1}, v{d if acc else s}"]
    for j in range(2, 16, 2): c.append(f"v_max3_f32 v{d}, v{s+j}, v{s+j+1}, v{d}")
    return c
def xhalf_max(d):
    return [f"v_mov_b32 v{d+1}, v{d}", f"v_permlane32_swap_b32 v{d}, v{d+1}", f"v_max_f32 v{d}, v{d}, v{d+1}"]

def attn():
    c = [f"v_lshrrev_b32 v{T}, 4, v{VTOK}", f"v_lshlrev_b32 v{T}, 3, v{T}", f"v_and_b32 v{T+1}, 15, v{VTOK}",
         f"v_lshl_add_u32 v{T+2}, v{T+1}, 4, v{T}",
         f"v_lshrrev_b32 v{T+3}, 1, v{T+2}", f"v_xor_b32 v{T+3}, v{T+3}, v{T+2}", f"v_and_b32 v{T+3}, 64, v{T+3}",
         f"v_mul_u32_u24 v{T+3}, 3, v{T+3}", f"v_xor_b32 v{AK0}, v{T+3}, v{T+2}",
         f"v_lshl_add_u32 v{AK2}, v{VH}, 2, v{AK0}", f"v_add_u32 v{AK2}, 2048, v{AK2}",
         f"v_lshl_add_u32 v{AK0}, v{VH}, 10, v{AK0}", f"v_add_u32 v{AK1}, 256, v{AK0}",
         f"s_mul_i32 s{sT}, s{sA}, 2560", f"s_add_u32 s{sT}, s{sT}, {L_Q}", f"v_add_u32 v{T+2}, s{sT}, v{T+2}",
         f"v_lshl_add_u32 v{T+3}, v{VH}, 2, v{T+2}", f"v_lshl_add_u32 v{T+2}, v{VH}, 10, v{T+2}",
         f"v_min_u32 v{AV}, 20, v{VTOK}", f"v_lshlrev_b32 v{AV}, 4, v{AV}", f"v_mul_u32_u24 v{T}, 336, v{VH}", f"v_add_u32 v{VVG}, v{AV}, v{T}",
         f"v_mov_b32 v{T}, 0xfee00000", f"v_lshrrev_b32 v{T}, v{VTOK}, v{T}", f"v_and_b32 v{T}, 1, v{T}", f"v_mul_u32_u24 v{T}, 0x18000, v{T}", f"v_add_u32 v{AV}, v{T}, v{VVG}",
         f"v_add_u32 v{AVN}, {LV + VCH}, v{AV}", f"v_add_u32 v{AV}, {LV}, v{AV}",
         f"v_mov_b32 v{IDX}, 0xdddddddd", f"v_mov_b32 v{K[0]+5}, 0x3f803f80", f"v_mov_b32 v{K[1]+5}, 0x3f803f80",
         f"v_mov_b32 v{Q[0]+5}, 0", f"v_mov_b32 v{Q[1]+5}, 0"]
    c += [f"v_mov_b32 v{r}, 0" for r in list(range(O[0], O[0]+32)) + list(range(S[(1,1)], S[(1,1)]+16)) + list(range(V[1], V[1]+8))]
    c += ["s_barrier"] + stamp(5)
    c += kread(0)
    for q in range(2):
        c += [f"ds_read_b64 {vr(Q[q],2)}, v{T+2} offset:{256*q}", f"ds_read_b64 {vr(Q[q]+2,2)}, v{T+2} offset:{256*q+512}",
              f"ds_read_b32 v{Q[q]+4}, v{T+3} offset:{256*q+2048}"]
    c += kread(1) + vread(0)
    for q in range(2): c += list(qk(S[(q,0)], K[0], q))
    for q in range(2): c += max16(T + 2*q, S[(q,0)]) + xhalf_max(T + 2*q) + shift_split(q, T + 2*q)
    for q in range(2): c += list(qk(S[(q,0)], K[0], q))
    c += [f"s_mov_b32 s{sT+2}, 0", "s_waitcnt lgkmcnt(0)", "s_nop 5"]
    c = fin(c)
    body = loop_body()
    upd = [f"v_add_u32 v{AK0}, 20480, v{AK0}", f"v_add_u32 v{AK1}, 20480, v{AK1}", f"v_add_u32 v{AK2}, 20480, v{AK2}",
           f"v_mov_b32 v{AV}, v{AVN}",
           f"s_add_u32 s{sT+2}, s{sT+2}, 1", f"s_cmp_eq_u32 s{sT+2}, 2", f"s_cselect_b32 s{sT+3}, {hx(-3*VCH)}, 0",
           f"s_add_u32 s{sT+3}, s{sT+3}, {VCH}", f"v_add_u32 v{AVN}, s{sT+3}, v{AVN}",
           f"s_cmp_lt_u32 s{sT+2}, 4", "s_cbranch_scc1 LA_loop"]
    two = [as_ins(x) for x in body + upd + body]
    assert len(fix_hazards(fix_waits(two), c[-14:])) == len(two), "attention loop needs extra waits/pads"
    c += [".p2align 6", "LA_loop:"] + body + upd + stamp(6)
    C, D = pv(1, V[1], S[(1,1)])
    e = ["s_waitcnt lgkmcnt(0)", C, D,
         f"s_lshl_b32 s{sT}, s{sQB}, 3", f"s_lshl_b32 s{sT+1}, s{sA}, 1", f"s_add_u32 s{sT}, s{sT}, s{sT+1}",
         f"s_mul_i32 s{sT+8}, s{sT}, 40960", f"s_add_u32 s{sT+8}, s{sT+8}, {hx(WS_O)}",
         f"s_lshl_b32 s{sT+9}, s{sHEAD}, 10", f"s_add_u32 s{sT+9}, s{sT+9}, s{sT+8}",
         f"s_lshr_b32 s{sT}, s{sHEAD}, 1", f"s_lshl_b32 s{sT}, s{sT}, 9", f"s_and_b32 s{sT+1}, s{sHEAD}, 1", f"s_lshl_b32 s{sT+1}, s{sT+1}, 3",
         f"s_add_u32 s{sT+8}, s{sT+8}, s{sT}", f"s_add_u32 s{sT+8}, s{sT+8}, s{sT+1}", f"s_add_u32 s{sT+8}, s{sT+8}, 32768",
         "LA_fin:", f"v_cmp_eq_u32 vcc, 0, v{VH}"]
    for q in range(2): e += [f"v_cndmask_b32 v{T+q}, v{O[q]+8}, v{O[q]+12}, vcc"]
    e += [f"v_add_f32 v{T+2}, v{T}, v{T+1}", f"v_min_f32 v{T+3}, v{T}, v{T+1}", f"v_mov_b32 v{T+4}, 0"]
    for j in range(12): e += [f"v_add_f32 v{T+2}, abs(v{O[0]+j}), v{T+2}", f"v_add_f32 v{T+4}, abs(v{O[1]+j}), v{T+4}"]
    e += [f"v_add_f32 v{T+2}, v{T+2}, v{T+4}",
          f"v_cmp_gt_f32 vcc, 0x7f000000, v{T+2}", f"s_mov_b64 s[{sT+4}:{sT+5}], vcc", f"v_cmp_lt_f32 vcc, 0x35800000, v{T+3}",
          f"s_and_b64 vcc, vcc, s[{sT+4}:{sT+5}]", f"s_cmp_eq_u64 vcc, exec", f"s_cselect_b32 s{sT+3}, 5, s{sT+2}", f"s_cmp_eq_u32 s{sT+3}, 4",
          "s_cbranch_scc1 LA_slow",
          f"v_lshl_add_u32 v{T+2}, v{VH}, 30, v{VL16}"]
    for q in range(2):
        p = 16 + 8 * q
        e += [f"v_rcp_f32 v{T+4}, v{T+q}", f"v_mov_b32 v{T+5}, v{T+4}"]
        e += [pk('mul', O[q]+2*j, O[q]+2*j, T+4) for j in range(6)]
        e += [f"v_cvt_pk_bf16_f32 v{p+j}, v{O[q]+2*j}, v{O[q]+2*j+1}" for j in range(6)]
        e += [f"buffer_store_dwordx4 {vr(p,4)}, v{VL16}, {sr(SWS,4)}, s{sT+9} offen{SC}",
              f"buffer_store_dwordx2 {vr(p+4,2)}, v{T+2}, {sr(SWS,4)}, s{sT+8} offen{SC}"]
        if q == 0: e += [f"s_add_u32 s{sT+8}, s{sT+8}, 40960", f"s_add_u32 s{sT+9}, s{sT+9}, 40960"]
    e += [mark("o")] + wo_loads(0, 2)
    e += f3_addr() + [waitfor("o")] + flag_store(f"s{sT}", t=10) + stamp(7) + item_loads() + ["s_setprio 0", "s_branch L_join"]
    c += fix_hazards(resolve(e), body[-12:] + upd)
    return c + slow_path()

def f3_addr():
    return [f"s_lshl_b32 s{sT}, s{sQB}, 2", f"s_add_u32 s{sT}, s{sT}, s{sA}", f"s_lshl_b32 s{sT}, s{sT}, 5", f"s_add_u32 s{sT}, s{sT}, s{sHEAD}",
            f"s_lshl_b32 s{sT}, s{sT}, 7", f"s_add_u32 s{sT}, s{sT}, {hx(WS_F3)}"]
def f2_addr():
    return [f"s_lshl_b32 s{sT}, s{sRB}, 2", f"s_add_u32 s{sT}, s{sT}, s{sA}", f"s_lshl_b32 s{sT}, s{sT}, 4", f"s_add_u32 s{sT}, s{sT}, s{sCB}",
            f"s_lshl_b32 s{sT}, s{sT}, 7", f"s_add_u32 s{sT}, s{sT}, {hx(WS_F2)}"]
def fr_addr():
    return [f"s_lshl_b32 s{sT}, s{sTASK}, 7", f"s_add_u32 s{sT}, s{sT}, {hx(WS_FR)}"]

def slow_path():
    kb, vb, i = sT + 4, sT + 5, sT + 6
    kf = K[0]; vf = V[0]
    def kload():
        return [f"s_lshr_b32 s{sT}, s{i}, 1", f"s_mul_i32 s{sT}, s{sT}, 2560", f"s_and_b32 s{sT+1}, s{i}, 1", f"s_lshl_b32 s{sT+1}, s{sT+1}, 8",
                f"s_add_u32 s{sT}, s{sT}, s{sT+1}", f"s_add_u32 s{sT}, s{sT}, s{kb}",
                f"buffer_load_dwordx2 {vr(kf,2)}, v{AK0}, {sr(SWS,4)}, s{sT} offen{SC}",
                f"buffer_load_dwordx2 {vr(kf+2,2)}, v{AK0}, {sr(SWS,4)}, s{sT} offen offset:512{SC}",
                f"buffer_load_dword v{kf+4}, v{AK2}, {sr(SWS,4)}, s{sT} offen{SC}"]
    c = ["LA_slow:",
         f"s_mul_i32 s{kb}, s{sHEAD}, {HS_QK}", f"s_add_u32 s{kb}, s{kb}, {hx(WS_K)}",
         f"s_mul_i32 s{vb}, s{sHEAD}, {HS_V}", f"s_add_u32 s{vb}, s{vb}, {hx(WS_V)}",
         f"v_subrev_u32 v{AK0}, 81920, v{AK0}", f"v_subrev_u32 v{AK2}, 81920, v{AK2}",
         f"v_mov_b32 v{Q[0]+5}, 0", f"v_mov_b32 v{Q[1]+5}, 0",
         f"v_mov_b32 v{T}, 0xff800000", f"v_mov_b32 v{T+2}, 0xff800000", f"s_mov_b32 s{i}, 0"]
    l1 = ["LA_s1:"] + kload()
    for q in range(2): l1 += list(qk(S[(q,0)], kf, q))
    for q in range(2): l1 += max16(T + 2*q, S[(q,0)], acc=True)
    l1 += [f"s_add_u32 s{i}, s{i}, 1", f"s_cmp_lt_u32 s{i}, 64", "s_cbranch_scc1 LA_s1"]
    mid = []
    for q in range(2): mid += xhalf_max(T + 2*q) + shift_split(q, T + 2*q)
    mid += [f"v_mov_b32 v{r}, 0" for r in range(O[0], O[0]+32)] + [f"s_mov_b32 s{i}, 0"]
    l2 = ["LA_s2:"] + kload()
    l2 += [f"s_mul_i32 s{sT}, s{i}, 1344", f"s_add_u32 s{sT}, s{sT}, s{vb}",
           f"buffer_load_dwordx4 {vr(vf,4)}, v{VVG}, {sr(SWS,4)}, s{sT} offen{SC}",
           f"buffer_load_dwordx4 {vr(vf+4,4)}, v{VVG}, {sr(SWS,4)}, s{sT} offen offset:672{SC}"]
    for q in range(2): l2 += list(qk(S[(q,0)], kf, q))
    for q in range(2):
        l2 += [f"v_exp_f32 v{S[(q,0)]+j}, v{S[(q,0)]+j}" for j in range(16)]
        l2 += list(pv(q, vf, S[(q,0)]))
    l2 += [f"s_add_u32 s{i}, s{i}, 1", f"s_cmp_lt_u32 s{i}, 64", "s_cbranch_scc1 LA_s2",
           f"s_mov_b32 s{sT+2}, 5", "s_nop 15", "s_branch LA_fin"]
    return fin(c + l1 + mid + l2)

GA = 16; FB = 96; NBUF = opt("NBUF", 5)
def gload(buf, sa, sb):
    f = FB + 24 * buf
    c = [f"buffer_load_dwordx4 {vr(f,4)}, v{VL16}, {sr(SWS,4)}, s{sa} offen{SC}"]
    for j in range(4): c += [f"buffer_load_dwordx4 {vr(f+4+4*j,4)}, v{VL16}, {sr(SWS,4)}, s{sb} offen offset:{1024*j}{SC}"]
    c += [f"buffer_load_dwordx4 {vr(f+20,4)}, v{VL2}, {sr(SWS,4)}, s{sb} offen{SC}",
          f"s_add_u32 s{sa}, s{sa}, 1024", f"s_add_u32 s{sb}, s{sb}, 5120"]
    return c
def gemm(nk, sa, sb, hooks):
    c = []
    for k in range(NBUF - 1): c += gload(k, sa, sb)
    for k in range(nk):
        c += hooks.get(k, [])
        f = FB + 24 * (k % NBUF)
        mm = [f"v_mfma_f32_32x32x16_bf16 {vr(GA+16*j,16)}, {vr(f+4+4*j,4)}, {vr(f,4)}, {'0' if k == 0 else vr(GA+16*j,16)}" for j in range(5)]
        ld = gload((k + NBUF - 1) % NBUF, sa, sb) if k + NBUF - 1 < nk else []
        for j in range(5):
            c += [mm[j]]
            if ld: c += [ld[j]] if j < 4 else ld[4:]
    return c
def slab_addr(a):
    return [f"v_mul_u32_u24 v{a}, {SROW}, v{VTOK}", f"v_lshl_add_u32 v{a}, v{VH}, 4, v{a}",
            f"s_mul_i32 s{sT}, s{sA}, {SLAB}", f"v_add_u32 v{a}, s{sT}, v{a}"]
def slab_tile(a, acc, j): return [f"ds_write_b128 v{a}, {vr(acc+4*q,4)} offset:{128*j+32*q}" for q in range(4)]
def wo_loads(c0, n):
    c = [f"s_mul_i32 s{sT}, s{sCG}, 40", f"s_mul_i32 s{sT+1}, s{sA}, 10", f"s_add_u32 s{sT}, s{sT}, s{sT+1}", f"s_mul_i32 s{sT}, s{sT}, 5120",
         f"s_add_u32 s{sT}, s{sT}, {hx(WS_WOF + 1024*c0)}"]
    for k in range(10):
        c += [f"buffer_load_dwordx4 {vr(WOF+40*j+4*k,4)}, v{VL16}, {sr(SWS,4)}, s{sT} offen offset:{1024*j}{SC}" for j in range(n)]
        if k < 9: c += [f"s_add_u32 s{sT}, s{sT}, 5120"]
    return c
def item_loads():
    t = 5
    c = [f"v_lshrrev_b32 v{t}, 4, v{VL16}", f"s_lshl_b32 s{sT}, s{sW}, 2",
         f"s_mul_i32 s{sT+1}, s{sRTILE}, {32*1280}", f"s_mul_i32 s{sT+2}, s{sCG}, 320", f"s_add_u32 s{sT+1}, s{sT+1}, s{sT+2}"]
    for p in range(3):
        c += [f"v_add_u32 v{t+1}, {64*p}, v{t}"]
        if p == 2: c += [f"v_min_u32 v{t+1}, 159, v{t+1}"]
        c += [f"v_mul_u32_u24 v{t+2}, 1639, v{t+1}", f"v_lshrrev_b32 v{t+2}, 16, v{t+2}",
              f"v_mul_u32_u24 v{t+3}, 40, v{t+2}", f"v_sub_u32 v{t+1}, v{t+1}, v{t+3}", f"v_add_u32 v{t+2}, s{sT}, v{t+2}",
              f"v_mul_u32_u24 v{IA+p}, {SROW}, v{t+2}", f"v_lshl_add_u32 v{IA+p}, v{t+1}, 4, v{IA+p}",
              f"v_lshlrev_b32 v{t+1}, 3, v{t+1}",
              f"v_mul_u32_u24 v{IG+p}, 1280, v{t+2}", f"v_add3_u32 v{IG+p}, v{IG+p}, v{t+1}, s{sT+1}"]
        if p == 2: c += [f"v_lshl_add_u32 v{IG+p}, v{VH}, 30, v{IG+p}"]
        c += [f"buffer_load_dwordx2 {vr(BV+2*p,2)}, v{t+1}, {sr(SB2,4)}, s{sT+2} offen",
              f"buffer_load_dwordx2 {vr(XV+2*p,2)}, v{IG+p}, {sr(SX,4)}, 0 offen"]
    return c
def reduce4():
    c = []
    for p in range(3):
        c += [f"ds_read_b128 {vr(RED+16*p+4*s,4)}, v{IA+p} offset:{SLAB*s}" for s in range(4)]
    for p in range(3):
        b = RED + 16 * p
        c += [pk('add', b+2*i, b+2*i, b+4+2*i) for i in range(2)] + [pk('add', b+8+2*i, b+8+2*i, b+12+2*i) for i in range(2)]
        c += [pk('add', b+2*i, b+2*i, b+8+2*i) for i in range(2)]
    return c
def unpack(d, s):
    return [f"v_lshlrev_b32 v{d}, 16, v{s}", f"v_and_b32 v{d+1}, 0xffff0000, v{s}",
            f"v_lshlrev_b32 v{d+2}, 16, v{s+1}", f"v_and_b32 v{d+3}, 0xffff0000, v{s+1}"]
def rest_kv():
    return kvdma(5, sK, 20480) + kvdma(5, sV, LV + 24576) + kvdma(10, sK, 40960) + kvdma(5, sV, LV + 45056)

def b_phase2():
    sa, sb = sT + 11, sT + 7
    t = 2
    g = [f"v_add_u32 v{VL2}, 4096, v{VL16}",
         f"v_min_u32 v{t}, 880, v{VL16}", f"v_lshlrev_b32 v{t}, 3, v{t}", f"s_lshl_b32 s{sT}, s{sRTILE}, 11", f"v_add_u32 v{t+1}, s{sT}, v{t}",
         f"v_add_u32 v{t}, {hx(WS_FR - WS_F2 - 2048)}, v{t}", f"v_cmp_gt_u32 vcc, 256, v{VL16}", f"v_cndmask_b32 v{t}, v{t}, v{t+1}, vcc",
         f"s_mov_b32 s{sT+3}, {hx(WS_F2)}",
         f"s_lshl_b32 s{sT}, s2, 2", f"s_add_u32 s{sT}, s{sT}, s{sA}", f"s_cmp_eq_u32 s{sT}, 0", "s_cbranch_scc0 LB_nep"]
    g += opaque([f"s_mov_b32 s{sT}, {hx(WS_EP)}"] + flag_store(f"s{sT}", t=10)) + ["LB_nep:", "s_waitcnt vmcnt(0)", "s_barrier",
         poll_load(t+2, t, f"s{sT+3}")] + poll_check("LB_p2", t+2, t, f"s{sT+3}") + stamp(6)
    g += [f"s_mul_i32 s{sa}, s{sRTILE}, 108", f"s_mul_i32 s{sT}, s{sA}, 27", f"s_add_u32 s{sa}, s{sa}, s{sT}", f"s_lshl_b32 s{sa}, s{sa}, 10",
          f"s_add_u32 s{sa}, s{sa}, {hx(WS_H)}",
          f"s_mul_i32 s{sb}, s{sCG}, 108", f"s_add_u32 s{sb}, s{sb}, s{sT}", f"s_mul_i32 s{sb}, s{sb}, 5120", f"s_add_u32 s{sb}, s{sb}, {hx(WS_W2F)}"]
    v3 = [f"s_sub_u32 s{sV}, s{sV}, 1024"] + kvdma(5, sV, LV)
    v3 += [f"s_cmp_eq_u32 s{sA}, 0", f"s_cselect_b32 s{sT}, 0, {MISC - LV - 20480}", f"s_add_u32 s{sT}, s{sT}, s{sT+8}", f"s_add_u32 m0, s{sT}, {LV + 20480}",
           f"buffer_load_dwordx4 v{VL16}, {sr(SWS,4)}, s{sV} offen{SC} lds", mark("v3")]
    h2, h3 = [int(x) for x in opt("GH", "9,19").split(",")]
    g += gemm(27, sa, sb, {h2: ["s_barrier"] + v3, h3: [waitfor("v3"), "s_barrier"]})
    g += wo_loads(2, 3) + item_loads() + slab_addr(t) + stamp(7) + ["s_barrier"]
    for j in range(5): g += slab_tile(t, GA + 16*j, j)
    g += ["s_waitcnt lgkmcnt(0)"]
    return fin(g)

def p3_gemm(c0, n):
    c = []
    for j in range(n):
        for k in range(10):
            c += [f"v_mfma_f32_32x32x16_bf16 {vr(RED+16*j,16)}, {vr(WOF+40*j+4*k,4)}, {vr(OF[k],4)}, {'0' if k == 0 else vr(RED+16*j,16)}"]
            if j and k == 9 - 0 and False: pass
            if j and 6 <= k: c += [slab_tile(2, RED + 16*(j-1), c0 + j - 1)[k - 6]]
    c += slab_tile(2, RED + 16*(n-1), c0 + n - 1) + ["s_waitcnt lgkmcnt(0)"]
    return c

def phase3():
    r = ["L_join:", "s_barrier"] + reduce4() + ["s_waitcnt vmcnt(1)"]
    for p in range(3):
        b = RED + 16 * p; g = GR + 4 * p
        r += unpack(b + 4, BV + 2*p)
        r += [f"v_add_f32 v{b+i}, v{b+i}, v{b+4+i}" for i in range(4)]
        r += [f"v_mul_f32 v{b+4+i}, {fl(-LOG2E)}, v{b+i}" for i in range(4)]
        r += [f"v_exp_f32 v{b+4+i}, v{b+4+i}" for i in range(4)]
        r += [f"v_add_f32 v{b+4+i}, 1.0, v{b+4+i}" for i in range(4)]
        r += [f"v_rcp_f32 v{b+4+i}, v{b+4+i}" for i in range(4)]
        r += [f"v_mul_f32 v{g+i}, v{b+i}, v{b+4+i}" for i in range(4)]
    r += slab_addr(2)
    r += [f"s_mul_i32 s{sT+4}, s{sRTILE}, 40", f"s_mul_i32 s{sT+1}, s{sA}, 10", f"s_add_u32 s{sT+4}, s{sT+4}, s{sT+1}", f"s_lshl_b32 s{sT+4}, s{sT+4}, 10",
          f"s_add_u32 s{sT+4}, s{sT+4}, {hx(WS_O)}", f"s_add_u32 s{sT+5}, s{sT+4}, 4096", f"s_add_u32 s{sT+6}, s{sT+4}, 8192",
          f"s_cmp_eq_u32 s{sW}, 4", "s_cbranch_scc0 L_nopoll"]
    r += opaque(flat([f"v_lshlrev_b32 v3, 7, v{VTOK}", f"s_lshr_b32 s{sT+3}, s{sRTILE}, 1", f"s_lshl_b32 s{sT+3}, s{sT+3}, 12", f"s_add_u32 s{sT+3}, s{sT+3}, {hx(WS_F3)}",
          poll_load(4, 3, f"s{sT+3}"), "s_waitcnt vmcnt(0)"] + poll_check("L_p3", 4, 3, f"s{sT+3}")))
    r += ["L_nopoll:", "s_barrier"] + stamp(8)
    ld = [f"buffer_load_dwordx4 {vr(OF[k],4)}, v{VL16}, {sr(SWS,4)}, s{sT+4+k//4} offen offset:{1024*(k%4)}{SC}" for k in range(10)]
    r = fin(r)
    r += [f"s_cmp_lt_u32 s{sW}, 4", "s_cbranch_scc1 L_p3a"]
    r += fin(ld + p3_gemm(2, 3)) + ["s_branch L_p3j", "L_p3a:"] + fin(ld + p3_gemm(0, 2)) + ["L_p3j:"]
    z = ["s_barrier"] + reduce4()
    for p in range(3):
        b = RED + 16 * p
        z += unpack(b + 4, XV + 2*p)
        z += [pk('fma', b+2*i, b+2*i, GR+4*p+2*i, b+4+2*i) for i in range(2)]
        z += [f"v_cvt_pk_bf16_f32 v{b+12}, v{b}, v{b+1}", f"v_cvt_pk_bf16_f32 v{b+13}, v{b+2}, v{b+3}",
              f"buffer_store_dwordx2 {vr(b+12,2)}, v{IG+p}, {sr(SOUT,4)}, 0 offen"]
    return r + fin(z)

def kernel(name):
    c = stamp(0) + stamp(10, True) + prologue()
    c += [f"s_cmp_ge_u32 s{sW}, 4", "s_cbranch_scc1 LB"]
    a = ["s_setprio 2"] + a_setup() + stamp(1) + ["s_waitcnt lgkmcnt(0)", f"s_add_u32 s{sN}, s{sN}, 1", f"s_mov_b32 s{sR}, 1",
         f"s_sub_u32 s{sT}, s{sCB}, 10", f"s_cmp_lt_u32 s{sT}, 5", "s_cbranch_scc0 LA_n"]
    c += fix_hazards(a)
    c += a_round0('V') + stamp(3) + a_body('V') + [f"s_mov_b32 s{sR}, 2", "s_branch LA_bn"]
    c += ["LA_n:"] + a_round0('N') + stamp(3) + ["LA_bn:"] + a_body('N')
    c += [f"s_add_u32 s{sR}, s{sR}, 1", f"s_cmp_lt_u32 s{sR}, s{sNR}", "s_cbranch_scc1 LA_bn"] + stamp(4)
    c += fix_hazards([a_hand(1, q) for q in range(4)] + ["s_waitcnt lgkmcnt(0)", "s_barrier"], a_pre())
    c += [f"s_cmp_eq_u32 s{sNR}, 4", "s_cbranch_scc1 LA_att", "s_barrier", f"s_cmp_ge_u32 s{sTASK}, 40", "s_cbranch_scc1 LA_rdone"]
    c += a_relayout() + ["s_barrier", "LA_att:"] + attn()
    c += ["LB:", "s_setprio 3"] + b_start() + stamp(3)
    c += [f"s_mov_b32 s{sR}, 1", f"s_add_u32 s{sBOFF}, s{sBOFF}, 128", "LB_disp:",
          f"s_cmp_eq_u32 s{sCB}, 15", "s_cbranch_scc1 LB_h", f"s_cmp_lt_u32 s{sCB}, 10", "s_cbranch_scc1 LB_qk"]
    c += fin(b_body('V', "LBv")) + ["s_branch LB_nx", "LB_h:"] + fin(b_body('H', "LBh")) + ["s_branch LB_nx", "LB_qk:"] + fin(b_body('QK', "LBq"))
    c += ["LB_nx:", f"s_cmp_eq_u32 s{sR}, 2", "s_cbranch_scc1 LB_r3",
          f"s_mov_b32 s{sR}, 2", f"s_cmp_eq_u32 s{sCB}, 15", f"s_cselect_b32 s{sT+1}, 2, 0", f"s_add_u32 s{sT+1}, s{sT+1}, s{sHU}",
          f"s_lshl_b32 s{sBOFF}, s{sT+1}, 7", f"s_mov_b32 s{SB1+2}, 3456", f"s_add_u32 s{sCT}, s{sCT}, 2", "s_branch LB_disp",
          "LB_r3:", f"s_lshr_b32 s{sCT}, s{sBOFF}, 6", f"s_cmp_eq_u32 s{sNR}, 3", "s_cbranch_scc1 LB_t3",
          f"s_add_u32 s{sBOFF}, s{sBOFF}, 128"]
    c += fin(b_body('H3', "LBl") + stamp(4) + ["s_waitcnt lgkmcnt(0)", "s_barrier"] + b_take() + [f"s_add_u32 s{sCT}, s{sCT}, 2",
             waitfor("kv0", " lgkmcnt(0)"), "s_barrier"] + stamp(5) + rest_kv() + ["s_branch LB_epi"])
    c += ["LB_t3:"] + fin(stamp(4) + ["s_waitcnt lgkmcnt(0)", "s_barrier"] + b_take() + wdma(4) + ["s_waitcnt vmcnt(0) lgkmcnt(0)", "s_barrier"])
    c += ["LB_epi:"] + fin(b_ext('N') + epi_h(0) + epi_h(1) + f2_addr() + ["s_waitcnt vmcnt(0)"] + flag_store(f"s{sT}"))
    c += [f"s_cmp_eq_u32 s{sNR}, 4", "s_cbranch_scc1 LB_g"]
    c += fin(["s_barrier", f"s_lshl_b32 s{sT}, s{sA}, 6", f"s_add_u32 s{sT}, s{sT}, s{sTASK}", f"s_cmp_lt_u32 s{sT}, 40", "s_cbranch_scc0 LB_nfr"]
             + opaque(fr_addr() + flag_store(f"s{sT}")) + ["LB_nfr:"] + f1_load() + b_first_kv("LB_p1") + ["s_waitcnt vmcnt(0)", "s_barrier"] + stamp(5) + rest_kv())
    c += ["LB_g:", "s_setprio 0"] + b_phase2()
    c += phase3()
    c += ["s_waitcnt vmcnt(0)"] * bool(STAMP) + stamp(9) + stamp(11, True) + stamp_flush(SWS, sW) + ["L_end:", "s_endpgm"]
    return kernel_head(name) + render(c)

if __name__ == "__main__":
    import sys
    name = "recurrent_scan__mha_block__mixer_channel_mlp__prompt_kernel"
    HEAD = open("recurrent_scan__mha_block__mixer_channel_mlp__prompt.s.ref").read().split("; Override")[0]
    s = HEAD + "; @launch grid=(256,1,1) block=(512,1,1) lds=163840\n" + '.amdgcn_target "amdgcn-amd-amdhsa--gfx950"\n'
    s += kernel(name) + kernel_desc(name, 256)
    open(sys.argv[1], "w").write(s)
```

```python
from asmlib import *
import struct
def f2u(x): return struct.unpack('<I', struct.pack('<f', x))[0]
def hx(x): return f"0x{x & 0xffffffff:08x}"
def fl(x): return hx(f2u(x))

WS_Q = 0
WS_K = 0x280000
WS_V = 0x500000
WS_H = 0x800000
WS_W2F = 0x1000000
WS_WOF = 0x1280000
WS_O = 0x1400000
WS_G = 0x1700000
WS_SIZE = 0x2000000
HS_QK = 81920
HS_V = 86016
OOB = 0x40000000

LOG2E = 1.4426950408889634
QSCALE = 20 ** -0.5 * LOG2E
GC1 = -2 * 0.7978845608028654 * LOG2E
GC2 = GC1 * 0.044715

def srd(d, lo, size):
    return [f"s_mov_b32 s{d}, s{lo}", f"s_mov_b32 s{d+1}, s{lo+1}", f"s_mov_b32 s{d+2}, {hx(size)}", f"s_mov_b32 s{d+3}, 0x00020000"]

def kernel_desc(name, vgpr, sgpr=96):
    return f"""
.section .rodata,"a"
.p2align 6
.amdhsa_kernel {name}
  .amdhsa_next_free_vgpr {vgpr}
  .amdhsa_next_free_sgpr {sgpr}
  .amdhsa_accum_offset {(vgpr + 3) // 4 * 4}
  .amdhsa_group_segment_fixed_size 0
  .amdhsa_kernarg_size 88
  .amdhsa_user_sgpr_count 2
  .amdhsa_user_sgpr_kernarg_segment_ptr 1
  .amdhsa_system_sgpr_workgroup_id_x 1
.end_amdhsa_kernel
"""
def kernel_head(name):
    return f""".text
.globl {name}
.p2align 8
.type {name},@function
{name}:
"""

import os
STAMP = int(os.environ.get("STAMP", "0"))
class Stamp(Ins):
    pass
TRACE = os.environ.get("TRACE", "")
def tr(kind, j):
    if TRACE != kind: return []
    i = Ins("s_nop 0"); i.text = f"s_memtime s[{72+2*j}:{73+2*j}]"
    return [i]
def stamp(j, clk=False):
    if not STAMP or TRACE: return []
    i = Ins("s_nop 0"); i.text = f"{'s_memtime' if (clk != (STAMP == 2)) else 's_memrealtime'} s[{72+2*j}:{73+2*j}]"
    return [i]
def stamp_flush(sws, swave, n=12, base=0):
    if not STAMP: return []
    d = os.environ.get("DIAG")
    if d is not None:
        j = int(d)
        return ["s_waitcnt lgkmcnt(0)", f"s_sub_u32 s70, s{72+2*j}, s72", "s_lshl_b32 s70, s70, 2", "s_add_u32 s70, s70, 10000",
                "L_diag:", "s_sleep 1", "s_memrealtime s[94:95]", "s_waitcnt lgkmcnt(0)", "s_sub_u32 s71, s94, s72", "s_cmp_lt_u32 s71, s70", "s_cbranch_scc1 L_diag"]
    c = ["s_waitcnt lgkmcnt(0)", f"s_lshl_b32 s70, s2, 3", f"s_add_u32 s70, s70, s{swave}", "s_lshl_b32 s70, s70, 7", f"s_add_u32 s70, s70, {0x1f00000 + base}"]
    for j in range(n):
        c += [f"v_mov_b32 v0, s{72+2*j}", f"v_mov_b32 v1, s{73+2*j}", f"buffer_store_dwordx2 v[0:1], off, s[{sws}:{sws+3}], s70 offset:{8*j}", "s_nop 1"]
    return c

def opt(name, default=0):
    v = os.environ.get(name)
    if v is None: return default
    return type(default)(v)
```

```python
from common import *

sW, sA, sRB, sCB = 3, 4, 6, 7
SX, SWD, SWS, SB1, SDBG, SB2, SOUT = 8, 12, 16, 20, 24, 28, 32
sW1, sW2, sWO = 36, 38, 40
sWOFF, sST, sR, sNR, sCT, sHU, sQKROW, sVOFF, sHOFF, sXOFF, sBOFF, sTASK = range(42, 54)
sHEAD, sQB, sRTILE, sCG = 54, 55, 56, 57
sROT, sALT, sXEND = 26, 27, 25
sTAB = 96
sT = 58
XA, XB, MISC = 81920, 114688, 147456
HAND = XB
XBUF = [49152, XB, 0, 49152, XB]
WSL0 = [5, 6, 2, 5, 6]
L_PART = MISC; L_RS = MISC + 2048; L_ST = MISC + 4096; L_Q = MISC + 4096; L_JUNK = MISC + 4096 + 10240
LV = 81920; VCH = 21504
SLAB = 20992; SROW = 656
GSL = [0, SLAB, LV + VCH, LV + VCH + SLAB - 0]
WS_F2 = 0x1c00000
WS_FR = 0x1c40000
WS_F3 = 0x1c80000
WS_F1 = 0x1cc0000
WS_EP = 0x1cf0000
sN = 5
SC = " sc1"
SPIN = 100000

VL16, VH, VTOK = 13, 14, 15

class Tag(Ins):
    def __init__(self, name, kind):
        Ins.__init__(self, ""); self.name = name; self.tk = kind
def mark(name): return Tag(name, 'mark')
def waitfor(name, extra="", older=0):
    t = Tag(name, 'wait'); t.extra = extra; t.older = older; return t
def resolve(code):
    out = []; n = 0; at = {}
    for x in code:
        x = as_ins(x)
        if isinstance(x, Tag):
            if x.tk == 'mark': at[x.name] = n
            else:
                k = n - at[x.name] if x.name in at else n + x.older
                assert k <= 63, k
                out.append(Ins(f"s_waitcnt vmcnt({k}){x.extra}"))
            continue
        if x.kind == 'vmem' and not x.opaque: n += 1
        out.append(x)
    return out
def flat(c):
    o = []
    for y in c: o += flat(y) if isinstance(y, (list, tuple)) else [y]
    return o
def fin(c, pend_lg=(), pre=()):
    return fix_hazards(fix_waits(resolve(flat(c)), pend_lg=pend_lg), pre)

X = 96; ACC = [64, 80]; SPARE = 48; WF = 16; VT = [2, 3]; VT4 = [4, 5]; VXA = 6; VHW = 7; TA = 8
LA = opt("LA", 6)
def mkseq(g):
    q = []
    for k in range(40 - g): q += [(0, k), (1, k)]
    return q + [(0, k) for k in range(40 - g, 40)] + [(1, k) for k in range(40 - g, 40)]
SEQ = mkseq(12); SEQ0 = mkseq(8)

def a_read(n, r0=False):
    g, k = (SEQ0 if r0 else SEQ)[n % 80]; f = WF + 4 * (n % 8)
    s, l = divmod(k, 8)
    if r0 and n < 80: s = (3, 4, 2, 3, 4)[s]
    a = VT4[g] if s >= 3 else VT[g]
    o = (s % 3) * 16384 + l * 2048
    return [f"ds_read_b64_tr_b16 {vr(f,2)}, v{a} offset:{o}", f"ds_read_b64_tr_b16 {vr(f+2,2)}, v{a} offset:{o+512}"]
def a_mfma(n, orient, r0=False):
    g, k = (SEQ0 if r0 else SEQ)[n]; f = WF + 4 * (n % 8); x = X + 4 * k
    a, b = (vr(f,4), vr(x,4)) if orient == 'N' else (vr(x,4), vr(f,4))
    i = Ins(f"v_mfma_f32_32x32x16_bf16 {vr(SPARE if n == 79 else ACC[g],16)}, {a}, {b}, {'0' if k == 0 else vr(ACC[g],16)}")
    if n % 2 == 0: i.r = i.r | vset(WF + 4 * ((n + 1) % 8), 4)
    return i
def a_hand(g, q): return f"ds_write_b64 v{VHW}, {vr((X if opt('HANDX') else SPARE if g else ACC[0])+2*q,2)} offset:{4096*g + 512*q}"
def a_tail_ops(n, r0=False):
    if r0: return [a_hand(0, 2*(n - 75)), a_hand(0, 2*(n - 75) + 1)] if 75 <= n < 79 else []
    return [a_hand(0, n - 71)] if 71 <= n < 79 else []
def a_pre(): return [as_ins(x) for x in flat([[a_mfma(n, 'N')] + a_read(n + LA) for n in range(80 - LA, 80)])]
def a_pend(): return [x.w for x in a_pre() if x.kind == 'ds']
A_BAR = {16: 0, 32: 1, 48: 2, 72: 3}
def a_body(orient):
    c = []
    for n in range(80):
        if n == 16: c += ["s_waitcnt lgkmcnt(10)"]
        if n in A_BAR: c += tr("body", 2*A_BAR[n]) + ["s_barrier"] + tr("body", 2*A_BAR[n]+1)
        c += [a_mfma(n, orient)] + a_read(n + LA) + a_tail_ops(n)
        if 3 <= n < 11: c += [a_hand(1, n - 3)]
        if n in (20, 21): c += [f"v_xor_b32 v{VT4[n & 1]}, 0x18000, v{VT4[n & 1]}"]
        if n == 79: c += tr("body", 10)
    if opt("NOHAND"): c = [x for x in flat(c) if not as_ins(x).text.startswith("ds_write")]
    if opt("HANDX"): c = [(as_ins(x).text.replace("v[4", "v[14").replace("v[5", "v[15").replace("v[6", "v[16").replace("v[7", "v[17").replace(":4", ":14", 1).replace(":5", ":15", 1).replace(":6", ":16", 1).replace(":7", ":17", 1) if False else x) for x in flat(c)]
    return fin(c, a_pend(), a_pre())

AD = SPARE; AONE = SPARE + 8
def a_dots(s):
    c = []
    for i in range(32):
        x = X + 32 * s + i
        c += [f"v_dot2c_f32_bf16 v{AD + (i & 3)}, v{x}, v{AONE}", f"v_dot2c_f32_bf16 v{AD + 4 + (i & 3)}, v{x}, v{x}"]
    return c
def a_round0(orient):
    c = []
    for s in range(5):
        c += tr("r0", 2*s) + ["s_barrier"] + tr("r0", 2*s+1)
        if s == 0: c += stamp(2)
        c += [f"v_add_u32 v{TA}, {XBUF[s]}, v{VXA}"]
        xr = []
        for i in range(8):
            xr.append(([f"v_xor_b32 v{TA+1}, {32*i}, v{TA}"] if i else []) + [f"ds_read_b128 {vr(X+32*s+4*i,4)}, v{TA+1 if i else TA}"])
        n0 = 16 * s
        c += xr[0] + a_read(n0, True) + a_read(n0 + 1, True) + xr[1:] + a_read(n0 + 2, True)
        if s == 2: c += a_prefetch2()
        if s: c += a_dots(s - 1)
        if s == 4:
            c += [f"v_add_f32 v{AD}, v{AD}, v{AD+1}", f"v_add_f32 v{AD+2}, v{AD+2}, v{AD+3}", f"v_add_f32 v{AD+4}, v{AD+4}, v{AD+5}", f"v_add_f32 v{AD+6}, v{AD+6}, v{AD+7}",
                  f"v_add_f32 v{AD}, v{AD}, v{AD+2}", f"v_add_f32 v{AD+1}, v{AD+4}, v{AD+6}", f"ds_write_b64 v{AONE+1}, {vr(AD,2)}"]
        for n in range(n0, n0 + 16):
            c += [a_mfma(n, orient, True)]
            if n == n0:
                for m in range(3, LA): c += a_read(n + m, True)
            if s == 4 and n == 72: c += ["s_barrier"]
            if n + LA < n0 + 16 or s == 4: c += a_read(n + LA, True)
            c += a_tail_ops(n, True)
    return fin(c + tr("r0", 10))

def pf_w(ptr, size, stride, col, n):
    return [f"s_mov_b32 s{SWD}, s{ptr}", f"s_mov_b32 s{SWD+1}, s{ptr+1}", f"s_mov_b32 s{SWD+2}, {size}",
            f"v_mul_u32_u24 v{TA+2}, {stride}, v{TA+3}"] + [f"buffer_load_dword v1, v{TA+2}, {sr(SWD,4)}, s{col} offen offset:{128*i}" for i in range(n)]
def a_prefetch1():
    if not opt("PF", 0): return []
    t = TA
    c = [f"v_min_u32 v{t}, 39, v0", f"v_mul_u32_u24 v{t+1}, 6554, v{t}", f"v_lshrrev_b32 v{t+1}, 16, v{t+1}",
         f"v_lshlrev_b32 v{t+2}, 7, v{t}",
         f"s_lshr_b32 s{sT}, s2, 5", f"s_lshl_b32 s{sT}, s{sT}, 2", f"s_add_u32 s{sT}, s{sT}, s{sA}", f"s_mul_i32 s{sT}, s{sT}, 5120",
         f"s_mul_i32 s{sT+1}, s{sRB}, {128*1280}", f"s_add_u32 s{sT}, s{sT}, s{sT+1}",
         f"buffer_load_dword v1, v{t+2}, {sr(SX,4)}, s{sT} offen",
         f"s_lshl_b32 s{sT}, s{sCG}, 2", f"s_add_u32 s{sT}, s{sT}, s{sA}", f"s_mul_i32 s{sT}, s{sT}, 40", f"v_add_u32 v{t+3}, s{sT}, v{t}",
         f"s_cmp_eq_u32 s{sCB}, 15", "s_cbranch_scc1 LA_pf15", f"s_lshl_b32 s{sT}, s{sCB}, 8"]
    c += pf_w(sT + 10, 640*3840, 3840, sT, 2) + ["s_branch LA_pfd", "LA_pf15:", f"s_lshl_b32 s{sT}, s{sHU}, 7"]
    c += pf_w(sW1, 640*3456, 3456, sT, 2) + ["LA_pfd:"]
    return c
def a_prefetch2():
    if not opt("PF", 0): return []
    return [f"s_cmp_eq_u32 s{sCB}, 15", f"s_cselect_b32 s{sT}, 2, 0", f"s_add_u32 s{sT}, s{sT}, s{sHU}", f"s_lshl_b32 s{sT}, s{sT}, 7"] + pf_w(sW1, 640*3456, 3456, sT, 2)

def a_setup():
    t = TA
    return [f"v_bfe_u32 v{t}, v0, 2, 2", f"v_lshl_add_u32 v{t+1}, v{VH}, 3, v{t}", f"v_lshlrev_b32 v{t+1}, 7, v{t+1}",
            f"v_lshrrev_b32 v{t}, 1, v{t}", f"v_lshl_add_u32 v{t+1}, v{t}, 6, v{t+1}",
            f"v_bfe_u32 v{t}, v0, 4, 1", f"v_lshl_add_u32 v{t+1}, v{t}, 5, v{t+1}",
            f"v_and_b32 v{t}, 3, v0", f"v_lshl_add_u32 v{VT[0]}, v{t}, 3, v{t+1}", f"v_xor_b32 v{VT[1]}, 64, v{VT[0]}",
            f"v_add_u32 v{VT4[0]}, {XA}, v{VT[0]}", f"v_add_u32 v{VT4[1]}, {XA}, v{VT[1]}",
            f"v_and_b32 v{t}, 15, v0", f"v_xor_b32 v{t}, v{t}, v{VH}", f"v_lshlrev_b32 v{t}, 4, v{t}",
            f"v_lshl_add_u32 v{t}, v{VTOK}, 8, v{t}", f"s_lshl_b32 s{sT}, s{sA}, 13", f"v_add_u32 v{VXA}, s{sT}, v{t}",
            f"s_add_u32 s{sT}, s{sT}, {HAND}", f"v_lshl_add_u32 v{VHW}, v0, 3, s{sT}",
            f"s_lshl_b32 s{sT}, s{sA}, 9", f"s_add_u32 s{sT}, s{sT}, {L_ST}", f"v_lshl_add_u32 v{AONE+1}, v0, 3, s{sT}",
            f"v_mov_b32 v{AONE}, 0x3f803f80"] + [f"v_mov_b32 v{AD+i}, 0" for i in range(8)]

def a_relayout():
    t = TA; u = sT
    c = [f"v_and_b32 v{t}, 0x1ff, v{VT[0]}",
         f"s_mul_i32 s{u+2}, s{sTASK}, 6554", f"s_lshr_b32 s{u+2}, s{u+2}, 16",
         f"s_mul_i32 s{u}, s{u+2}, 10", f"s_sub_u32 s{u}, s{sTASK}, s{u}", f"s_lshl_b32 s{u+11}, s{u}, 1",
         f"s_cmp_lt_u32 s{u+2}, 3", f"s_cselect_b32 s{u+3}, 108, 40", f"s_cselect_b32 s{u+4}, 0, {hx(WS_WOF - WS_W2F)}",
         f"s_cselect_b32 s{u+5}, 16, 20", f"s_cselect_b32 s{u+6}, 64, 32", f"s_cselect_b32 s{u+7}, s{u+2}, 0",
         f"s_mul_i32 s{u+7}, s{u+7}, 40", f"s_sub_u32 s{u+8}, s{u+3}, s{u+7}",
         f"s_mul_i32 s{u+7}, s{u+7}, 5120", f"s_add_u32 s{u+4}, s{u+4}, s{u+7}", f"s_add_u32 s{u+4}, s{u+4}, {hx(WS_W2F)}",
         f"s_mul_i32 s{u+3}, s{u+3}, 5120"]
    for g, d in ((0, sR), (1, sCT)):
        c += [f"s_add_u32 s{u}, s{u+11}, {g}", f"s_mul_i32 s{u+1}, s{u}, 52429", f"s_lshr_b32 s{u+1}, s{u+1}, 18",
              f"s_mul_i32 s{u+2}, s{u+1}, 5", f"s_sub_u32 s{u}, s{u}, s{u+2}", f"s_lshl_b32 s{u}, s{u}, 10",
              f"s_mul_i32 s{u+1}, s{u+1}, s{u+3}", f"s_add_u32 s{d}, s{u}, s{u+1}", f"s_add_u32 s{d}, s{d}, s{u+4}"]
    c += [f"s_mul_i32 s{u+9}, s{sA}, 10", f"s_add_u32 s{u+10}, s{u+9}, 10", f"s_min_u32 s{u+10}, s{u+10}, s{u+8}",
          "LA_rloop:", f"s_cmp_ge_u32 s{u+9}, s{u+10}", "s_cbranch_scc1 LA_rdone",
          f"s_mul_i32 s{u}, s{u+9}, s{u+5}", f"s_sub_u32 s{u+1}, s{u+9}, 32", f"s_mul_i32 s{u+1}, s{u+1}, 80", f"s_add_u32 s{u+1}, s{u+1}, 16",
          f"s_cmp_lt_u32 s{u+9}, s{u+6}", f"s_cselect_b32 s{u}, s{u}, s{u+1}", f"s_cselect_b32 s{u+1}, 4, 40", f"s_cselect_b32 s{u+2}, 8, 20",
          f"s_lshl_b32 s{u}, s{u}, 7", f"s_lshl_b32 s{u+1}, s{u+1}, 7", f"s_lshl_b32 s{u+2}, s{u+2}, 7",
          f"v_mad_u32_u24 v{t+1}, v{VH}, s{u+1}, v{t}", f"v_add_u32 v{t+1}, s{u}, v{t+1}", f"v_add_u32 v{t+2}, s{u+2}, v{t+1}",
          f"v_xor_b32 v{t+3}, 64, v{t+1}", f"v_xor_b32 v{t+4}, 64, v{t+2}",
          f"ds_read_b64_tr_b16 v[96:97], v{t+1}", f"ds_read_b64_tr_b16 v[98:99], v{t+2}",
          f"ds_read_b64_tr_b16 v[100:101], v{t+3}", f"ds_read_b64_tr_b16 v[102:103], v{t+4}",
          f"s_mul_i32 s{u}, s{u+9}, 5120", f"s_add_u32 s{u+1}, s{u}, s{sCT}", f"s_add_u32 s{u}, s{u}, s{sR}", f"s_add_u32 s{u+9}, s{u+9}, 1",
          "s_waitcnt lgkmcnt(0)",
          f"buffer_store_dwordx4 v[96:99], v{VL16}, {sr(SWS,4)}, s{u} offen{SC}",
          f"buffer_store_dwordx4 v[100:103], v{VL16}, {sr(SWS,4)}, s{u+1} offen{SC}",
          "s_branch LA_rloop", "LA_rdone:", "s_waitcnt vmcnt(0)"]
    return fix_hazards(c)

E = [16, 32]; XT = 48; CF = 80; CSA = 96; CSD = [100, 104]; CSI = 108; EXTX = 110; RSA = 112; RS2 = 114
VW = 116; VX = 120; VC = [124, 125]; VC4 = [126, 127]; VST = 128; GC = 130; VPW = 134; VPR = 135
VBIAS = [136, 137]; VBOFF = 138; VRS = 139; VRSW = 140; BXA = 141; VHR = 142; DA = 144; ONE = 152
TB = 160

def wdma(st, unit=None):
    if unit is None and st >= 3: c = [f"s_add_u32 m0, s{sALT}, {(st-3)*16384}"]
    else: c = [f"s_add_u32 m0, s{sST}, {(st if unit is None else unit)*16384}"]
    c += [f"s_add_u32 s{sT}, s{sWOFF}, s{sTAB+st}"]
    c += [f"buffer_load_dwordx4 v{VW+e}, {sr(SWD,4)}, s{sT} offen offset:{1024*e} lds" for e in range(4)]
    return c
def xdma(stage):
    c = [f"s_lshl_b32 s{sT}, s{sA}, 13", f"s_add_u32 m0, s{sT}, {XBUF[stage]}"]
    c += [f"buffer_load_dwordx4 v{VX+q}, {sr(SX,4)}, s{sXOFF} offen offset:{1024*q} lds" for q in range(4)]
    c += [f"s_add_u32 m0, m0, 4096", f"s_add_u32 s{sT}, s{sXOFF}, 20480"]
    c += [f"buffer_load_dwordx4 v{VX+q}, {sr(SX,4)}, s{sT} offen offset:{1024*q} lds" for q in range(4)]
    c += [f"s_add_u32 s{sXOFF}, s{sXOFF}, 256", f"s_cmp_eq_u32 s{sXOFF}, s{sXEND}", f"s_cselect_b32 s{sT}, 1280, 0", f"s_sub_u32 s{sXOFF}, s{sXOFF}, s{sT}"]
    return c
def set_w(ptr, size, stride, col, rot=True):
    t = TB
    c = [f"s_mov_b32 s{SWD}, s{ptr}", f"s_mov_b32 s{SWD+1}, s{ptr+1}", f"s_mov_b32 s{SWD+2}, {size}",
         f"s_mul_i32 s{sWOFF}, s{sA}, {stride*32}", f"s_add_u32 s{sWOFF}, s{sWOFF}, s{col}"]
    if rot:
        c += [f"s_mul_i32 s{sTAB}, s{sROT}, {stride*128}"]
        for k in range(1, 5):
            c += [f"s_add_u32 s{sTAB+k}, s{sTAB+k-1}, {stride*128}", f"s_cmp_eq_u32 s{sTAB+k}, {stride*640}", f"s_cselect_b32 s{sTAB+k}, 0, s{sTAB+k}"]
    else: c += [f"s_mov_b32 s{sTAB+k}, {stride*128*k}" for k in range(5)]
    c += [
         f"v_lshrrev_b32 v{t}, 7, v{VL16}", f"v_mul_u32_u24 v{VW}, {stride}, v{t}",
         f"v_lshrrev_b32 v{t}, 2, v{VL16}", f"v_xor_b32 v{t}, v{t}, v{VL16}",
         f"v_and_b32 v{t}, 0x40, v{t}", f"v_and_b32 v{t+1}, 0x30, v{VL16}", f"v_add3_u32 v{VW}, v{VW}, v{t}, v{t+1}"]
    c += [f"v_add_u32 v{VW+e}, {e*(8*stride-1024)}, v{VW}" for e in range(1, 4)]
    return c
def b_csread(s):
    c = []
    for g in range(2):
        a = VC4[g] if s >= 3 else VC[g]; o = (s % 3) * 16384
        for j in range(4):
            c += [f"ds_read_b64_tr_b16 {vr(CF+8*g+2*j,2)}, v{a} offset:{o + (j>>1)*2048 + (j&1)*512}"]
    return c
def hi(c): return ["s_waitcnt lgkmcnt(0)", "s_setprio 3"] + c + ["s_setprio 0"]
def b_csm(): return hi([f"v_smfmac_f32_16x16x64_bf16 {vr(CSD[g],4)}, {vr(CSA,4)}, {vr(CF+8*g,8)}, v{CSI}" for g in range(2)])
def b_bias(): return [f"buffer_load_short_d16_hi v{VBIAS[g]}, v{VBOFF}, {sr(SB1,4)}, s{sBOFF} offen offset:{64*g}" for g in range(2)]
def b_partw():
    c = []
    for g in range(2):
        t = TB + 38 + g
        c += [f"v_add_f32 v{t}, v{CSD[g]}, v{CSD[g]+1}", f"v_add_f32 v{t}, v{t}, v{VBIAS[g]}", f"ds_write_b32 v{VPW}, v{t} offset:{1024*g}",
              f"v_mov_b32 v{CSD[g]}, 0", f"v_mov_b32 v{CSD[g]+1}, 0"]
    return c
E2 = [208, 224]
def b_take(E=E):
    c = [f"ds_read_b128 {vr(TB+4*g,4)}, v{VPR} offset:{1024*g}" for g in range(2)]
    c += [f"ds_read_b64 {vr(E[g]+2*q,2)}, v{VHR} offset:{4096*g+512*q}" for g in range(2) for q in range(8)]
    return c
def b_ext(orient, E=E):
    c = []
    for g in range(2):
        t = TB + 4 * g
        c += [f"v_add_f32 v{t}, v{t}, v{t+1}", f"v_add_f32 v{t+2}, v{t+2}, v{t+3}", f"v_add_f32 v{t}, v{t}, v{t+2}",
              f"v_cvt_pk_bf16_f32 v{t+3}, v{t}, 0", f"v_lshlrev_b32 v{t+1}, 16, v{t+3}", f"v_sub_f32 v{t+1}, v{t}, v{t+1}",
              f"v_cvt_pk_bf16_f32 v{t+2}, v{t}, v{t+1}"]
    m = []
    for g in range(2):
        t = TB + 4 * g
        a, b = (vr(t+2,2), vr(EXTX,2)) if orient == 'N' else (vr(EXTX,2), vr(t+2,2))
        m += [f"v_mfma_f32_32x32x8_bf16 {vr(E[g],16)}, {a}, {b}, {vr(E[g],16)}"]
    return c + hi(m)
def pk(op, d, *src): return f"v_pk_{op}_f32 {vr(d,2)}, " + ", ".join(s if isinstance(s, str) else vr(s,2) for s in src)

def epi_qk(g):
    c = []; e = E[g]
    for p in range(2):
        a = e + 8 * p; o = TB + 8 + 4 * p + 8 * g; t = TB + 24 + 2 * p + 4 * g
        c += [[f"s_lshl_b32 s{sT+1}, s{sCT}, 3", f"s_add_u32 s{sT+1}, s{sT+1}, {8*g + 4*p}", f"v_add_u32 v{t}, s{sT+1}, v{VST+1}"],
              f"v_mul_u32_u24 v{t+1}, 13108, v{t}", f"v_lshrrev_b32 v{t+1}, 16, v{t+1}",
              f"v_mul_u32_u24 v{t+1}, {HS_QK - 2560}, v{t+1}", f"v_lshl_add_u32 v{t}, v{t}, 9, v{t+1}", f"v_add_u32 v{t}, v{t}, v{VST}"]
        c += [f"v_mul_f32 v{a+i}, v{RSA}, v{a+i}" for i in range(8)]
        c += [f"v_cvt_pk_bf16_f32 v{o+i}, v{a+2*i}, v{a+2*i+1}" for i in range(4)]
        c += [f"v_permlane16_swap_b32 v{o}, v{o+2}", f"v_permlane16_swap_b32 v{o+1}, v{o+3}",
              f"buffer_store_dwordx4 {vr(o,4)}, v{t}, {sr(SWS,4)}, s{sQKROW} offen{SC}"]
    return c
def epi_v(g):
    e = E[g]; ad = TB + 24 + 4 * g; a2 = ad + 1; r = XT; p = TB + 8 + 8 * g
    c = [[f"s_lshl_b32 s{sT+1}, s{sCT}, 5", f"s_sub_u32 s{sT+1}, s{sT+1}, {1280 - 32*g}", f"v_add_u32 v{a2}, s{sT+1}, v{VTOK}"],
         f"v_mul_u32_u24 v{ad}, 3277, v{a2}", f"v_lshrrev_b32 v{ad}, 16, v{ad}",
         f"v_mul_u32_u24 v{ad+2}, 20, v{ad}", f"v_sub_u32 v{a2}, v{a2}, v{ad+2}",
         f"v_mul_u32_u24 v{ad}, {HS_V}, v{ad}", f"v_lshl_add_u32 v{ad}, v{a2}, 4, v{ad}",
         f"v_mul_u32_u24 v{ad+2}, 336, v{VH}", f"v_add_u32 v{ad}, v{ad}, v{ad+2}",
         f"v_lshlrev_b32 v{a2}, 25, v{a2}", f"v_add_u32 v{a2}, v{a2}, v{ad}",
         f"buffer_store_dwordx4 {vr(ONE,4)}, v{a2}, {sr(SWS,4)}, s{sVOFF} offen offset:320{SC}",
         f"buffer_store_dwordx4 {vr(ONE,4)}, v{a2}, {sr(SWS,4)}, s{sVOFF} offen offset:992{SC}"]
    c += [f"v_mul_f32 v{e+i}, v{r+i}, v{e+i}" for i in range(16)]
    c += [f"v_cvt_pk_bf16_f32 v{p+i}, v{e+2*i}, v{e+2*i+1}" for i in range(8)]
    c += [f"buffer_store_dwordx4 {vr(p+4*j,4)}, v{ad}, {sr(SWS,4)}, s{sVOFF} offen offset:{672*j}{SC}" for j in range(2)]
    return c
def epi_h(g, E=E, ct=0):
    c = []
    for hf in range(2):
        a = E[g] + 8 * hf; t = XT + 8 * hf + 16 * g; p = TB + 8 + 4 * hf + 8 * g
        R = range(4)
        R8 = range(8)
        c += [f"v_mul_f32 v{a+i}, v{RS2}, v{a+i}" for i in R8]
        c += [f"v_mul_f32 v{t+i}, v{a+i}, v{a+i}" for i in R8]
        c += [f"v_fmaak_f32 v{t+i}, v{t+i}, v{GC}, {fl(GC1)}" for i in R8]
        c += [f"v_mul_f32 v{t+i}, v{t+i}, v{a+i}" for i in R8]
        c += [f"v_exp_f32 v{t+i}, v{t+i}" for i in R8]
        c += [f"v_add_f32 v{t+i}, 1.0, v{t+i}" for i in R8]
        c += [f"v_rcp_f32 v{t+i}, v{t+i}" for i in R8]
        c += [f"v_mul_f32 v{a+i}, v{a+i}, v{t+i}" for i in R8]
        c += [f"v_cvt_pk_bf16_f32 v{p+i}, v{a+2*i}, v{a+2*i+1}" for i in R]
        c += [[f"s_lshl_b32 s{sT+1}, s{sCT}, 11", f"s_add_u32 s{sT+1}, s{sT+1}, s{sHOFF}"] + [f"s_add_u32 s{sT+1}, s{sT+1}, {2048*ct}"] * bool(ct) + [
               f"buffer_store_dwordx4 {vr(p,4)}, v{VL16}, {sr(SWS,4)}, s{sT+1} offen offset:{2048*g + 1024*hf}{SC}"]]
    return c
EPI = {'QK': epi_qk, 'V': epi_v, 'H': epi_h}

def poll_load(t, voff, soff, n=1):
    return f"buffer_load_dword{'x4' if n == 4 else ''} {vr(t,n)}, v{voff}, {sr(SWS,4)}, {soff} offen{SC}"
def poll_check(lab, t, voff, soff, n=1):
    c = [f"s_mov_b32 s{sT+2}, {SPIN}", f"{lab}:"]
    c += [f"v_xor_b32 v{t+i}, s{sN}, v{t+i}" for i in range(n)]
    if n == 4: c += [f"v_or3_b32 v{t}, v{t}, v{t+1}, v{t+2}", f"v_or_b32 v{t}, v{t}, v{t+3}"]
    c += [f"v_cmp_ne_u32 vcc, 0, v{t}", "s_nop 0", "s_cmp_eq_u64 vcc, 0", f"s_cbranch_scc1 {lab}_x"]
    c += opaque([f"s_sleep {opt('SLEEP', 4)}", poll_load(t, voff, soff, n), f"s_sub_u32 s{sT+2}, s{sT+2}, 1", "s_waitcnt vmcnt(0)", f"s_cbranch_scc0 {lab}"])
    c += [f"{lab}_x:"]
    return c
def kvdma(n, so, lds_base):
    c = []
    for j in range(n):
        c += [f"s_add_u32 m0, s{sT+8}, {lds_base + 4096*j}",
              f"buffer_load_dwordx4 v{VL16}, {sr(SWS,4)}, s{so} offen{SC} lds", f"s_add_u32 s{so}, s{so}, 4096"]
    return c
sK, sV = sT + 9, sT + 10
PF, PA = 200, 204
def f1_load(): return [f"v_lshlrev_b32 v{PA}, 3, v{VL16}", f"s_mov_b32 s{sT+3}, {hx(WS_F1)}", poll_load(PF, PA, f"s{sT+3}", 4)]
def b_first_kv(lab):
    c = poll_check(lab, PF, PA, f"s{sT+3}", 4)
    c += [f"s_lshl_b32 s{sT+8}, s{sA}, 10",
          f"s_mul_i32 s{sK}, s{sHEAD}, {HS_QK}", f"s_add_u32 s{sK}, s{sK}, s{sT+8}",
          f"s_mul_i32 s{sT+1}, s{sQB}, 10240", f"s_add_u32 s{sT+1}, s{sT+1}, s{sK}", f"s_add_u32 s{sK}, s{sK}, {hx(WS_K)}",
          f"s_mul_i32 s{sV}, s{sHEAD}, {HS_V}", f"s_add_u32 s{sV}, s{sV}, {hx(WS_V)}", f"s_add_u32 s{sV}, s{sV}, s{sT+8}"]
    c += kvdma(3, sT + 1, L_Q) + kvdma(5, sK, 0) + kvdma(6, sV, LV) + [mark("kv0")]
    return c
def flag_store(soff, t=TB+36):
    return [f"v_lshlrev_b32 v{t}, 21, v{VL16}", f"v_mov_b32 v{t+1}, s{sN}",
            f"buffer_store_dword v{t+1}, v{t}, {sr(SWS,4)}, {soff} offen{SC}"]
def split(lst, weights):
    tot = sum(weights); out = []; acc = 0
    for w in weights:
        out.append(lst[len(lst)*acc//tot: len(lst)*(acc+w)//tot]); acc += w
    return out

def f1_signal():
    return [f"s_and_b32 s{sT+1}, s2, 63", f"s_lshl_b32 s{sT+1}, s{sT+1}, 7", f"s_lshr_b32 s{sT+2}, s2, 6", f"s_lshl_b32 s{sT+2}, s{sT+2}, 2",
            f"s_add_u32 s{sT+1}, s{sT+1}, s{sT+2}", f"s_add_u32 s{sT+1}, s{sT+1}, {hx(WS_F1)}",
            f"s_lshl_b32 s{sT+2}, s{sA}, 2", f"s_add_u32 s{sT+2}, s{sT+2}, s{sR}", f"s_xor_b32 s{sT+2}, s{sT+2}, 2", f"s_lshl_b32 s{sT+2}, s{sT+2}, 4",
            f"v_or_b32 v{TB+36}, s{sT+2}, v{VL16}", f"v_lshlrev_b32 v{TB+36}, 21, v{TB+36}", f"v_mov_b32 v{TB+37}, s{sN}",
            f"buffer_store_dword v{TB+37}, v{TB+36}, {sr(SWS,4)}, s{sT+1} offen{SC}"]
def b_head(last):
    c = b_csread(0) + b_bias() + [f"v_xor_b32 v{VC4[g]}, 0x18000, v{VC4[g]}" for g in range(2)] + [f"s_xor_b32 s{sALT}, s{sALT}, 0x18000"]
    c += b_csm() + b_csread(1) + ([] if last else switch_w("LBs")) + b_csm()
    return c
H3W = [int(x) for x in opt("H3W", "3,5,6,2,2").split(",")]
def b_body(etype):
    last = etype == 'H3'
    f = EPI['H' if last else etype]
    wts = {'QK': [2, 3, 0, 0, 0], 'V': [2, 3, 0, 0, 0], 'H': [3, 4, 7, 4, 0], 'H3': H3W}[etype]
    sl = split(f(0) + f(1), wts)
    bar = lambda k, w: tr("body", 2*k) + [w] + tr("body", 2*k+1) + ["s_barrier"]
    dma = (lambda st: []) if last else wdma
    c = bar(0, "s_waitcnt vmcnt(3) lgkmcnt(0)") + b_take()
    if etype == 'V': c += [f"ds_read_b128 {vr(XT+4*q,4)}, v{VRS} offset:{32*q}" for q in range(4)]
    c += dma(0) + dma(3) + b_ext('V' if etype == 'V' else 'N') + b_csread(2) + sl[0][:10] + b_csm() + sl[0][10:]
    c += bar(1, "s_waitcnt lgkmcnt(0)") + dma(1) + [mark("w1")] + dma(4)
    if last: c += f1_load()
    c += b_csread(3) + sl[1][:10] + b_csm() + sl[1][10:] + [mark("st")]
    c += bar(2, "s_waitcnt lgkmcnt(0)") + dma(2)
    if last: c += b_first_kv("LB_p3")
    c += b_csread(4) + sl[2][:10] + b_csm() + sl[2][10:]
    if not last: c += [waitfor("none")]
    c += b_partw()
    c += bar(3, "s_waitcnt lgkmcnt(0)" if last else waitfor("w1" if etype == 'H' else "st", " lgkmcnt(0)"))
    c += sl[3] + ([] if last else f1_signal()) + tr("body", 10)
    return c, sl[4]

def switch_w(lab):
    c = [f"s_cmp_eq_u32 s{sR}, 2", f"s_cbranch_scc1 {lab}_s2",
         f"s_cmp_eq_u32 s{sCB}, 15", f"s_cselect_b32 s{sT+1}, 2, 0", f"s_add_u32 s{sT+1}, s{sT+1}, s{sHU}", f"s_lshl_b32 s{sT+1}, s{sT+1}, 7"]
    c += set_w(sW1, 640*3456, 3456, sT+1)
    c += [f"s_branch {lab}_sd", f"{lab}_s2:", f"s_cmp_eq_u32 s{sNR}, 3", f"s_cbranch_scc1 {lab}_sr",
          f"s_add_u32 s{sWOFF}, s{sWOFF}, 128", f"s_branch {lab}_sd", f"{lab}_sr:",
          f"s_mul_i32 s{sT+2}, s{sTASK}, 6554", f"s_lshr_b32 s{sT+2}, s{sT+2}, 16", f"s_mul_i32 s{sT+3}, s{sT+2}, 10", f"s_sub_u32 s{sT+3}, s{sTASK}, s{sT+3}",
          f"s_lshl_b32 s{sT+1}, s{sT+3}, 7", f"s_mul_i32 s{sT+3}, s{sT+2}, {640*1280}", f"s_cmp_lt_u32 s{sT+2}, 3",
          f"s_cselect_b32 s{sT+3}, s{sT+3}, 0", f"s_add_u32 s{sT+1}, s{sT+1}, s{sT+3}"]
    c += set_w(sW2, 1728*1280, 1280, sT+1, False)
    c += [f"s_cmp_lt_u32 s{sTASK}, 30", f"s_cbranch_scc1 {lab}_sd",
          f"s_mov_b32 s{SWD}, s{sWO}", f"s_mov_b32 s{SWD+1}, s{sWO+1}",
          f"s_cmp_lt_u32 s{sTASK}, 40", f"s_cselect_b32 s{SWD+2}, {640*1280}, 0", f"{lab}_sd:"]
    return opaque([x.replace(f"v{TB+1}", f"v{TB+37}").replace(f"v{TB}", f"v{TB+36}") for x in c])

def rbf(d, s): return [f"v_cvt_pk_bf16_f32 v{d}, v{s}, v{s}", f"v_and_b32 v{d}, 0xffff0000, v{d}"]
def b_dots():
    c = hi([f"v_smfmac_f32_16x16x64_bf16 {vr(DA,4)}, {vr(CSA,4)}, {vr(XT+8*i,8)}, v{CSI}" for i in range(4)])
    for i in range(0, 32, 2):
        t = TB + 4
        c += [f"v_lshlrev_b32 v{t}, 16, v{XT+i}", f"v_and_b32 v{t+1}, 0xffff0000, v{XT+i}",
              f"v_lshlrev_b32 v{t+2}, 16, v{XT+i+1}", f"v_and_b32 v{t+3}, 0xffff0000, v{XT+i+1}"]
        c += [f"v_fmac_f32 v{DA+4+j}, v{t+j}, v{t+j}" for j in range(4)]
    return c
def b_stats():
    m, v, d, u = DA, DA + 4, TB, TB + 1
    c = [f"v_add_f32 v{m}, v{m}, v{m+1}", f"v_add_f32 v{v}, v{v}, v{v+1}", f"v_add_f32 v{v+2}, v{v+2}, v{v+3}",
         f"v_add_f32 v{v}, v{v}, v{v+2}", f"v_add_f32 v{m}, v{m}, v{TB+2}", f"v_add_f32 v{v}, v{v}, v{TB+3}",
         f"v_permlane32_swap_b32 v{m}, v{v}", f"v_add_f32 v{m}, v{m}, v{v}", f"v_mul_f32 v{m}, {fl(1/640)}, v{m}", f"v_mov_b32 v{v}, v{m}",
         f"v_permlane32_swap_b32 v{m}, v{v}",
         f"v_fma_f32 v{v}, -v{m}, v{m}, v{v}", f"v_max_f32 v{v}, 0, v{v}"]
    c += rbf(d, v) + [f"v_add_f32 v{d}, {fl(1e-5)}, v{d}"] + rbf(d, d) + [f"v_sqrt_f32 v{d}, v{d}"] + rbf(d, d)
    c += [f"v_rcp_f32 v{u}, v{d}", f"ds_write_b32 v{VRSW}, v{u}",
          f"v_mul_f32 v{RSA}, v{RSA}, v{u}",
          f"v_mul_f32 v{v}, v{v}, v{u}", f"v_mul_f32 v{v}, v{v}, v{u}"]
    c += rbf(v, v) + [f"v_add_f32 v{v}, {fl(1e-5)}, v{v}"] + rbf(v, v) + [f"v_sqrt_f32 v{v}, v{v}"] + rbf(v, v)
    c += [f"v_mul_f32 v{d}, v{d}, v{v}", f"v_rcp_f32 v{RS2}, v{d}", f"v_sub_f32 v{m}, 0, v{m}",
          f"v_cmp_eq_u32 vcc, 0, v{VH}", f"v_cndmask_b32 v{m}, v{d}, v{m}, vcc",
          f"v_cvt_pk_bf16_f32 v{EXTX}, v{m}, v{m}", f"v_and_b32 v{d}, 0xffff0000, v{EXTX}",
          f"v_sub_f32 v{m}, v{m}, v{d}", f"v_cvt_pk_bf16_f32 v{EXTX+1}, v{m}, 0"]
    return c

def b_start():
    t = TB
    c = xdma(0) + [f"s_lshl_b32 s{sST}, s{sA}, 12", f"s_add_u32 s{sALT}, s{sST}, 49152"]
    c += [f"s_mov_b32 s{sBOFF}, 0", f"s_cmp_eq_u32 s{sCB}, 15", "s_cbranch_scc1 LB_w1first", f"s_lshl_b32 s{sT+1}, s{sCB}, 8"]
    c += set_w(sT + 10, 640*3840, 3840, sT+1)
    c += [f"s_lshl_b32 s{sCT}, s{sCB}, 2", "s_branch LB_wset", "LB_w1first:", f"s_lshl_b32 s{sBOFF}, s{sHU}, 7"]
    c += set_w(sW1, 640*3456, 3456, sBOFF)
    c += [f"s_mov_b32 s{SB1+2}, 3456", f"s_lshl_b32 s{sCT}, s{sHU}, 1", "LB_wset:"]
    c += wdma(0, WSL0[0]) + [mark("d0")] + xdma(1) + wdma(1, WSL0[1]) + [mark("d1")]
    c += [x.replace(f"v{TA+1}", f"v{t+1}").replace(f"v{TA}", f"v{t}") for x in a_setup()[:8]]
    c += [f"v_lshl_add_u32 v{t+1}, v{t}, 3, v{t+1}", f"s_lshl_b32 s{sT}, s{sA}, 12", f"v_add_u32 v{VC[0]}, s{sT}, v{t+1}", f"v_xor_b32 v{VC[1]}, 64, v{VC[0]}",
          f"v_add_u32 v{VC4[0]}, {XA}, v{VC[0]}", f"v_add_u32 v{VC4[1]}, {XA}, v{VC[1]}",
          f"v_and_b32 v{t}, 15, v0", f"v_lshlrev_b32 v{VST}, 4, v{t}", f"v_xor_b32 v{t}, v{t}, v{VH}", f"v_lshlrev_b32 v{t}, 4, v{t}",
          f"v_lshl_add_u32 v{t}, v{VTOK}, 8, v{t}", f"s_lshl_b32 s{sT}, s{sA}, 13", f"v_add_u32 v{BXA}, s{sT}, v{t}",
          f"s_add_u32 s{sT}, s{sT}, {HAND}", f"v_lshl_add_u32 v{VHR}, v0, 3, s{sT}",
          f"v_bfe_u32 v{t}, v0, 4, 1", f"v_lshl_add_u32 v{VST+1}, v{t}, 1, v{VH}",
          f"s_lshl_b32 s{sT}, s{sA}, 7", f"s_add_u32 s{sT}, s{sT}, {L_RS}", f"v_lshl_add_u32 v{VRSW}, v{VTOK}, 2, s{sT}", f"v_lshl_add_u32 v{VRS}, v{VH}, 4, s{sT}",
          f"v_add_u32 v{VPR}, {L_PART}, v{VL16}", f"s_lshl_b32 s{sT}, s{sA}, 2", f"v_add_u32 v{VPW}, s{sT}, v{VPR}",
          f"v_lshlrev_b32 v{VBOFF}, 1, v{VTOK}", f"s_lshl_b32 s{sT}, s{sA}, 20", f"v_add_u32 v{VBOFF}, s{sT}, v{VBOFF}",
          f"v_xor_b32 v{t}, 1, v{VH}", f"v_lshl_add_u32 v{VBOFF}, v{t}, 24, v{VBOFF}",
          f"s_cmp_lt_u32 s{sCB}, 5", f"s_cselect_b32 s{sT}, {fl(QSCALE)}, 1.0", f"v_mov_b32 v{RSA}, s{sT}",
          f"v_mov_b32 v{GC}, {fl(GC2)}"]
    c += [f"v_mov_b32 v{ONE+i}, 0x3f803f80" for i in range(4)]
    c += [f"v_and_b32 v{t}, 14, v0",
          f"v_cmp_eq_u32 vcc, 0, v{t}", f"v_cndmask_b32 v{CSA}, 0, v{ONE}, vcc", f"v_mov_b32 v{CSA+1}, v{CSA}",
          f"v_cmp_eq_u32 vcc, 4, v{t}", f"v_cndmask_b32 v{CSA+2}, 0, v{ONE}, vcc", f"v_mov_b32 v{CSA+3}, v{CSA+2}",
          f"v_and_b32 v{t}, 1, v0", f"v_mul_u32_u24 v{t}, 0xaaaa, v{t}", f"v_add_u32 v{CSI}, 0x4444, v{t}"]
    c += [f"v_mov_b32 v{r}, 0" for r in list(range(CSD[0], CSD[0]+8)) + list(range(DA, DA+8))]
    c += [f"s_lshl_b32 s{sT}, s{sRB}, 2", f"s_add_u32 s{sT}, s{sT}, s{sA}",
          f"s_lshr_b32 s{sT+1}, s{sT}, 1", f"s_mul_i32 s{sQKROW}, s{sT+1}, 2560", f"s_and_b32 s{sT+1}, s{sT}, 1",
          f"s_lshl_b32 s{sT+1}, s{sT+1}, 8", f"s_add_u32 s{sQKROW}, s{sQKROW}, s{sT+1}",
          f"s_mul_i32 s{sVOFF}, s{sT}, 1344", f"s_add_u32 s{sVOFF}, s{sVOFF}, {hx(WS_V)}",
          f"s_mul_i32 s{sHOFF}, s{sT}, {108*1024}", f"s_add_u32 s{sHOFF}, s{sHOFF}, {hx(WS_H)}"]
    c += [f"s_lshl_b32 s{sT}, s{sA}, 9", f"s_add_u32 s{sT}, s{sT}, {L_ST}", f"v_lshl_add_u32 v{VHR+1}, v0, 3, s{sT}"]
    c += b_bias() + stamp(1) + ["s_waitcnt lgkmcnt(0)", f"s_add_u32 s{sN}, s{sN}, 1"]
    for s in range(5):
        c += tr("r0", 2*s) + [waitfor(f"d{s}", " lgkmcnt(0)")] + tr("r0", 2*s+1) + ["s_barrier"]
        if s == 0: c += stamp(2)
        c += b_csread((3, 4, 2, 3, 4)[s])
        if s < 3: c += xdma(s + 2) + b_csm() + wdma(s + 2, WSL0[s + 2]) + [mark(f"d{s+2}")]
        if s == 2: c += [f"s_add_u32 s{sWOFF}, s{sWOFF}, 128"]
        if s == 3: c += wdma(0) + b_csm() + wdma(1) + [mark("w11")] + wdma(2)
        if s == 4:
            c += [f"v_add_u32 v{t}, {XBUF[s]}, v{BXA}"]
            for i in range(8):
                c += ([f"v_xor_b32 v{t+1}, {32*i}, v{t}"] if i else []) + [f"ds_read_b128 {vr(XT+4*i,4)}, v{t+1 if i else t}"]
            d = b_dots()
            c += wdma(3) + wdma(4) + b_csm() + d[:31] + b_partw() + [waitfor("w11", " lgkmcnt(0)"), "s_barrier", f"ds_read_b64 {vr(TB+2,2)}, v{VHR+1}"]
            c += [f"buffer_load_dword v1, v{VBOFF}, {sr(SB1,4)}, 0 offen"]
            global R0_LEFT
            R0_LEFT = d[31:] + b_stats()
    return fin(c + tr("r0", 10))

def prologue():
    t = TB
    c = ["s_cmp_ge_u32 s2, 256", "s_cbranch_scc1 L_end",
         f"s_load_dwordx2 {sr(SX,2)}, s[0:1], 0", f"s_load_dwordx2 {sr(sT+10,2)}, s[0:1], 8", f"s_load_dwordx2 {sr(sW1,2)}, s[0:1], 32",
         f"s_load_dwordx2 {sr(SWS,2)}, s[0:1], 80", f"s_load_dwordx2 {sr(SB1,2)}, s[0:1], 40", f"s_load_dwordx2 {sr(sWO,2)}, s[0:1], 16",
         f"s_load_dwordx2 {sr(sW2,2)}, s[0:1], 48", f"s_load_dwordx2 {sr(SB2,2)}, s[0:1], 56", f"s_load_dwordx2 {sr(SOUT,2)}, s[0:1], 64",
         f"v_lshrrev_b32 v1, 6, v0", f"v_and_b32 v0, 63, v0", f"v_readfirstlane_b32 s{sW}, v1",
         f"v_lshlrev_b32 v{VL16}, 4, v0", f"v_lshrrev_b32 v{VH}, 5, v0", f"v_and_b32 v{VTOK}, 31, v0",
         f"s_and_b32 s{sA}, s{sW}, 3", f"s_lshr_b32 s{sT+3}, s2, 3", f"s_and_b32 s{sT}, s2, 7",
         f"s_and_b32 s{sRB}, s2, 3", f"s_lshl_b32 s{sRB}, s{sRB}, 2", f"s_and_b32 s{sCG}, s{sT+3}, 3", f"s_add_u32 s{sRB}, s{sRB}, s{sCG}",
         f"s_lshr_b32 s{sT+1}, s{sT+3}, 2", f"s_lshl_b32 s{sCB}, s{sT+1}, 1", f"s_lshr_b32 s{sT+2}, s{sT}, 2", f"s_add_u32 s{sCB}, s{sCB}, s{sT+2}",
         f"s_lshl_b32 s{sRTILE}, s{sT}, 3", f"s_add_u32 s{sRTILE}, s{sRTILE}, s{sT+1}",
         f"s_lshl_b32 s{sHEAD}, s{sT}, 2", f"s_lshr_b32 s{sT+2}, s{sT+3}, 3", f"s_add_u32 s{sHEAD}, s{sHEAD}, s{sT+2}", f"s_and_b32 s{sQB}, s{sT+3}, 7",
         f"s_mul_i32 s{sTASK}, s{sT}, 5", f"s_sub_u32 s{sT+1}, s{sT+3}, 20", f"s_add_u32 s{sTASK}, s{sTASK}, s{sT+1}",
         f"s_cmp_lt_u32 s{sT+1}, 5", f"s_cselect_b32 s{sTASK}, s{sTASK}, 99",
         f"s_lshl_b32 s{sHU}, s{sCB}, 1", f"s_add_u32 s{sT}, s{sCB}, 9", f"s_cmp_lt_u32 s{sCB}, 9", f"s_cselect_b32 s{sHU}, s{sHU}, s{sT}",
         f"s_cselect_b32 s{sNR}, 4, 3",
         f"s_lshl_b32 s{sT}, s{sRB}, 2", f"s_add_u32 s{sT}, s{sT}, s{sA}", f"s_mul_i32 s{sXOFF}, s{sT}, {32*1280}",
         f"s_lshr_b32 s{sROT}, s{sT+3}, 2", f"s_add_u32 s{sROT}, s{sROT}, s{sCG}", f"s_mul_i32 s{sT}, s{sROT}, 52429", f"s_lshr_b32 s{sT}, s{sT}, 18",
         f"s_mul_i32 s{sT}, s{sT}, 5", f"s_sub_u32 s{sROT}, s{sROT}, s{sT}", f"s_mul_i32 s{sROT}, s{sROT}, {opt('ROT', 1)}",
         f"s_add_u32 s{sXEND}, s{sXOFF}, 1280", f"s_lshl_b32 s{sT}, s{sROT}, 8", f"s_add_u32 s{sXOFF}, s{sXOFF}, s{sT}",
         f"v_lshrrev_b32 v{t}, 4, v0", f"v_xor_b32 v{t+1}, v{t}, v0", f"v_and_b32 v{t+1}, 15, v{t+1}", f"v_lshlrev_b32 v{t+1}, 4, v{t+1}",
         f"v_mul_u32_u24 v{t}, 1280, v{t}"]
    for q in range(4):
        c += [f"v_xor_b32 v{t+2}, {64*q}, v{t+1}", f"v_add3_u32 v{VX+q}, v{t}, v{t+2}, 0" if q == 0 else f"v_add_u32 v{t+2}, {4096*q}, v{t+2}"]
        if q: c += [f"v_add_u32 v{VX+q}, v{t}, v{t+2}"]
    for d, size in ((SX, 2621440), (SWD, 0), (SWS, WS_SIZE), (SB1, 0), (SB2, 1280), (SOUT, 2621440)):
        c += [f"s_mov_b32 s{d+2}, {hx(size)}", f"s_mov_b32 s{d+3}, 0x00020000"]
    c += ["s_waitcnt lgkmcnt(0)", f"s_add_u32 s{sT+8}, s{SWS}, {hx(WS_EP)}", f"s_addc_u32 s{sT+9}, s{SWS+1}, 0", f"s_load_dword s{sN}, {sr(sT+8,2)}, 0"]
    return fix_hazards(c)

S = {(0,0): 16, (1,0): 32, (0,1): 48, (1,1): 64}
O = [80, 96]; Q = [112, 118]; K = [124, 130]; V = [136, 144]; IDX = 152
AK0, AK1, AK2, AV, AVN, VVG = 153, 154, 155, 156, 157, 158
T = 2
PAT = opt("PAT", "CfeeeDfweeeAeeeBeeeeeee")
WOF = 96; RED = 16; OF = [64 + 4*i for i in range(8)] + [216, 220]; GR = 224; XV = 236; BV = 242; IA = 248; IG = 251; VL2 = 254

def qk(dst, kf, q):
    return (f"v_mfma_f32_32x32x16_bf16 {vr(dst,16)}, {vr(kf,4)}, {vr(Q[q],4)}, 0",
            f"v_mfma_f32_32x32x8_bf16 {vr(dst,16)}, {vr(kf+4,2)}, {vr(Q[q]+4,2)}, {vr(dst,16)}")
def pv(q, vf, s):
    return (f"v_smfmac_f32_32x32x32_bf16 {vr(O[q],16)}, {vr(vf,4)}, {vr(s,8)}, v{IDX}",
            f"v_smfmac_f32_32x32x32_bf16 {vr(O[q],16)}, {vr(vf+4,4)}, {vr(s+8,8)}, v{IDX}")
def kread(kt):
    f = K[kt & 1]
    return [f"ds_read2st64_b64 {vr(f,4)}, v{AK1 if kt & 1 else AK0} offset0:{5*(kt>>1)} offset1:{5*(kt>>1)+1}",
            f"ds_read_b32 v{f+4}, v{AK2} offset:{(kt>>1)*2560 + (kt&1)*256}"]
def vread(kt):
    f = V[kt & 1]; a = AV
    if kt == 16: a = AVN; kt = 0
    return [f"ds_read_b128 {vr(f,4)}, v{a} offset:{kt*1344}", f"ds_read_b128 {vr(f+4,4)}, v{a} offset:{kt*1344+672}"]
def loop_body(pat=PAT):
    c = []
    for i in range(32):
        kt, q = divmod(i, 2); ktp, qp = divmod(i - 1, 2)
        sc = S[(q, kt & 1)]
        A, B = qk(S[(q, (kt + 1) & 1)], K[(kt + 1) & 1], q)
        C, D = pv(qp, V[ktp & 1], S[(qp, ktp & 1)])
        fill = kread(kt + 2) if q == 0 else vread(kt + 1)
        e = f = 0
        for ch in pat:
            if ch == 'A': c.append(A)
            elif ch == 'B': c.append(B)
            elif ch == 'C': c.append(C)
            elif ch == 'D': c.append(D)
            elif ch == 'e': c.append(f"v_exp_f32 v{sc+e}, v{sc+e}"); e += 1
            elif ch == 'f':
                if i == 28 and f == 0: c += ["s_waitcnt lgkmcnt(2)", "s_barrier"]
                c.append(fill[f]); f += 1
            elif ch == 'w' and q == 0: c.append(f"s_waitcnt lgkmcnt({f})")
    return c
def shift_split(q, m):
    t = T + 6
    return [f"v_sub_f32 v{m}, 0, v{m}",
            f"v_cvt_pk_bf16_f32 v{t}, v{m}, v{m}", f"v_and_b32 v{t}, 0xffff0000, v{t}", f"v_sub_f32 v{t}, v{m}, v{t}",
            f"v_cvt_pk_bf16_f32 v{t+1}, v{m}, v{t}", f"v_and_b32 v{t+2}, 0xffff0000, v{t+1}", f"v_sub_f32 v{t}, v{t}, v{t+2}",
            f"v_cvt_pk_bf16_f32 v{t}, v{t}, 0",
            f"v_cmp_eq_u32 vcc, 0, v{VH}", f"v_cndmask_b32 v{Q[q]+5}, v{t}, v{t+1}, vcc"]
def max16(d, s, acc=False):
    c = [f"v_max3_f32 v{d}, v{s}, v{s+1}, v{d if acc else s}"]
    for j in range(2, 16, 2): c.append(f"v_max3_f32 v{d}, v{s+j}, v{s+j+1}, v{d}")
    return c
def xhalf_max(d):
    return [f"v_mov_b32 v{d+1}, v{d}", f"v_permlane32_swap_b32 v{d}, v{d+1}", f"v_max_f32 v{d}, v{d}, v{d+1}"]

def attn():
    c = [f"v_lshrrev_b32 v{T}, 4, v{VTOK}", f"v_lshlrev_b32 v{T}, 3, v{T}", f"v_and_b32 v{T+1}, 15, v{VTOK}",
         f"v_lshl_add_u32 v{T+2}, v{T+1}, 4, v{T}",
         f"v_lshrrev_b32 v{T+3}, 1, v{T+2}", f"v_xor_b32 v{T+3}, v{T+3}, v{T+2}", f"v_and_b32 v{T+3}, 64, v{T+3}",
         f"v_mul_u32_u24 v{T+3}, 3, v{T+3}", f"v_xor_b32 v{AK0}, v{T+3}, v{T+2}",
         f"v_lshl_add_u32 v{AK2}, v{VH}, 2, v{AK0}", f"v_add_u32 v{AK2}, 2048, v{AK2}",
         f"v_lshl_add_u32 v{AK0}, v{VH}, 10, v{AK0}", f"v_add_u32 v{AK1}, 256, v{AK0}",
         f"s_mul_i32 s{sT}, s{sA}, 2560", f"s_add_u32 s{sT}, s{sT}, {L_Q}", f"v_add_u32 v{T+2}, s{sT}, v{T+2}",
         f"v_lshl_add_u32 v{T+3}, v{VH}, 2, v{T+2}", f"v_lshl_add_u32 v{T+2}, v{VH}, 10, v{T+2}",
         f"v_min_u32 v{AV}, 20, v{VTOK}", f"v_lshlrev_b32 v{AV}, 4, v{AV}", f"v_mul_u32_u24 v{T}, 336, v{VH}", f"v_add_u32 v{VVG}, v{AV}, v{T}",
         f"v_mov_b32 v{T}, 0xfee00000", f"v_lshrrev_b32 v{T}, v{VTOK}, v{T}", f"v_and_b32 v{T}, 1, v{T}", f"v_mul_u32_u24 v{T}, 0x18000, v{T}", f"v_add_u32 v{AV}, v{T}, v{VVG}",
         f"v_add_u32 v{AVN}, {LV + VCH}, v{AV}", f"v_add_u32 v{AV}, {LV}, v{AV}",
         f"v_mov_b32 v{IDX}, 0xdddddddd", f"v_mov_b32 v{K[0]+5}, 0x3f803f80", f"v_mov_b32 v{K[1]+5}, 0x3f803f80",
         f"v_mov_b32 v{Q[0]+5}, 0", f"v_mov_b32 v{Q[1]+5}, 0"]
    c += [f"v_mov_b32 v{r}, 0" for r in list(range(O[0], O[0]+32)) + list(range(S[(1,1)], S[(1,1)]+16)) + list(range(V[1], V[1]+8))]
    c += ["s_barrier"] + stamp(5)
    c += kread(0)
    for q in range(2):
        c += [f"ds_read_b64 {vr(Q[q],2)}, v{T+2} offset:{256*q}", f"ds_read_b64 {vr(Q[q]+2,2)}, v{T+2} offset:{256*q+512}",
              f"ds_read_b32 v{Q[q]+4}, v{T+3} offset:{256*q+2048}"]
    c += kread(1) + vread(0)
    for q in range(2): c += list(qk(S[(q,0)], K[0], q))
    for q in range(2): c += max16(T + 2*q, S[(q,0)]) + xhalf_max(T + 2*q) + shift_split(q, T + 2*q)
    for q in range(2): c += list(qk(S[(q,0)], K[0], q))
    c += [f"s_mov_b32 s{sT+2}, 0", "s_waitcnt lgkmcnt(0)", "s_nop 5"]
    c = fin(c)
    body = loop_body()
    upd = [f"v_add_u32 v{AK0}, 20480, v{AK0}", f"v_add_u32 v{AK1}, 20480, v{AK1}", f"v_add_u32 v{AK2}, 20480, v{AK2}",
           f"v_mov_b32 v{AV}, v{AVN}",
           f"s_add_u32 s{sT+2}, s{sT+2}, 1", f"s_cmp_eq_u32 s{sT+2}, 2", f"s_cselect_b32 s{sT+3}, {hx(-3*VCH)}, 0",
           f"s_add_u32 s{sT+3}, s{sT+3}, {VCH}", f"v_add_u32 v{AVN}, s{sT+3}, v{AVN}",
           f"s_cmp_lt_u32 s{sT+2}, 4", "s_cbranch_scc1 LA_loop"]
    two = [as_ins(x) for x in body + upd + body]
    assert len(fix_hazards(fix_waits(two), c[-14:])) == len(two), "attention loop needs extra waits/pads"
    c += [".p2align 6", "LA_loop:"] + body + upd + stamp(6)
    C, D = pv(1, V[1], S[(1,1)])
    e = ["s_waitcnt lgkmcnt(0)", C, D,
         f"s_lshl_b32 s{sT}, s{sQB}, 3", f"s_lshl_b32 s{sT+1}, s{sA}, 1", f"s_add_u32 s{sT}, s{sT}, s{sT+1}",
         f"s_mul_i32 s{sT+8}, s{sT}, 40960", f"s_add_u32 s{sT+8}, s{sT+8}, {hx(WS_O)}",
         f"s_lshl_b32 s{sT+9}, s{sHEAD}, 10", f"s_add_u32 s{sT+9}, s{sT+9}, s{sT+8}",
         f"s_lshr_b32 s{sT}, s{sHEAD}, 1", f"s_lshl_b32 s{sT}, s{sT}, 9", f"s_and_b32 s{sT+1}, s{sHEAD}, 1", f"s_lshl_b32 s{sT+1}, s{sT+1}, 3",
         f"s_add_u32 s{sT+8}, s{sT+8}, s{sT}", f"s_add_u32 s{sT+8}, s{sT+8}, s{sT+1}", f"s_add_u32 s{sT+8}, s{sT+8}, 32768",
         "LA_fin:", f"v_cmp_eq_u32 vcc, 0, v{VH}"]
    for q in range(2): e += [f"v_cndmask_b32 v{T+q}, v{O[q]+8}, v{O[q]+12}, vcc"]
    e += [f"v_add_f32 v{T+2}, v{T}, v{T+1}", f"v_min_f32 v{T+3}, v{T}, v{T+1}", f"v_mov_b32 v{T+4}, 0"]
    for j in range(12): e += [f"v_add_f32 v{T+2}, abs(v{O[0]+j}), v{T+2}", f"v_add_f32 v{T+4}, abs(v{O[1]+j}), v{T+4}"]
    e += [f"v_add_f32 v{T+2}, v{T+2}, v{T+4}",
          f"v_cmp_gt_f32 vcc, 0x7f000000, v{T+2}", f"s_mov_b64 s[{sT+4}:{sT+5}], vcc", f"v_cmp_lt_f32 vcc, 0x35800000, v{T+3}",
          f"s_and_b64 vcc, vcc, s[{sT+4}:{sT+5}]", f"s_cmp_eq_u64 vcc, exec", f"s_cselect_b32 s{sT+3}, 5, s{sT+2}", f"s_cmp_eq_u32 s{sT+3}, 4",
          "s_cbranch_scc1 LA_slow",
          f"v_lshl_add_u32 v{T+2}, v{VH}, 30, v{VL16}"]
    for q in range(2):
        p = 16 + 8 * q
        e += [f"v_rcp_f32 v{T+4}, v{T+q}", f"v_mov_b32 v{T+5}, v{T+4}"]
        e += [pk('mul', O[q]+2*j, O[q]+2*j, T+4) for j in range(6)]
        e += [f"v_cvt_pk_bf16_f32 v{p+j}, v{O[q]+2*j}, v{O[q]+2*j+1}" for j in range(6)]
        e += [f"buffer_store_dwordx4 {vr(p,4)}, v{VL16}, {sr(SWS,4)}, s{sT+9} offen{SC}",
              f"buffer_store_dwordx2 {vr(p+4,2)}, v{T+2}, {sr(SWS,4)}, s{sT+8} offen{SC}"]
        if q == 0: e += [f"s_add_u32 s{sT+8}, s{sT+8}, 40960", f"s_add_u32 s{sT+9}, s{sT+9}, 40960"]
    e += [mark("o")] + wo_loads(0, 2)
    e += f3_addr() + [waitfor("o")] + flag_store(f"s{sT}", t=10) + stamp(7) + item_loads() + ["s_setprio 0", "s_branch L_join"]
    c += fix_hazards(resolve(e), body[-12:] + upd)
    return c + slow_path()

def f3_addr():
    return [f"s_lshl_b32 s{sT}, s{sQB}, 2", f"s_add_u32 s{sT}, s{sT}, s{sA}", f"s_lshl_b32 s{sT}, s{sT}, 5", f"s_add_u32 s{sT}, s{sT}, s{sHEAD}",
            f"s_lshl_b32 s{sT}, s{sT}, 7", f"s_add_u32 s{sT}, s{sT}, {hx(WS_F3)}"]
def f2_addr():
    return [f"s_lshl_b32 s{sT}, s{sRB}, 2", f"s_add_u32 s{sT}, s{sT}, s{sA}", f"s_lshl_b32 s{sT}, s{sT}, 4", f"s_add_u32 s{sT}, s{sT}, s{sCB}",
            f"s_lshl_b32 s{sT}, s{sT}, 7", f"s_add_u32 s{sT}, s{sT}, {hx(WS_F2)}"]
def fr_addr():
    return [f"s_lshl_b32 s{sT}, s{sTASK}, 7", f"s_add_u32 s{sT}, s{sT}, {hx(WS_FR)}"]

def slow_path():
    kb, vb, i = sT + 4, sT + 5, sT + 6
    kf = K[0]; vf = V[0]
    def kload():
        return [f"s_lshr_b32 s{sT}, s{i}, 1", f"s_mul_i32 s{sT}, s{sT}, 2560", f"s_and_b32 s{sT+1}, s{i}, 1", f"s_lshl_b32 s{sT+1}, s{sT+1}, 8",
                f"s_add_u32 s{sT}, s{sT}, s{sT+1}", f"s_add_u32 s{sT}, s{sT}, s{kb}",
                f"buffer_load_dwordx2 {vr(kf,2)}, v{AK0}, {sr(SWS,4)}, s{sT} offen{SC}",
                f"buffer_load_dwordx2 {vr(kf+2,2)}, v{AK0}, {sr(SWS,4)}, s{sT} offen offset:512{SC}",
                f"buffer_load_dword v{kf+4}, v{AK2}, {sr(SWS,4)}, s{sT} offen{SC}"]
    c = ["LA_slow:",
         f"s_mul_i32 s{kb}, s{sHEAD}, {HS_QK}", f"s_add_u32 s{kb}, s{kb}, {hx(WS_K)}",
         f"s_mul_i32 s{vb}, s{sHEAD}, {HS_V}", f"s_add_u32 s{vb}, s{vb}, {hx(WS_V)}",
         f"v_subrev_u32 v{AK0}, 81920, v{AK0}", f"v_subrev_u32 v{AK2}, 81920, v{AK2}",
         f"v_mov_b32 v{Q[0]+5}, 0", f"v_mov_b32 v{Q[1]+5}, 0",
         f"v_mov_b32 v{T}, 0xff800000", f"v_mov_b32 v{T+2}, 0xff800000", f"s_mov_b32 s{i}, 0"]
    l1 = ["LA_s1:"] + kload()
    for q in range(2): l1 += list(qk(S[(q,0)], kf, q))
    for q in range(2): l1 += max16(T + 2*q, S[(q,0)], acc=True)
    l1 += [f"s_add_u32 s{i}, s{i}, 1", f"s_cmp_lt_u32 s{i}, 64", "s_cbranch_scc1 LA_s1"]
    mid = []
    for q in range(2): mid += xhalf_max(T + 2*q) + shift_split(q, T + 2*q)
    mid += [f"v_mov_b32 v{r}, 0" for r in range(O[0], O[0]+32)] + [f"s_mov_b32 s{i}, 0"]
    l2 = ["LA_s2:"] + kload()
    l2 += [f"s_mul_i32 s{sT}, s{i}, 1344", f"s_add_u32 s{sT}, s{sT}, s{vb}",
           f"buffer_load_dwordx4 {vr(vf,4)}, v{VVG}, {sr(SWS,4)}, s{sT} offen{SC}",
           f"buffer_load_dwordx4 {vr(vf+4,4)}, v{VVG}, {sr(SWS,4)}, s{sT} offen offset:672{SC}"]
    for q in range(2): l2 += list(qk(S[(q,0)], kf, q))
    for q in range(2):
        l2 += [f"v_exp_f32 v{S[(q,0)]+j}, v{S[(q,0)]+j}" for j in range(16)]
        l2 += list(pv(q, vf, S[(q,0)]))
    l2 += [f"s_add_u32 s{i}, s{i}, 1", f"s_cmp_lt_u32 s{i}, 64", "s_cbranch_scc1 LA_s2",
           f"s_mov_b32 s{sT+2}, 5", "s_nop 15", "s_branch LA_fin"]
    return fin(c + l1 + mid + l2)

GA = 16; FB = 96; NBUF = opt("NBUF", 5)
def gload(buf, sa, sb):
    f = FB + 24 * buf
    c = [f"buffer_load_dwordx4 {vr(f,4)}, v{VL16}, {sr(SWS,4)}, s{sa} offen{SC}"]
    for j in range(4): c += [f"buffer_load_dwordx4 {vr(f+4+4*j,4)}, v{VL16}, {sr(SWS,4)}, s{sb} offen offset:{1024*j}{SC}"]
    c += [f"buffer_load_dwordx4 {vr(f+20,4)}, v{VL2}, {sr(SWS,4)}, s{sb} offen{SC}",
          f"s_add_u32 s{sa}, s{sa}, 1024", f"s_add_u32 s{sb}, s{sb}, 5120"]
    return c
def gemm(nk, sa, sb, hooks):
    c = []
    for k in range(NBUF - 1): c += gload(k, sa, sb)
    for k in range(nk):
        c += hooks.get(k, [])
        f = FB + 24 * (k % NBUF)
        mm = [f"v_mfma_f32_32x32x16_bf16 {vr(GA+16*j,16)}, {vr(f+4+4*j,4)}, {vr(f,4)}, {'0' if k == 0 else vr(GA+16*j,16)}" for j in range(5)]
        ld = gload((k + NBUF - 1) % NBUF, sa, sb) if k + NBUF - 1 < nk else []
        for j in range(5):
            c += [mm[j]]
            if ld: c += [ld[j]] if j < 4 else ld[4:]
    return c
def slab_addr(a):
    return [f"v_mul_u32_u24 v{a}, {SROW}, v{VTOK}", f"v_lshl_add_u32 v{a}, v{VH}, 4, v{a}",
            f"s_mul_i32 s{sT}, s{sA}, {SLAB}", f"v_add_u32 v{a}, s{sT}, v{a}"]
def slab_tile(a, acc, j): return [f"ds_write_b128 v{a}, {vr(acc+4*q,4)} offset:{128*j+32*q}" for q in range(4)]
def wo_loads(c0, n):
    c = [f"s_mul_i32 s{sT}, s{sCG}, 40", f"s_mul_i32 s{sT+1}, s{sA}, 10", f"s_add_u32 s{sT}, s{sT}, s{sT+1}", f"s_mul_i32 s{sT}, s{sT}, 5120",
         f"s_add_u32 s{sT}, s{sT}, {hx(WS_WOF + 1024*c0)}"]
    for k in range(10):
        c += [f"buffer_load_dwordx4 {vr(WOF+40*j+4*k,4)}, v{VL16}, {sr(SWS,4)}, s{sT} offen offset:{1024*j}{SC}" for j in range(n)]
        if k < 9: c += [f"s_add_u32 s{sT}, s{sT}, 5120"]
    return c
def item_loads():
    t = 5
    c = [f"v_lshrrev_b32 v{t}, 4, v{VL16}", f"s_lshl_b32 s{sT}, s{sW}, 2",
         f"s_mul_i32 s{sT+1}, s{sRTILE}, {32*1280}", f"s_mul_i32 s{sT+2}, s{sCG}, 320", f"s_add_u32 s{sT+1}, s{sT+1}, s{sT+2}"]
    for p in range(3):
        c += [f"v_add_u32 v{t+1}, {64*p}, v{t}"]
        if p == 2: c += [f"v_min_u32 v{t+1}, 159, v{t+1}"]
        c += [f"v_mul_u32_u24 v{t+2}, 1639, v{t+1}", f"v_lshrrev_b32 v{t+2}, 16, v{t+2}",
              f"v_mul_u32_u24 v{t+3}, 40, v{t+2}", f"v_sub_u32 v{t+1}, v{t+1}, v{t+3}", f"v_add_u32 v{t+2}, s{sT}, v{t+2}",
              f"v_mul_u32_u24 v{IA+p}, {SROW}, v{t+2}", f"v_lshl_add_u32 v{IA+p}, v{t+1}, 4, v{IA+p}",
              f"v_lshlrev_b32 v{t+1}, 3, v{t+1}",
              f"v_mul_u32_u24 v{IG+p}, 1280, v{t+2}", f"v_add3_u32 v{IG+p}, v{IG+p}, v{t+1}, s{sT+1}"]
        if p == 2: c += [f"v_lshl_add_u32 v{IG+p}, v{VH}, 30, v{IG+p}"]
        c += [f"buffer_load_dwordx2 {vr(BV+2*p,2)}, v{t+1}, {sr(SB2,4)}, s{sT+2} offen",
              f"buffer_load_dwordx2 {vr(XV+2*p,2)}, v{IG+p}, {sr(SX,4)}, 0 offen"]
    return c
def reduce4():
    c = []
    for p in range(3):
        c += [f"ds_read_b128 {vr(RED+16*p+4*s,4)}, v{IA+p} offset:{SLAB*s}" for s in range(4)]
    for p in range(3):
        b = RED + 16 * p
        c += [pk('add', b+2*i, b+2*i, b+4+2*i) for i in range(2)] + [pk('add', b+8+2*i, b+8+2*i, b+12+2*i) for i in range(2)]
        c += [pk('add', b+2*i, b+2*i, b+8+2*i) for i in range(2)]
    return c
def unpack(d, s):
    return [f"v_lshlrev_b32 v{d}, 16, v{s}", f"v_and_b32 v{d+1}, 0xffff0000, v{s}",
            f"v_lshlrev_b32 v{d+2}, 16, v{s+1}", f"v_and_b32 v{d+3}, 0xffff0000, v{s+1}"]
def rest_kv():
    return kvdma(5, sK, 20480) + kvdma(5, sV, LV + 24576) + kvdma(10, sK, 40960) + kvdma(5, sV, LV + 45056)

def b_phase2():
    sa, sb = sT + 11, sT + 7
    t = 2
    g = [f"v_add_u32 v{VL2}, 4096, v{VL16}",
         f"v_min_u32 v{t}, 880, v{VL16}", f"v_lshlrev_b32 v{t}, 3, v{t}", f"s_lshl_b32 s{sT}, s{sRTILE}, 11", f"v_add_u32 v{t+1}, s{sT}, v{t}",
         f"v_add_u32 v{t}, {hx(WS_FR - WS_F2 - 2048)}, v{t}", f"v_cmp_gt_u32 vcc, 256, v{VL16}", f"v_cndmask_b32 v{t}, v{t}, v{t+1}, vcc",
         f"s_mov_b32 s{sT+3}, {hx(WS_F2)}",
         f"s_lshl_b32 s{sT}, s2, 2", f"s_add_u32 s{sT}, s{sT}, s{sA}", f"s_cmp_eq_u32 s{sT}, 0", "s_cbranch_scc0 LB_nep"]
    g += opaque([f"s_mov_b32 s{sT}, {hx(WS_EP)}"] + flag_store(f"s{sT}", t=10)) + ["LB_nep:", "s_waitcnt vmcnt(0)", "s_barrier",
         poll_load(t+2, t, f"s{sT+3}")] + poll_check("LB_p2", t+2, t, f"s{sT+3}") + stamp(6)
    g += [f"s_mul_i32 s{sa}, s{sRTILE}, 108", f"s_mul_i32 s{sT}, s{sA}, 27", f"s_add_u32 s{sa}, s{sa}, s{sT}", f"s_lshl_b32 s{sa}, s{sa}, 10",
          f"s_add_u32 s{sa}, s{sa}, {hx(WS_H)}",
          f"s_mul_i32 s{sb}, s{sCG}, 108", f"s_add_u32 s{sb}, s{sb}, s{sT}", f"s_mul_i32 s{sb}, s{sb}, 5120", f"s_add_u32 s{sb}, s{sb}, {hx(WS_W2F)}"]
    v3 = [f"s_sub_u32 s{sV}, s{sV}, 1024"] + kvdma(5, sV, LV)
    v3 += [f"s_cmp_eq_u32 s{sA}, 0", f"s_cselect_b32 s{sT}, 0, {MISC - LV - 20480}", f"s_add_u32 s{sT}, s{sT}, s{sT+8}", f"s_add_u32 m0, s{sT}, {LV + 20480}",
           f"buffer_load_dwordx4 v{VL16}, {sr(SWS,4)}, s{sV} offen{SC} lds", mark("v3")]
    h2, h3 = [int(x) for x in opt("GH", "9,19").split(",")]
    g += gemm(27, sa, sb, {h2: ["s_barrier"] + v3, h3: [waitfor("v3"), "s_barrier"]})
    g += wo_loads(2, 3) + item_loads() + slab_addr(t) + stamp(7) + ["s_barrier"]
    for j in range(5): g += slab_tile(t, GA + 16*j, j)
    g += ["s_waitcnt lgkmcnt(0)"]
    return fin(g)

def p3_gemm(c0, n):
    c = []
    for j in range(n):
        for k in range(10):
            c += [f"v_mfma_f32_32x32x16_bf16 {vr(RED+16*j,16)}, {vr(WOF+40*j+4*k,4)}, {vr(OF[k],4)}, {'0' if k == 0 else vr(RED+16*j,16)}"]
            if j and k == 9 - 0 and False: pass
            if j and 6 <= k: c += [slab_tile(2, RED + 16*(j-1), c0 + j - 1)[k - 6]]
    c += slab_tile(2, RED + 16*(n-1), c0 + n - 1) + ["s_waitcnt lgkmcnt(0)"]
    return c

def phase3():
    r = ["L_join:", "s_barrier"] + reduce4() + ["s_waitcnt vmcnt(1)"]
    for p in range(3):
        b = RED + 16 * p; g = GR + 4 * p
        r += unpack(b + 4, BV + 2*p)
        r += [f"v_add_f32 v{b+i}, v{b+i}, v{b+4+i}" for i in range(4)]
        r += [f"v_mul_f32 v{b+4+i}, {fl(-LOG2E)}, v{b+i}" for i in range(4)]
        r += [f"v_exp_f32 v{b+4+i}, v{b+4+i}" for i in range(4)]
        r += [f"v_add_f32 v{b+4+i}, 1.0, v{b+4+i}" for i in range(4)]
        r += [f"v_rcp_f32 v{b+4+i}, v{b+4+i}" for i in range(4)]
        r += [f"v_mul_f32 v{g+i}, v{b+i}, v{b+4+i}" for i in range(4)]
    r += slab_addr(2)
    r += [f"s_mul_i32 s{sT+4}, s{sRTILE}, 40", f"s_mul_i32 s{sT+1}, s{sA}, 10", f"s_add_u32 s{sT+4}, s{sT+4}, s{sT+1}", f"s_lshl_b32 s{sT+4}, s{sT+4}, 10",
          f"s_add_u32 s{sT+4}, s{sT+4}, {hx(WS_O)}", f"s_add_u32 s{sT+5}, s{sT+4}, 4096", f"s_add_u32 s{sT+6}, s{sT+4}, 8192",
          f"s_cmp_eq_u32 s{sW}, 4", "s_cbranch_scc0 L_nopoll"]
    r += opaque(flat([f"v_lshlrev_b32 v3, 7, v{VTOK}", f"s_lshr_b32 s{sT+3}, s{sRTILE}, 1", f"s_lshl_b32 s{sT+3}, s{sT+3}, 12", f"s_add_u32 s{sT+3}, s{sT+3}, {hx(WS_F3)}",
          poll_load(4, 3, f"s{sT+3}"), "s_waitcnt vmcnt(0)"] + poll_check("L_p3", 4, 3, f"s{sT+3}")))
    r += ["L_nopoll:", "s_barrier"] + stamp(8)
    ld = [f"buffer_load_dwordx4 {vr(OF[k],4)}, v{VL16}, {sr(SWS,4)}, s{sT+4+k//4} offen offset:{1024*(k%4)}{SC}" for k in range(10)]
    r = fin(r)
    r += [f"s_cmp_lt_u32 s{sW}, 4", "s_cbranch_scc1 L_p3a"]
    r += fin(ld + p3_gemm(2, 3)) + ["s_branch L_p3j", "L_p3a:"] + fin(ld + p3_gemm(0, 2)) + ["L_p3j:"]
    z = ["s_barrier"] + reduce4()
    for p in range(3):
        b = RED + 16 * p
        z += unpack(b + 4, XV + 2*p)
        z += [pk('fma', b+2*i, b+2*i, GR+4*p+2*i, b+4+2*i) for i in range(2)]
        z += [f"v_cvt_pk_bf16_f32 v{b+12}, v{b}, v{b+1}", f"v_cvt_pk_bf16_f32 v{b+13}, v{b+2}, v{b+3}",
              f"buffer_store_dwordx2 {vr(b+12,2)}, v{IG+p}, {sr(SOUT,4)}, 0 offen"]
    return r + fin(z)

def kernel(name):
    c = stamp(0) + stamp(10, True) + tr("r0", 11) + prologue()
    c += [f"s_cmp_ge_u32 s{sW}, 4", "s_cbranch_scc1 LB"]
    a = ["s_setprio 2"] + a_prefetch1() + a_setup() + stamp(1) + ["s_waitcnt lgkmcnt(0)", f"s_add_u32 s{sN}, s{sN}, 1", f"s_mov_b32 s{sR}, 1",
         f"s_sub_u32 s{sT}, s{sCB}, 10", f"s_cmp_lt_u32 s{sT}, 5", "s_cbranch_scc0 LA_n"]
    c += fix_hazards(a)
    c += a_round0('V') + stamp(3) + a_body('V') + [f"s_mov_b32 s{sR}, 2", "s_branch LA_bn"]
    c += ["LA_n:"] + a_round0('N') + stamp(3) + ["LA_bn:"] + a_body('N')
    c += [f"s_add_u32 s{sR}, s{sR}, 1", f"s_cmp_lt_u32 s{sR}, s{sNR}", "s_cbranch_scc1 LA_bn"] + stamp(4)
    c += fix_hazards([a_hand(1, q) for q in range(8)] + ["s_waitcnt lgkmcnt(0)", "s_barrier"], a_pre())
    c += [f"s_cmp_eq_u32 s{sNR}, 4", "s_cbranch_scc1 LA_att", f"s_cmp_ge_u32 s{sTASK}, 40", "s_cbranch_scc1 LA_rdone"]
    c += a_relayout() + ["s_barrier", "LA_att:"] + attn()
    c += ["LB:"] + b_start() + stamp(3)
    c += [f"s_mov_b32 s{sR}, 1", f"s_add_u32 s{sBOFF}, s{sBOFF}, 128", "LB_disp:"] + fin(b_head(False))
    c += [f"s_cmp_eq_u32 s{sR}, 1", "s_cbranch_scc0 LB_nst"] + fin(R0_LEFT) + ["LB_nst:",
          f"s_cmp_eq_u32 s{sCB}, 15", "s_cbranch_scc1 LB_h", f"s_cmp_lt_u32 s{sCB}, 10", "s_cbranch_scc1 LB_qk"]
    c += fin(b_body('V')[0]) + ["s_branch LB_nx", "LB_h:"] + fin(b_body('H')[0]) + ["s_branch LB_nx", "LB_qk:"] + fin(b_body('QK')[0])
    c += ["LB_nx:", f"s_cmp_eq_u32 s{sR}, 2", "s_cbranch_scc1 LB_r3",
          f"s_mov_b32 s{sR}, 2", f"s_cmp_eq_u32 s{sCB}, 15", f"s_cselect_b32 s{sT+1}, 2, 0", f"s_add_u32 s{sT+1}, s{sT+1}, s{sHU}",
          f"s_lshl_b32 s{sBOFF}, s{sT+1}, 7", f"s_mov_b32 s{SB1+2}, 3456", f"s_add_u32 s{sCT}, s{sCT}, 2", "s_branch LB_disp",
          "LB_r3:", f"s_lshr_b32 s{sCT}, s{sBOFF}, 6", f"s_cmp_eq_u32 s{sNR}, 3", "s_cbranch_scc1 LB_t3",
          f"s_add_u32 s{sBOFF}, s{sBOFF}, 128"]
    h3, left = b_body('H3')
    c += fin(b_head(True) + h3 + stamp(4) + ["s_waitcnt lgkmcnt(0)", "s_barrier"] + b_take(E2) +
             [waitfor("kv0", " lgkmcnt(0)"), "s_barrier"] + stamp(5) + ["s_setprio 3"] + rest_kv() + left + [f"s_add_u32 s{sCT}, s{sCT}, 2", "s_branch LB_epi"])
    c += ["LB_t3:"] + fin(stamp(4) + ["s_waitcnt vmcnt(1) lgkmcnt(0)", "s_barrier"] + b_take(E2) + ["s_waitcnt lgkmcnt(0)"])
    c += ["LB_epi:"] + fin(b_ext('N', E2) + ["s_setprio 3"] + epi_h(0, E2) + epi_h(1, E2) + f2_addr() + ["s_waitcnt vmcnt(0)"] + flag_store(f"s{sT}"))
    c += [f"s_cmp_eq_u32 s{sNR}, 4", "s_cbranch_scc1 LB_g"]
    c += fin(["s_barrier", f"s_lshl_b32 s{sT}, s{sA}, 6", f"s_add_u32 s{sT}, s{sT}, s{sTASK}", f"s_cmp_lt_u32 s{sT}, 40", "s_cbranch_scc0 LB_nfr"]
             + opaque(fr_addr() + flag_store(f"s{sT}")) + ["LB_nfr:"] + f1_load() + b_first_kv("LB_p1") + ["s_waitcnt vmcnt(0)", "s_barrier"] + stamp(5) + rest_kv())
    c += ["LB_g:", "s_setprio 0"] + b_phase2()
    c += phase3()
    c += ["s_waitcnt vmcnt(0)"] * bool(STAMP) + stamp(9) + stamp(11, True) + stamp_flush(SWS, sW) + ["L_end:", "s_endpgm"]
    return kernel_head(name) + render(c)

if __name__ == "__main__":
    import sys
    name = "recurrent_scan__mha_block__mixer_channel_mlp__prompt_kernel"
    HEAD = open("recurrent_scan__mha_block__mixer_channel_mlp__prompt.s.ref").read().split("; Override")[0]
    s = HEAD + "; @launch grid=(256,1,1) block=(512,1,1) lds=163840\n" + '.amdgcn_target "amdgcn-amd-amdhsa--gfx950"\n'
    s += kernel(name) + kernel_desc(name, 256, 102)
    open(sys.argv[1], "w").write(s)
```

```python
from asmlib import *
import struct
def f2u(x): return struct.unpack('<I', struct.pack('<f', x))[0]
def hx(x): return f"0x{x & 0xffffffff:08x}"
def fl(x): return hx(f2u(x))

WS_Q = 0
WS_K = 0x280000
WS_V = 0x500000
WS_H = 0x800000
WS_W2F = 0x1000000
WS_WOF = 0x1280000
WS_O = 0x1400000
WS_G = 0x1700000
WS_SIZE = 0x2000000
HS_QK = 81920
HS_V = 86016
OOB = 0x40000000

LOG2E = 1.4426950408889634
QSCALE = 20 ** -0.5 * LOG2E
GC1 = -2 * 0.7978845608028654 * LOG2E
GC2 = GC1 * 0.044715

def srd(d, lo, size):
    return [f"s_mov_b32 s{d}, s{lo}", f"s_mov_b32 s{d+1}, s{lo+1}", f"s_mov_b32 s{d+2}, {hx(size)}", f"s_mov_b32 s{d+3}, 0x00020000"]

def kernel_desc(name, vgpr, sgpr=96):
    return f"""
.section .rodata,"a"
.p2align 6
.amdhsa_kernel {name}
  .amdhsa_next_free_vgpr {vgpr}
  .amdhsa_next_free_sgpr {sgpr}
  .amdhsa_accum_offset {(vgpr + 3) // 4 * 4}
  .amdhsa_group_segment_fixed_size 0
  .amdhsa_kernarg_size 88
  .amdhsa_user_sgpr_count 2
  .amdhsa_user_sgpr_kernarg_segment_ptr 1
  .amdhsa_system_sgpr_workgroup_id_x 1
.end_amdhsa_kernel
"""
def kernel_head(name):
    return f""".text
.globl {name}
.p2align 8
.type {name},@function
{name}:
"""

import os
STAMP = int(os.environ.get("STAMP", "0"))
class Stamp(Ins):
    pass
TRACE = os.environ.get("TRACE", "")
def tr(kind, j):
    if TRACE != kind: return []
    i = Ins("s_nop 0"); i.text = f"s_memtime s[{72+2*j}:{73+2*j}]"
    r = os.environ.get("TRR")
    if r and kind == "body":
        global _trn
        _trn += 1
        return [f"s_cmp_eq_u32 s44, {r}", f"s_cbranch_scc0 L_tr{_trn}", i, f"L_tr{_trn}:"]
    return [i]
_trn = 0
def stamp(j, clk=False):
    if not STAMP or TRACE: return []
    i = Ins("s_nop 0"); i.text = f"{'s_memtime' if (clk != (STAMP == 2)) else 's_memrealtime'} s[{72+2*j}:{73+2*j}]"
    return [i]
def stamp_flush(sws, swave, n=12, base=0):
    if not STAMP: return []
    d = os.environ.get("DIAG")
    if d is not None:
        j = int(d)
        return ["s_waitcnt lgkmcnt(0)", f"s_sub_u32 s70, s{72+2*j}, s72", "s_lshl_b32 s70, s70, 2", "s_add_u32 s70, s70, 10000",
                "L_diag:", "s_sleep 1", "s_memrealtime s[94:95]", "s_waitcnt lgkmcnt(0)", "s_sub_u32 s71, s94, s72", "s_cmp_lt_u32 s71, s70", "s_cbranch_scc1 L_diag"]
    c = ["s_waitcnt lgkmcnt(0)", f"s_lshl_b32 s70, s2, 3", f"s_add_u32 s70, s70, s{swave}", "s_lshl_b32 s70, s70, 7", f"s_add_u32 s70, s70, {0x1f00000 + base}"]
    for j in range(n):
        c += [f"v_mov_b32 v0, s{72+2*j}", f"v_mov_b32 v1, s{73+2*j}", f"buffer_store_dwordx2 v[0:1], off, s[{sws}:{sws+3}], s70 offset:{8*j}", "s_nop 1"]
    return c

def opt(name, default=0):
    v = os.environ.get(name)
    if v is None: return default
    return type(default)(v)
```

```python
from common import *

sW, sA, sN, sRB, sCB = 3, 4, 5, 6, 7
SX, SWD, SWS, SB1, SB2, SOUT = 8, 12, 16, 20, 28, 32
sWQ, sCSB, sDST = 24, 26, 27
sW1, sW2, sWO = 36, 38, 40
sWOFF, sST, sR, sNR, sCT, sHU, sQKROW, sVOFF, sHOFF, sXOFF, sM4, sTASK = range(42, 54)
sHEAD, sQB, sRTILE, sCG = 54, 55, 56, 57
sT = 58
U = 16384
MISC = 9 * U
XBUF = [3*U, 7*U, 0, 3*U, 7*U]; WSL0 = [5, 6, 2, 5, 6]
L_PART = MISC; L_RS = MISC + 2048; L_CNT = MISC + 3072; L_ST = MISC + 4096; L_Q = MISC + 4096 + 0
VCH = 21504; KCH = 20480
LK = 43520; KPOS = [LK + 2*KCH, LK + 3*KCH, LK, LK + KCH]; VPOS = [LK + 4*KCH, 0, VCH, LK + 4*KCH]
SLB = [0, LK, LK + 2*KCH, LK + 3*KCH]
WS_F2 = 0x1c00000
WS_FR = 0x1c40000
WS_F3 = 0x1c80000
WS_F1 = 0x1cc0000
WS_EP = 0x1cf0000
SC = " sc1"
SPIN = 100000

class Tag(Ins):
    def __init__(self, name, kind):
        Ins.__init__(self, ""); self.name = name; self.tk = kind
def mark(name): return Tag(name, 'mark')
def waitfor(name, extra="", older=0):
    t = Tag(name, 'wait'); t.extra = extra; t.older = older; return t
def resolve(code):
    out = []; n = 0; at = {}
    for x in code:
        x = as_ins(x)
        if isinstance(x, Tag):
            if x.tk == 'mark': at[x.name] = n
            else:
                k = n - at[x.name] if x.name in at else n + x.older
                k = min(k, 63)
                out.append(Ins(f"s_waitcnt vmcnt({k}){x.extra}"))
            continue
        if x.kind == 'vmem' and not x.opaque: n += 1
        out.append(x)
    return out
def flat(c):
    o = []
    for y in c: o += flat(y) if isinstance(y, (list, tuple)) else [y]
    return o
def cost(x):
    t = 0
    for y in flat([x]):
        y = as_ins(y)
        t += {'valu': 13 if (getattr(y, 'trans', False) or 'permlane' in y.mn) else 7, 'salu': 5, 'ds': 8, 'vmem': 14, 'mfma': 30, 'wait': 5}.get(y.kind, 0)
        if y.kind == 'nop': t += 4 * y.n
    return t
DSP = opt("DSP", 90); LSP = opt("LSP", 20)
def sched(main, dmas=(), side=(), dsp=None):
    main = list(main); side = list(side); dsp = dsp or DSP
    d = []; cur = []
    for x in dmas:
        cur.append(x)
        if isinstance(x, Tag): d[-1] += cur; cur = []
        elif not isinstance(x, list) and as_ins(x).kind == 'vmem': d.append(cur); cur = []
    if cur: d[-1] += cur
    out = []; t = 0; nd = 0; nl = 0
    while main or d or side:
        if side and t >= nl: x = side.pop(0); nl = t + LSP
        elif d and (t >= nd or not (main or side)): x = d.pop(0); nd = t + dsp
        elif main: x = main.pop(0)
        else: x = f"s_nop {min(15, max(0, (nl - t + 3) // 4 - 1))}"
        out.append(x); t += cost(x)
    return out
def fin(c, pend_lg=(), pre=()):
    return fix_hazards(fix_waits(resolve(flat(c)), pend_lg=pend_lg), pre)
def pk(op, d, *src): return f"v_pk_{op}_f32 {vr(d,2)}, " + ", ".join(s if isinstance(s, str) else vr(s,2) for s in src)

X = 96; ACC = [64, 80]; WF = 32
VT = [2, 3]; VT4 = [4, 5]; EXTX = 6; RSA = 8; RS2 = 9; GC = 10; CSI = 11; VCA = 12
VL16, VH, VTOK = 13, 14, 15
CSA = 16; CSD = [20, 24]; VW = 28
TB = 32; CF = 48
VBIAS = [0, 1]
LA = 6

def c_read(n, r0=False):
    g, k = n & 1, (n % 80) >> 1; f = WF + 4 * (n % 8)
    s, l = divmod(k, 8)
    if r0: a, o = (VT[g], (WSL0[s] - 5) * U) if WSL0[s] >= 5 else (EXTX + g, 0)
    else: a, o = (VT4[g], 0) if s == 4 else (VT[g], s * U)
    o += l * 2048
    return [f"ds_read_b64_tr_b16 {vr(f,2)}, v{a} offset:{o}", f"ds_read_b64_tr_b16 {vr(f+2,2)}, v{a} offset:{o+512}"]
def c_mfma(n, orient):
    g, k = n & 1, n >> 1; f = WF + 4 * (n % 8); x = X + 4 * k
    a, b = (vr(f,4), vr(x,4)) if orient == 'N' else (vr(x,4), vr(f,4))
    i = Ins(f"v_mfma_f32_32x32x16_bf16 {vr(ACC[g],16)}, {a}, {b}, {'0' if k == 0 else vr(ACC[g],16)}")
    if n % 2 == 0: i.r = i.r | vset(WF + 4 * ((n + 1) % 8), 4)
    return i
def c_first(): return flat([c_read(n) for n in range(LA)])
def c_end(n): return ["s_waitcnt lgkmcnt(0)", "s_setprio 3"] + tr("body", 4) + ["s_barrier"] + tr("body", 5) if n == 76 else []
def c_body(orient):
    c = tr("body", 0) + c_first() + ["s_setprio 1"]
    for n in range(80):
        if n == 40: c += ["s_waitcnt vmcnt(0)"] + tr("body", 2) + ["s_barrier"] + tr("body", 3)
        c += c_end(n) + [c_mfma(n, orient)]
        if n + LA < 80: c += c_read(n + LA)
    return fin(c + tr("body", 6))
C_PRE = [c_mfma(78, 'N'), c_mfma(79, 'N')]

AD = 20; AONE = RSA; VXA = RS2
def xreads(s, t):
    xr = [[f"v_add_u32 v{t}, {XBUF[s]}, v{VXA if t == VCA else TB+4}", f"ds_read_b128 {vr(X+32*s,4)}, v{t}"]]
    for i in range(1, 8): xr.append([f"v_xor_b32 v{t}, {32*(i ^ (i-1))}, v{t}", f"ds_read_b128 {vr(X+32*s+4*i,4)}, v{t}"])
    return xr
def a_round0(orient):
    R = lambda n: c_read(n, True)
    xr = xreads(0, VCA)
    c = tr("r0", 0) + ["s_barrier"] + tr("r0", 1) + stamp(2) + xr[0] + R(0) + R(1) + xr[1:3] + R(2) + R(3) + xr[3:]
    for n in range(80):
        s, l = divmod(n, 16)
        if l == (4 if s == 0 else 0):
            for i in range(32):
                x = X + 32 * s + i
                c += [f"v_dot2c_f32_bf16 v{AD + (i & 3)}, v{x}, v{AONE}", f"v_dot2c_f32_bf16 v{AD + 4 + (i & 3)}, v{x}, v{x}"]
        if n == 76: c += ["s_waitcnt lgkmcnt(0)", "s_setprio 3", "s_barrier"]
        c += [c_mfma(n, orient)]
        if l == 0: c += R(n + 4) + R(n + 5)
        if l < 10: c += R(n + 6)
        if s < 4:
            if l == 11:
                xr = xreads(s + 1, VCA)
                c += ["s_waitcnt lgkmcnt(0)"] + tr("r0", 2*s+2) + ["s_barrier"] + tr("r0", 2*s+3)
            if l >= 12: c += R(n + 4) + xr[2*(l-12)] + xr[2*(l-12)+1]
        if n == 70:
            c += [f"v_add_f32 v{AD}, v{AD}, v{AD+1}", f"v_add_f32 v{AD+2}, v{AD+2}, v{AD+3}", f"v_add_f32 v{AD+4}, v{AD+4}, v{AD+5}", f"v_add_f32 v{AD+6}, v{AD+6}, v{AD+7}"]
        if n == 71: c += [f"v_add_f32 v{EXTX}, v{AD}, v{AD+2}", f"v_add_f32 v{EXTX+1}, v{AD+4}, v{AD+6}"]
        if 72 <= n < 76: c += [f"v_mov_b32 v{CSD[0]+2*(n-72)}, 0", f"v_mov_b32 v{CSD[0]+2*(n-72)+1}, 0"]
    return fin(c + tr("r0", 10))

def wdma(st, unit=None):
    if unit is not None: c = [f"s_add_u32 m0, s{sM4}, {hx((unit-4)*U)}"]
    elif st == 4: c = [f"s_mov_b32 m0, s{sM4}"]
    else: c = [f"s_add_u32 m0, s{sDST}, {st*U}"]
    c += [f"s_mul_i32 s{sT}, s{sST}, {st}", f"s_add_u32 s{sT}, s{sT}, s{sWOFF}"]
    c += [f"buffer_load_dwordx4 v{VW+e}, {sr(SWD,4)}, s{sT} offen offset:{1024*e} lds" for e in range(4)]
    return c
VX = TB
def xdma(stage):
    c = [f"s_lshl_b32 s{sT}, s{sA}, 13", f"s_add_u32 m0, s{sT}, {XBUF[stage]}"]
    c += [f"buffer_load_dwordx4 v{VX+q}, {sr(SX,4)}, s{sXOFF} offen offset:{1024*q} lds" for q in range(4)]
    c += [f"s_add_u32 m0, m0, 4096", f"s_add_u32 s{sT}, s{sXOFF}, 20480"]
    c += [f"buffer_load_dwordx4 v{VX+q}, {sr(SX,4)}, s{sT} offen offset:{1024*q} lds" for q in range(4)]
    c += [f"s_add_u32 s{sXOFF}, s{sXOFF}, 256"]
    return c
def set_w():
    a, b = sT + 5, sT + 6
    return [f"s_lshl_b32 s{sST}, s{a}, 7", f"s_mul_i32 s{sWOFF}, s{sA}, s{a}", f"s_lshl_b32 s{sWOFF}, s{sWOFF}, 5", f"s_add_u32 s{sWOFF}, s{sWOFF}, s{b}",
            f"v_lshrrev_b32 v{VW+1}, 7, v{VL16}", f"v_mul_u32_u24 v{VW}, s{a}, v{VW+1}",
            f"v_lshrrev_b32 v{VW+1}, 2, v{VL16}", f"v_xor_b32 v{VW+1}, v{VW+1}, v{VL16}",
            f"v_and_b32 v{VW+1}, 0x40, v{VW+1}", f"v_and_b32 v{VW+2}, 0x30, v{VL16}", f"v_add3_u32 v{VW}, v{VW}, v{VW+1}, v{VW+2}",
            f"s_lshl_b32 s{a}, s{a}, 3", f"s_sub_u32 s{a}, s{a}, 1024",
            f"v_add_u32 v{VW+1}, s{a}, v{VW}", f"v_add_u32 v{VW+2}, s{a}, v{VW+1}", f"v_add_u32 v{VW+3}, s{a}, v{VW+2}"]
def aim(R):
    a, b = sT + 5, sT + 6
    if R < 2:
        return [f"s_lshl_b32 s{b}, s{sCB}, 8", f"s_cmp_eq_u32 s{sCB}, 15", f"s_cselect_b32 s{b}, {24*128}, s{b}",
                f"s_cselect_b32 s{SWD}, s{sW1}, s{sWQ}", f"s_cselect_b32 s{SWD+1}, s{sW1+1}, s{sWQ+1}",
                f"s_cselect_b32 s{a}, 0, 384", f"s_add_u32 s{a}, s{a}, 3456", f"s_mul_i32 s{SWD+2}, s{a}, 640"] + [f"s_add_u32 s{b}, s{b}, 128"] * R + set_w()
    c = [f"s_mov_b32 s{SWD}, s{sW1}", f"s_mov_b32 s{SWD+1}, s{sW1+1}", f"s_mov_b32 s{SWD+2}, {640*3456}", f"s_movk_i32 s{a}, 3456",
         f"s_lshl_b32 s{b}, s{sHU}, 7"] + [f"s_add_u32 s{b}, s{b}, 128"] * (R - 2)
    return c + set_w()
def aim_next3(lab):
    a, b = sT + 5, sT + 6
    c = [f"s_cmp_eq_u32 s{sNR}, 3", f"s_cbranch_scc1 {lab}_r", f"s_add_u32 s{sWOFF}, s{sWOFF}, 128", f"s_branch {lab}_d", f"{lab}_r:",
         f"s_mul_i32 s{a}, s{sTASK}, 6554", f"s_lshr_b32 s{a}, s{a}, 16", f"s_mul_i32 s{b}, s{a}, 10", f"s_sub_u32 s{b}, s{sTASK}, s{b}", f"s_lshl_b32 s{b}, s{b}, 7",
         f"s_cmp_lt_u32 s{a}, 3", f"s_cselect_b32 s{SWD}, s{sW2}, s{sWO}", f"s_cselect_b32 s{SWD+1}, s{sW2+1}, s{sWO+1}",
         f"s_cselect_b32 s{SWD+2}, {1088*1280}, 0", f"s_cselect_b32 s{a}, s{a}, 0", f"s_add_u32 s{SWD+2}, s{SWD+2}, {640*1280}",
         f"s_mul_i32 s{a}, s{a}, {640*1280}", f"s_add_u32 s{b}, s{b}, s{a}",
         f"s_cmp_lt_u32 s{sTASK}, 40", f"s_cselect_b32 s{SWD+2}, s{SWD+2}, 0", f"s_movk_i32 s{a}, 1280"] + set_w() + [f"{lab}_d:"]
    return opaque(c)

def cs_stage(off_sgpr, off):
    c = []
    for g in range(2):
        rd = [f"ds_read_b64_tr_b16 {vr(CF+8*g+2*j,2)}, v{VCA} offset:{off + (j>>1)*2048 + (j&1)*512}" for j in range(4)]
        c += [[f"v_add_u32 v{VCA}, s{off_sgpr}, v{VT4[g]}", rd[0]]] + rd[1:]
    return c
def csm(): return [[f"v_smfmac_f32_16x16x64_bf16 {vr(CSD[g],4)}, {vr(CSA,4)}, {vr(CF+8*g,8)}, v{CSI}" for g in range(2)]]
GAP = [[], [], [], []]
def bias_ld(R):
    t = VCA
    c = [f"v_lshlrev_b32 v{t}, 1, v{VTOK}", f"v_xor_b32 v{VBIAS[0]}, 1, v{VH}", f"v_add_u32 v{VBIAS[0]}, s{sA}, v{VBIAS[0]}", f"v_lshl_add_u32 v{t}, v{VBIAS[0]}, 20, v{t}"]
    if R < 2: c += [f"s_cmp_eq_u32 s{sCB}, 15", f"s_cselect_b32 s{SB1+2}, 3456, 0", f"s_movk_i32 s{sT}, {(24+R)*128}"]
    else: c += [f"s_movk_i32 s{SB1+2}, 3456", f"s_lshl_b32 s{sT}, s{sHU}, 7"] + [f"s_add_u32 s{sT}, s{sT}, 128"] * (R - 2)
    return c + [f"buffer_load_short_d16_hi v{VBIAS[g]}, v{t}, {sr(SB1,4)}, s{sT} offen offset:{64*g}" for g in range(2)]
def partw(R):
    c = [f"s_lshl_b32 s{sT}, s{sA}, 2", f"s_add_u32 s{sT}, s{sT}, {L_PART}", f"v_add_u32 v{VCA}, s{sT}, v{VL16}"]
    for g in range(2):
        c += [f"v_add_f32 v{CSD[g]}, v{CSD[g]}, v{CSD[g]+1}", f"v_add_f32 v{CSD[g]}, v{CSD[g]}, v{VBIAS[g]}"]
    c += [f"ds_write2st64_b32 v{VCA}, v{CSD[0]}, v{CSD[1]} offset0:0 offset1:4"]
    for g in range(2): c += [f"v_mov_b32 v{CSD[g]}, 0", f"v_mov_b32 v{CSD[g]+1}, 0"]
    return c
def ext(orient):
    c = [f"v_add_u32 v{VCA}, {L_PART}, v{VL16}"] + [f"ds_read_b128 {vr(TB+4*g,4)}, v{VCA} offset:{1024*g}" for g in range(2)]
    v = []
    for g in range(2):
        t = TB + 4 * g
        v += [f"v_add_f32 v{t}, v{t}, v{t+1}", f"v_add_f32 v{t+2}, v{t+2}, v{t+3}", f"v_add_f32 v{t}, v{t}, v{t+2}",
              f"v_cvt_pk_bf16_f32 v{t+3}, v{t}, 0", f"v_lshlrev_b32 v{t+1}, 16, v{t+3}", f"v_sub_f32 v{t+1}, v{t}, v{t+1}",
              f"v_cvt_pk_bf16_f32 v{t+2}, v{t}, v{t+1}"]
    for g in range(2):
        t = TB + 4 * g
        a, b = (vr(t+2,2), vr(EXTX,2)) if orient == 'N' else (vr(EXTX,2), vr(t+2,2))
        v += [f"v_mfma_f32_32x32x8_bf16 {vr(ACC[g],16)}, {a}, {b}, {vr(ACC[g],16)}"]
    return c, v

def epi_qk(g):
    c = []; q = TB; b = TB + 1
    if g == 0:
        c += [f"v_bfe_u32 v{q}, v{VL16}, 8, 1", f"v_lshl_add_u32 v{q}, v{q}, 1, v{VH}", f"v_lshl_add_u32 v{q}, s{sCT}, 3, v{q}",
              f"v_and_b32 v{b}, 0xf0, v{VL16}", f"v_lshl_add_u32 v{b}, v{q}, 9, v{b}", f"v_mul_u32_u24 v{q}, 13108, v{q}"]
    for p in range(2):
        a = ACC[g] + 8 * p; o = TB + 8 + 4 * p; t = TB + 2 + p
        c += [f"v_lshrrev_b32 v{t}, 16, v{q}", f"v_mul_u32_u24 v{t}, {HS_QK - 2560}, v{t}", f"v_add_u32 v{t}, v{t}, v{b}"]
        if 2*g + p < 3: c += [f"v_add_u32 v{q}, {4*13108}, v{q}"]
        if 2*g + p == 1: c += [f"v_add_u32 v{b}, 4096, v{b}"]
        c += [f"v_mul_f32 v{a+i}, v{RSA}, v{a+i}" for i in range(8)]
        c += [f"v_cvt_pk_bf16_f32 v{o+i}, v{a+2*i}, v{a+2*i+1}" for i in (0, 2, 1, 3)]
        c += [f"v_permlane16_swap_b32 v{o}, v{o+2}", f"v_permlane16_swap_b32 v{o+1}, v{o+3}",
              f"buffer_store_dwordx4 {vr(o,4)}, v{t}, {sr(SWS,4)}, s{sQKROW} offen offset:{2048*p}{SC}"]
    return c
def v_addr(ad, a2, first_col):
    return [f"v_mul_u32_u24 v{ad}, 3277, v{a2}", f"v_lshrrev_b32 v{ad}, 16, v{ad}",
            f"v_mul_u32_u24 v{ad}, {HS_V - 320}, v{ad}", f"v_lshl_add_u32 v{ad}, v{a2}, 4, v{ad}",
            f"v_mul_u32_u24 v{a2}, 336, v{VH}", f"v_add_u32 v{ad}, v{ad}, v{a2}"]
def epi_v(g):
    e = ACC[g]; ad = TB + 12; a2 = TB + 13; ra = TB + 14; r = TB; p = TB + 8
    c = [[f"s_lshl_b32 s{sT+4}, s{sA}, 7", f"s_add_u32 s{sT+4}, s{sT+4}, {L_RS}", f"v_lshl_add_u32 v{ra}, v{VH}, 4, s{sT+4}"]]
    for j in range(2):
        c += [f"ds_read_b128 {vr(r+4*q,4)}, v{ra} offset:{64*j+32*q}" for q in range(2)]
        if j == 0:
            c += [[f"s_lshl_b32 s{sT+4}, s{sCT}, 5", f"s_sub_u32 s{sT+4}, s{sT+4}, {1280 - 32*g}", f"v_add_u32 v{a2}, s{sT+4}, v{VTOK}"]] + v_addr(ad, a2, 0)
        c += [f"v_mul_f32 v{e+8*j+i}, v{r+i}, v{e+8*j+i}" for i in range(8)]
        c += [f"v_cvt_pk_bf16_f32 v{p+i}, v{e+8*j+2*i}, v{e+8*j+2*i+1}" for i in range(4)]
        c += [f"buffer_store_dwordx4 {vr(p,4)}, v{ad}, {sr(SWS,4)}, s{sVOFF} offen offset:{672*j}{SC}"]
    return c
def epi_h(g):
    c = []
    for hf in range(2):
        a = ACC[g] + 8 * hf; t = TB; p = TB + 8 + 4 * hf
        R8 = range(8)
        c += [f"v_mul_f32 v{a+i}, v{RS2}, v{a+i}" for i in R8]
        c += [f"v_mul_f32 v{t+i}, v{a+i}, v{a+i}" for i in R8]
        c += [f"v_fmaak_f32 v{t+i}, v{t+i}, v{GC}, {fl(GC1)}" for i in R8]
        c += [f"v_mul_f32 v{t+i}, v{t+i}, v{a+i}" for i in R8]
        c += [f"v_exp_f32 v{t+i}, v{t+i}" for i in R8]
        c += [f"v_add_f32 v{t+i}, 1.0, v{t+i}" for i in R8]
        c += [f"v_rcp_f32 v{t+i}, v{t+i}" for i in R8]
        c += [f"v_mul_f32 v{a+i}, v{a+i}, v{t+i}" for i in R8]
        c += [f"v_cvt_pk_bf16_f32 v{p+i}, v{a+2*i}, v{a+2*i+1}" for i in range(4)]
        c += [[f"s_lshl_b32 s{sT+4}, s{sCT}, 11", f"s_add_u32 s{sT+4}, s{sT+4}, s{sHOFF}",
               f"buffer_store_dwordx4 {vr(p,4)}, v{VL16}, {sr(SWS,4)}, s{sT+4} offen offset:{2048*g + 1024*hf}{SC}"]]
    return c
EPI = {'QK': epi_qk, 'V': epi_v, 'H': epi_h}

def rbf(d, s): return [f"v_cvt_pk_bf16_f32 v{d}, v{s}, v{s}", f"v_and_b32 v{d}, 0xffff0000, v{d}"]
def stats(vt):
    m, v, d, u = EXTX, EXTX + 1, TB + 8, TB + 9
    D = TB + 12; t = TB + 8
    c = [
          f"v_permlane32_swap_b32 v{m}, v{v}", f"v_add_f32 v{m}, v{m}, v{v}", f"v_mul_f32 v{m}, {fl(1/640)}, v{m}", f"v_mov_b32 v{v}, v{m}",
          f"v_permlane32_swap_b32 v{m}, v{v}",
          f"v_fma_f32 v{v}, -v{m}, v{m}, v{v}", f"v_max_f32 v{v}, 0, v{v}"]
    c += rbf(d, v) + [f"v_add_f32 v{d}, {fl(1e-5)}, v{d}"] + rbf(d, d) + [f"v_sqrt_f32 v{d}, v{d}"] + rbf(d, d)
    c += [f"v_rcp_f32 v{u}, v{d}",
          [f"s_lshl_b32 s{sT+4}, s{sA}, 7", f"s_add_u32 s{sT+4}, s{sT+4}, {L_RS}", f"v_lshl_add_u32 v{D}, v{VTOK}, 2, s{sT+4}", f"ds_write_b32 v{D}, v{u}"] if vt else [],
          [f"s_cmp_lt_u32 s{sCB}, 5", f"s_cselect_b32 s{sT+4}, {fl(QSCALE)}, 1.0", f"v_mul_f32 v{RSA}, s{sT+4}, v{u}"],
          f"v_mul_f32 v{v}, v{v}, v{u}", f"v_mul_f32 v{v}, v{v}, v{u}"]
    c += rbf(v, v) + [f"v_add_f32 v{v}, {fl(1e-5)}, v{v}"] + rbf(v, v) + [f"v_sqrt_f32 v{v}, v{v}"] + rbf(v, v)
    c += [f"v_mul_f32 v{d}, v{d}, v{v}", f"v_rcp_f32 v{RS2}, v{d}", f"v_sub_f32 v{u}, 0, v{m}",
          [f"v_cmp_eq_u32 vcc, 0, v{VH}", f"v_cndmask_b32 v{u}, v{d}, v{u}, vcc"],
          f"v_cvt_pk_bf16_f32 v{EXTX}, v{u}, v{u}", f"v_and_b32 v{d}, 0xffff0000, v{EXTX}",
          f"v_sub_f32 v{u}, v{u}, v{d}", f"v_cvt_pk_bf16_f32 v{EXTX+1}, v{u}, 0"]
    return c
def st_addr(t): return [f"s_lshl_b32 s{sT+4}, s{sA}, 10", f"s_add_u32 s{sT+4}, s{sT+4}, {L_ST}", f"v_add_u32 v{t}, s{sT+4}, v{VL16}"]

def poll_load(t, voff, soff, n=1): return f"buffer_load_dword{'x4' if n == 4 else ''} {vr(t,n)}, v{voff}, {sr(SWS,4)}, {soff} offen{SC}"
def poll_check(lab, t, voff, soff, n=1):
    c = [f"s_mov_b32 s{sT+2}, {SPIN}", f"{lab}:"]
    if n == 4:
        c += [f"v_xor_b32 v{t+i}, s{sN}, v{t+i}" for i in range(4)]
        c += [f"v_or3_b32 v{t}, v{t}, v{t+1}, v{t+2}", f"v_or_b32 v{t}, v{t}, v{t+3}", f"v_cmp_ne_u32 vcc, 0, v{t}"]
    else: c += [f"v_cmp_ne_u32 vcc, s{sN}, v{t}"]
    c += ["s_nop 0", "s_cmp_eq_u64 vcc, 0", f"s_cbranch_scc1 {lab}_x"]
    c += opaque([f"s_sleep {opt('SLEEP', 2)}", poll_load(t, voff, soff, n), f"s_sub_u32 s{sT+2}, s{sT+2}, 1", "s_waitcnt vmcnt(0)", f"s_cbranch_scc0 {lab}"])
    return c + [f"{lab}_x:"]
sK, sV, sPC = sT + 9, sT + 10, sT + 8
def kvdma(n, so, lds_base):
    c = []
    for j in range(n):
        c += [f"s_add_u32 m0, s{sPC}, {lds_base + 4096*j}",
              f"buffer_load_dwordx4 v{VL16}, {sr(SWS,4)}, s{so} offen{SC} lds", f"s_add_u32 s{so}, s{so}, 4096"]
    return c
def vchunk(pos):
    return kvdma(5, sV, pos) + [f"s_cmp_eq_u32 s{sA}, 0", f"s_cselect_b32 s{sT+1}, s{sV}, {hx(WS_SIZE)}", f"s_cselect_b32 s{sT}, {hx(pos + 20480 - MISC - 15360)}, 0",
            f"s_add_u32 m0, s{sT}, {MISC + 15360}", f"buffer_load_dwordx4 v{VL16}, {sr(SWS,4)}, s{sT+1} offen{SC} lds", f"s_add_u32 s{sV}, s{sV}, 1024"]
PF, PA = 96, 100
def f1_addr(first):
    t = PA + 1
    c = [f"v_lshrrev_b32 v{t}, {6 if first else 8}, v{VL16}"] + ([f"v_min_u32 v{t}, 5, v{t}"] if first else [])
    c += [f"v_and_b32 v{t+1}, 1, v{t}", f"v_mul_u32_u24 v{t+1}, 19, v{t+1}", f"v_lshrrev_b32 v{t}, 1, v{t}",
          f"v_mul_u32_u24 v{PA}, 640, v{t}", f"s_mul_i32 s{sT+3}, s{sHEAD}, 20", f"s_add_u32 s{sT+3}, s{sT+3}, 640", f"v_add3_u32 v{PA}, v{PA}, v{t+1}, s{sT+3}",
          f"v_lshrrev_b32 v{PA}, 7, v{PA}"]
    if first:
        c += [f"v_bfe_u32 v{t+1}, v{VL16}, 4, 2", f"v_lshl_add_u32 v{PA}, v{PA}, 4, v{t+1}",
              f"v_and_b32 v{t+2}, {hx(~2)}, v{PA}", f"s_lshl_b32 s{sT+3}, s{sQB}, 1", f"s_sub_u32 s{sT+3}, s{sT+3}, 240", f"v_add_u32 v{t+2}, s{sT+3}, v{t+2}",
              f"v_cmp_eq_u32 vcc, 2, v{t}", f"v_cndmask_b32 v{PA}, v{PA}, v{t+2}, vcc"]
    else:
        c += [f"v_bfe_u32 v{t+1}, v{VL16}, 4, 4", f"v_lshl_add_u32 v{PA}, v{PA}, 4, v{t+1}"]
    return c + [f"v_lshlrev_b32 v{PA}, 7, v{PA}", f"s_mov_b32 s{sT+3}, {hx(WS_F1)}", poll_load(PF, PA, f"s{sT+3}", 4)]
def kv_base(skip):
    return [f"s_lshl_b32 s{sPC}, s{sA}, 10",
            f"s_mul_i32 s{sK}, s{sHEAD}, {HS_QK}", f"s_add_u32 s{sK}, s{sK}, s{sPC}",
            f"s_mul_i32 s{sT+7}, s{sQB}, 10240", f"s_add_u32 s{sT+7}, s{sT+7}, s{sK}", f"s_add_u32 s{sK}, s{sK}, {hx(WS_K + skip*KCH)}",
            f"s_mul_i32 s{sV}, s{sHEAD}, {HS_V}", f"s_add_u32 s{sV}, s{sV}, {hx(WS_V + skip*VCH)}", f"s_add_u32 s{sV}, s{sV}, s{sPC}"]
def first_kv(): return kvdma(3, sT + 7, L_Q) + kvdma(5, sK, KPOS[0]) + vchunk(VPOS[0]) + [mark("kv0")]
def rest_kv(): return kvdma(5, sK, KPOS[1]) + vchunk(VPOS[1]) + kvdma(10, sK, KPOS[2]) + vchunk(VPOS[2])
def flag_store2(soff, t):
    return [f"v_lshlrev_b32 v{t+2}, 21, v{VL16}", f"v_mov_b32 v{t}, s{sN}", f"v_mov_b32 v{t+1}, s{sN}", f"buffer_store_dwordx2 {vr(t,2)}, v{t+2}, {sr(SWS,4)}, {soff} offen{SC}"]
def flag_store(soff, t):
    return [f"v_lshlrev_b32 v{t}, 21, v{VL16}", f"v_mov_b32 v{t+1}, s{sN}", f"buffer_store_dword v{t+1}, v{t}, {sr(SWS,4)}, {soff} offen{SC}"]
def f1_signal():
    return [[f"s_lshl_b32 s{sT+4}, s{sCB}, 4", f"s_add_u32 s{sT+4}, s{sT+4}, s{sRB}", f"s_lshl_b32 s{sT+4}, s{sT+4}, 5", f"s_add_u32 s{sT+4}, s{sT+4}, s{sA}",
             f"s_lshl_b32 s{sT+4}, s{sT+4}, 2", f"s_add_u32 s{sT+4}, s{sT+4}, {hx(WS_F1)}"] + flag_store(f"s{sT+4}", CSD[0] + 2)
            + [f"v_mov_b32 v{CSD[0]+2}, 0", f"v_mov_b32 v{CSD[0]+3}, 0"]]
def take(lst, budget):
    t = 0
    for i, x in enumerate(lst):
        t += cost(x)
        if t > budget: return lst[:i], lst[i:]
    return lst, []
def helper(R, etype):
    er, ev = ext('V' if etype == 'V' else 'N')
    epi = EPI[etype](0) + EPI[etype](1)
    c = tr("body", 0) + er
    if R == 2: c += st_addr(TB + 8) + [f"ds_read_b128 {vr(EXTX,4)}, v{TB+8}"]
    if R == 3: c += [f"s_add_u32 s{sWOFF}, s{sWOFF}, 128"]
    main = (stats(etype == 'V') if R == 1 else []) + ev + epi
    late = cs_stage(sM4, 0)
    late = [[late[0][0], f"v_subrev_u32 v{VCA}, {4*U}, v{VCA}", late[0][1]]] + late[1:4] + [[late[4][0], f"v_subrev_u32 v{VCA}, {4*U}, v{VCA}", late[4][1]]] + late[5:]
    st = [cs_stage(sCSB, s * U) for s in range(4)] + [late]
    ma, mb = csm()[0]
    cs1 = st[0] + [ma] + st[1][:4] + [mb] + st[1][4:] + [ma] + st[2][:4] + [mb] + st[2][4:] + [ma]
    cs2 = st[3][:4] + [mb] + st[3][4:] + [ma] + st[4][:4] + [mb] + st[4][4:] + [ma]
    y1 = tr("body", 2) + [waitfor("m1")] + tr("body", 3) + ["s_barrier"]
    if R < 3:
        nxt = aim(2) if R == 1 else aim_next3("LH2" + etype)
        d = [nxt] + wdma(0) + wdma(1) + wdma(2) + [mark("m2")] + wdma(3)
        c += wdma(4) + [mark("m1")] + bias_ld(R)
        if R == 1:
            m1, m2 = take(main, 520)
            c += sched(m1, d[:23], cs1[:14], dsp=70) + y1 + sched(m2, d[23:], cs1[14:] + cs2 + GAP + [mb], dsp=70)
            c += st_addr(VCA) + [f"ds_write_b128 v{VCA}, {vr(EXTX,4)}"]
        else:
            m1, m2 = take(main, 760) if etype == 'H' else (main, [])
            c += sched(m1 + [mark("st")], side=cs1[:9]) + sched([], d[:8], dsp=40) + y1
            c += sched([], d[8:15], cs1[9:19], dsp=50) + tr("body", 8) + [waitfor("st")] + tr("body", 9) + f1_signal()
            c += sched(m2, d[15:], cs1[19:] + cs2 + GAP + [mb], dsp=50)
        c += partw(R)
        c += tr("body", 4) + [waitfor("m2", " lgkmcnt(0)")] + tr("body", 5)
        if R == 1 and etype == 'QK': c += [f"s_cmp_lt_u32 s{sCB}, 5", "s_cbranch_scc1 LA_nmk"] + opaque(o_marks()) + ["LA_nmk:"]
        c += ["s_barrier"]
    else:
        f1 = f1_addr(True)
        c += wdma(4) + [mark("m1")] + bias_ld(R)
        m0, m1 = take(main, opt("K0", 200)); m1, m2 = take(m1, opt("K1", 400)); m2, m3 = take(m2, opt("K2", 900))
        c += sched(m0 + [f1], side=cs1[:9]) + tr("body", 7) + sched(m1 + [kv_base(0)], side=cs1[9:])
        c += tr("body", 8) + poll_check("LH3p", PF, PA, f"s{sT+3}", 4) + tr("body", 9) + y1
        c += sched(m2, first_kv(), cs2 + GAP + [mb], dsp=30) + partw(R)
        c += tr("body", 4) + [waitfor("kv0", " lgkmcnt(0)")] + tr("body", 5) + ["s_barrier"] + m3 + tr("body", 6)
    return c

def lane_setup(grp):
    t = TB + 8
    c = [f"v_bfe_u32 v{t}, v0, 2, 2", f"v_lshl_add_u32 v{t+1}, v{VH}, 3, v{t}", f"v_lshlrev_b32 v{t+1}, 7, v{t+1}",
         f"v_lshrrev_b32 v{t}, 1, v{t}", f"v_lshl_add_u32 v{t+1}, v{t}, 6, v{t+1}",
         f"v_bfe_u32 v{t}, v0, 4, 1", f"v_lshl_add_u32 v{t+1}, v{t}, 5, v{t+1}",
         f"v_and_b32 v{t}, 3, v0", f"v_lshl_add_u32 v{VT[0]}, v{t}, 3, v{t+1}", f"v_xor_b32 v{VT[1]}, 64, v{VT[0]}",
         f"v_add_u32 v{VT4[0]}, {4*U}, v{VT[0]}", f"v_add_u32 v{VT4[1]}, {4*U}, v{VT[1]}"]
    xa = VXA if grp == 'A' else TB + 4
    c += [f"v_and_b32 v{t}, 15, v0", f"v_xor_b32 v{t}, v{t}, v{VH}", f"v_lshlrev_b32 v{t}, 4, v{t}",
          f"v_lshl_add_u32 v{t}, v{VTOK}, 8, v{t}", f"s_lshl_b32 s{sT}, s{sA}, 13", f"v_add_u32 v{xa}, s{sT}, v{t}"]
    if grp == 'A':
        c += [f"v_add_u32 v{EXTX+g}, {2*U}, v{VT[g]}" for g in range(2)] + [f"v_add_u32 v{VT[g]}, {5*U}, v{VT[g]}" for g in range(2)]
        c += [f"s_sub_u32 s{sCSB}, s{sM4}, {8*U}", f"s_add_u32 s{sDST}, s{sM4}, {U}", f"v_mov_b32 v{AONE}, 0x3f803f80"]
    else:
        c += [f"s_sub_u32 s{sCSB}, s{sM4}, {3*U}", f"s_sub_u32 s{sDST}, s{sM4}, {4*U}"]
    c += [f"v_mov_b32 v{GC}, {fl(GC2)}", f"v_mov_b32 v{t+1}, 0x3f803f80", f"v_and_b32 v{t}, 14, v0",
          f"v_cmp_eq_u32 vcc, 0, v{t}", f"v_cndmask_b32 v{CSA}, 0, v{t+1}, vcc", f"v_mov_b32 v{CSA+1}, v{CSA}",
          f"v_cmp_eq_u32 vcc, 4, v{t}", f"v_cndmask_b32 v{CSA+2}, 0, v{t+1}, vcc", f"v_mov_b32 v{CSA+3}, v{CSA+2}",
          f"v_and_b32 v{t}, 1, v0", f"v_mul_u32_u24 v{t}, 0xaaaa, v{t}", f"v_add_u32 v{CSI}, 0x4444, v{t}"]
    c += [f"v_mov_b32 v{r}, 0" for r in range(CSD[0], CSD[0]+8)]
    c += [f"s_lshl_b32 s{sT}, s{sRB}, 2", f"s_add_u32 s{sT}, s{sT}, s{sA}",
          f"s_lshr_b32 s{sT+1}, s{sT}, 1", f"s_mul_i32 s{sQKROW}, s{sT+1}, 2560", f"s_and_b32 s{sT+1}, s{sT}, 1",
          f"s_lshl_b32 s{sT+1}, s{sT+1}, 8", f"s_add_u32 s{sQKROW}, s{sQKROW}, s{sT+1}",
          f"s_mul_i32 s{sVOFF}, s{sT}, 1344", f"s_add_u32 s{sVOFF}, s{sVOFF}, {hx(WS_V)}",
          f"s_mul_i32 s{sHOFF}, s{sT}, {108*1024}", f"s_add_u32 s{sHOFF}, s{sHOFF}, {hx(WS_H)}",
          f"s_lshl_b32 s{sCT}, s{sCB}, 2", f"s_cmp_eq_u32 s{sCB}, 15", f"s_cselect_b32 s{sCT}, 48, s{sCT}"]
    if grp == 'B': c += [f"s_add_u32 s{sCT}, s{sCT}, 2"]
    return c
def ones_rows():
    t = TB + 8
    return [f"s_lshl_b32 s{sT}, s{sCB}, 7", f"s_sub_u32 s{sT}, s{sT}, {1280 - 19}", f"s_mul_i32 s{sT+1}, s{sT}, 3277", f"s_lshr_b32 s{sT+1}, s{sT+1}, 16",
            f"v_lshrrev_b32 v{t}, 2, v0", f"v_add_u32 v{t}, s{sT+1}, v{t}",
            f"v_mul_u32_u24 v{t+1}, 20, v{t}", f"s_add_u32 s{sT}, s{sT}, {128 - 19}", f"v_cmp_gt_u32 vcc, s{sT}, v{t+1}",
            f"v_mul_u32_u24 v{t}, {HS_V}, v{t}", f"v_and_b32 v{t+1}, 3, v0", f"v_mul_u32_u24 v{t+1}, 336, v{t+1}", f"v_add_u32 v{t}, v{t}, v{t+1}",
            f"v_mov_b32 v{t+1}, {hx(OOB)}", f"v_cndmask_b32 v{t}, v{t+1}, v{t}, vcc"] + [f"v_mov_b32 v{t+4+i}, 0x3f803f80" for i in range(4)] + [
            f"buffer_store_dwordx4 {vr(t+4,4)}, v{t}, {sr(SWS,4)}, s{sVOFF} offen offset:320{SC}"]

def o_marks():
    t = TB + 8
    c = [f"s_lshl_b32 s{sT}, s{sCB}, 7", f"s_sub_u32 s{sT}, s{sT}, {640 - 19}", f"s_mul_i32 s{sT+1}, s{sT}, 3277", f"s_lshr_b32 s{sT+1}, s{sT+1}, 16",
         f"s_add_u32 s{sT}, s{sT}, 128", f"s_mul_i32 s{sT}, s{sT}, 3277", f"s_lshr_b32 s{sT}, s{sT}, 16",
         f"s_lshl_b32 s{sT+2}, s{sRB}, 2", f"s_add_u32 s{sT+2}, s{sT+2}, s{sA}", f"s_mul_i32 s{sT+2}, s{sT+2}, 40960", f"s_add_u32 s{sT+2}, s{sT+2}, {hx(WS_O)}",
         f"v_lshrrev_b32 v{t}, 8, v{VL16}", f"v_lshl_add_u32 v{t}, v{t}, 28, v{VL16}"] + [f"v_mov_b32 v{t+4+i}, -1" for i in range(4)]
    c += ["LA_mk:", f"s_lshl_b32 s{sT+3}, s{sT+1}, 10", f"s_add_u32 s{sT+3}, s{sT+3}, s{sT+2}",
          f"buffer_store_dwordx4 {vr(t+4,4)}, v{VL16}, {sr(SWS,4)}, s{sT+3} offen{SC}",
          f"s_lshl_b32 s{sT+3}, s{sT+1}, 8", f"s_add_u32 s{sT+3}, s{sT+3}, s{sT+2}", f"s_add_u32 s{sT+3}, s{sT+3}, 32768",
          f"buffer_store_dwordx4 {vr(t+4,4)}, v{t}, {sr(SWS,4)}, s{sT+3} offen{SC}",
          f"s_add_u32 s{sT+1}, s{sT+1}, 1", f"s_cmp_lt_u32 s{sT+1}, s{sT}", "s_cbranch_scc1 LA_mk"]
    return c

def b_round0():
    c = xdma(0) + aim(0) + wdma(0, WSL0[0]) + [mark("d0")] + lane_setup('B')
    c += bias_ld(0)
    c += xdma(1) + wdma(1, WSL0[1]) + [mark("d1")] + stamp(1) + ["s_waitcnt lgkmcnt(0)", f"s_add_u32 s{sN}, s{sN}, 1"]
    for s in range(5):
        c += tr("r0", 2*s) + [waitfor(f"d{s}", " lgkmcnt(0)")] + tr("r0", 2*s+1) + ["s_barrier"]
        if s == 0: c += stamp(2)
        c += [f"s_add_u32 s{sT+1}, s{sM4}, {hx((WSL0[s]-8)*U)}"]
        side = xreads(s, TB + 5) + cs_stage(sT + 1, 0)
        if s < 3: d = xdma(s + 2) + wdma(s + 2, WSL0[s + 2]) + [mark(f"d{s+2}")]
        if s == 3: d = [f"s_add_u32 s{sWOFF}, s{sWOFF}, 128"] + wdma(0) + [mark("m1")] + wdma(1) + wdma(2) + [mark("m2")]
        if s == 4: d = wdma(3)
        c += sched([], d, side, dsp=24) + csm()
    c += aim(2) + partw(0) + [waitfor("m2", " lgkmcnt(0)"), "s_barrier"]
    return fin(c + tr("r0", 10))

RL = 112
def relayout_read():
    t = TB; u = sT
    c = [f"v_and_b32 v{t}, 0x1ff, v{VT[0]}", f"s_cmp_lt_u32 s{sTASK}, 30",
         f"s_cselect_b32 s{u}, 16, 20", f"s_cselect_b32 s{u+1}, 4, 40", f"s_cselect_b32 s{u+4}, 8, 20", f"s_cselect_b32 s{u+5}, 16, 80", f"s_cselect_b32 s{u+6}, 512, 16",
         f"s_lshl_b32 s{u}, s{u}, 7", f"s_lshl_b32 s{u+1}, s{u+1}, 7", f"s_lshl_b32 s{u+4}, s{u+4}, 7", f"s_lshl_b32 s{u+5}, s{u+5}, 7", f"s_lshl_b32 s{u+6}, s{u+6}, 7",
         f"s_mul_i32 s{u+2}, s{u}, s{sA}", f"s_lshl_b32 s{u+2}, s{u+2}, 3",
         f"v_lshl_add_u32 v{t+1}, v{VH}, 9, v{t}", f"v_add_u32 v{t+1}, s{u+2}, v{t+1}"]
    for k in range(8):
        c += [f"v_xor_b32 v{t+2}, 64, v{t+1}"]
        for g in range(2):
            c += [f"ds_read_b64_tr_b16 {vr(RL+8*k+4*g,2)}, v{t+1+g}", f"ds_read_b64_tr_b16 {vr(RL+8*k+4*g+2,2)}, v{t+1+g} offset:1024"]
        c += [f"v_add_u32 v{t+1}, s{u}, v{t+1}"]
    c += [f"s_mul_i32 s{u+2}, s{u+5}, s{sA}", f"s_lshl_b32 s{u+2}, s{u+2}, 1", f"s_add_u32 s{u+2}, s{u+2}, s{u+6}",
          f"v_mad_u32_u24 v{t+1}, v{VH}, s{u+1}, v{t}", f"v_add_u32 v{t+1}, s{u+2}, v{t+1}"]
    for k in (8, 9):
        c += [f"v_add_u32 v{t+2}, s{u+4}, v{t+1}", f"v_xor_b32 v{t+3}, 64, v{t+1}", f"v_xor_b32 v{t+4}, 64, v{t+2}"]
        c += [f"ds_read_b64_tr_b16 {vr(RL+8*k+2*i,2)}, v{t+1+i}" for i in range(4)]
        c += [f"v_add_u32 v{t+1}, s{u+5}, v{t+1}"]
    return c
def relayout_store():
    u = sT; d0, d1, ks, lim = sR, sCT, sXOFF, sST
    c = [f"s_mul_i32 s{u+2}, s{sTASK}, 6554", f"s_lshr_b32 s{u+2}, s{u+2}, 16",
         f"s_mul_i32 s{u}, s{u+2}, 10", f"s_sub_u32 s{u}, s{sTASK}, s{u}", f"s_lshl_b32 s{u+6}, s{u}, 1",
         f"s_cmp_lt_u32 s{u+2}, 3", f"s_cselect_b32 s{u+5}, 108, 40", f"s_cselect_b32 s{u+4}, 0, {hx(WS_WOF - WS_W2F)}", f"s_cselect_b32 s{u+2}, s{u+2}, 0",
         f"s_mul_i32 s{u+2}, s{u+2}, {40*5120}", f"s_mul_i32 s{u+5}, s{u+5}, 5120", f"s_sub_u32 s{lim}, s{u+5}, s{u+2}",
         f"s_add_u32 s{u+4}, s{u+4}, s{u+2}", f"s_add_u32 s{u+4}, s{u+4}, {hx(WS_W2F)}"]
    for g, d in ((0, d0), (1, d1)):
        c += [f"s_add_u32 s{u}, s{u+6}, {g}", f"s_mul_i32 s{u+1}, s{u}, 52429", f"s_lshr_b32 s{u+1}, s{u+1}, 18",
              f"s_mul_i32 s{u+2}, s{u+1}, 5", f"s_sub_u32 s{u}, s{u}, s{u+2}", f"s_lshl_b32 s{u}, s{u}, 10",
              f"s_mul_i32 s{u+1}, s{u+1}, s{u+5}", f"s_add_u32 s{d}, s{u}, s{u+1}", f"s_add_u32 s{d}, s{d}, s{u+4}"]
    c += [f"s_mul_i32 s{ks}, s{sA}, {8*5120}"]
    for k in range(10):
        if k == 8: c += [f"s_mul_i32 s{ks}, s{sA}, {2*5120}", f"s_add_u32 s{ks}, s{ks}, {32*5120}"]
        c += [f"s_cmp_lt_u32 s{ks}, s{lim}", f"s_cbranch_scc0 LB_rs{k}", f"s_add_u32 s{u}, s{ks}, s{d0}", f"s_add_u32 s{u+1}, s{ks}, s{d1}",
              f"buffer_store_dwordx4 {vr(RL+8*k,4)}, v{VL16}, {sr(SWS,4)}, s{u} offen{SC}",
              f"buffer_store_dwordx4 {vr(RL+8*k+4,4)}, v{VL16}, {sr(SWS,4)}, s{u+1} offen{SC}", f"LB_rs{k}:", f"s_add_u32 s{ks}, s{ks}, 5120"]
    return c + fr_addr() + ["s_waitcnt vmcnt(0)"] + flag_store(f"s{sT}", TB)

def prologue():
    t = TB + 8; j = sT + 3
    c = ["s_cmp_ge_u32 s2, 256", "s_cbranch_scc1 L_end",
         f"s_load_dwordx2 {sr(SX,2)}, s[0:1], 0", f"s_load_dwordx2 {sr(sWQ,2)}, s[0:1], 8", f"s_load_dwordx2 {sr(sW1,2)}, s[0:1], 32",
         f"s_load_dwordx2 {sr(SWS,2)}, s[0:1], 80", f"s_load_dwordx2 {sr(SB1,2)}, s[0:1], 40", f"s_load_dwordx2 {sr(sWO,2)}, s[0:1], 16",
         f"s_load_dwordx2 {sr(sW2,2)}, s[0:1], 48", f"s_load_dwordx2 {sr(SB2,2)}, s[0:1], 56", f"s_load_dwordx2 {sr(SOUT,2)}, s[0:1], 64",
         f"v_lshrrev_b32 v1, 6, v0", f"v_and_b32 v0, 63, v0", f"v_readfirstlane_b32 s{sW}, v1",
         f"v_lshlrev_b32 v{VL16}, 4, v0", f"v_lshrrev_b32 v{VH}, 5, v0", f"v_and_b32 v{VTOK}, 31, v0",
         f"s_and_b32 s{sA}, s{sW}, 3", f"s_lshr_b32 s{j}, s2, 3", f"s_and_b32 s{sT}, s2, 7",
         f"s_and_b32 s{sRB}, s2, 3", f"s_lshl_b32 s{sRB}, s{sRB}, 2", f"s_and_b32 s{sCG}, s{j}, 3", f"s_add_u32 s{sRB}, s{sRB}, s{sCG}",
         f"s_lshr_b32 s{sT+1}, s{j}, 2", f"s_lshl_b32 s{sCB}, s{sT+1}, 1", f"s_lshr_b32 s{sT+2}, s{sT}, 2", f"s_add_u32 s{sCB}, s{sCB}, s{sT+2}",
         f"s_lshl_b32 s{sRTILE}, s{sT}, 3", f"s_add_u32 s{sRTILE}, s{sRTILE}, s{sT+1}",
         f"s_lshl_b32 s{sHEAD}, s{sT}, 2", f"s_lshr_b32 s{sT+2}, s{j}, 3", f"s_add_u32 s{sHEAD}, s{sHEAD}, s{sT+2}", f"s_and_b32 s{sQB}, s{j}, 7",
         f"s_mul_i32 s{sTASK}, s{sT}, 5", f"s_sub_u32 s{sT+1}, s{j}, 20", f"s_add_u32 s{sTASK}, s{sTASK}, s{sT+1}",
         f"s_cmp_lt_u32 s{sT+1}, 5", f"s_cselect_b32 s{sTASK}, s{sTASK}, 99",
         f"s_lshl_b32 s{sHU}, s{sCB}, 1", f"s_add_u32 s{sT}, s{sCB}, 9", f"s_cmp_lt_u32 s{sCB}, 9", f"s_cselect_b32 s{sHU}, s{sHU}, s{sT}",
         f"s_cselect_b32 s{sNR}, 4, 3", f"s_cmp_eq_u32 s{sCB}, 15", f"s_cselect_b32 s{sHU}, 26, s{sHU}",
         f"s_lshl_b32 s{sT}, s{sRB}, 2", f"s_add_u32 s{sT}, s{sT}, s{sA}", f"s_mul_i32 s{sXOFF}, s{sT}, {32*1280}",
         f"s_lshl_b32 s{sM4}, s{sA}, 12", f"s_add_u32 s{sM4}, s{sM4}, {4*U}",
         f"v_lshrrev_b32 v{t}, 4, v0", f"v_xor_b32 v{t+1}, v{t}, v0", f"v_and_b32 v{t+1}, 15, v{t+1}", f"v_lshlrev_b32 v{t+1}, 4, v{t+1}",
         f"v_mul_u32_u24 v{t}, 1280, v{t}", f"v_add_u32 v{VX}, v{t}, v{t+1}"]
    for q in range(1, 4):
        c += [f"v_xor_b32 v{t+2}, {64*q}, v{t+1}", f"v_add_u32 v{t+2}, {4096*q}, v{t+2}", f"v_add_u32 v{VX+q}, v{t}, v{t+2}"]
    for d, size in ((SX, 2621440), (SWD, 0), (SWS, WS_SIZE), (SB1, 0), (SB2, 1280), (SOUT, 2621440)):
        c += [f"s_mov_b32 s{d+2}, {hx(size)}", f"s_mov_b32 s{d+3}, 0x00020000"]
    c += ["s_waitcnt lgkmcnt(0)", f"s_add_u32 s{sT+8}, s{SWS}, {hx(WS_EP)}", f"s_addc_u32 s{sT+9}, s{SWS+1}, 0", f"s_load_dword s{sN}, {sr(sT+8,2)}, 0"]
    return fix_hazards(c)
def code_prefetch():
    t = TB + 8
    return [f"s_getpc_b64 s[{sT+6}:{sT+7}]", "L_pc:", f"s_sub_u32 s{sT+6}, s{sT+6}, L_pc-L_first", f"s_subb_u32 s{sT+7}, s{sT+7}, 0",
            f"s_lshr_b32 s{sT}, s2, 3", f"s_lshl_b32 s{sT}, s{sT}, 2", f"s_add_u32 s{sT}, s{sT}, s{sA}", f"s_lshl_b32 s{sT}, s{sT}, 7",
            f"v_lshlrev_b32 v{t}, 14, v0", f"v_add_u32 v{t}, s{sT}, v{t}", f"v_min_u32 v{t}, L_last-L_first-4, v{t}",
            f"global_load_dword v1, v{t}, s[{sT+6}:{sT+7}]"]

S = {(0,0): 16, (1,0): 32, (0,1): 48, (1,1): 64}
O = [80, 96]; Q = [112, 118]; K = [124, 130]; V = [136, 144]; IDX = 152
AK0, AK1, AK2, AV, AVM, VVG = 153, 154, 155, 156, 157, 158
sIT, sDK, sDV = sT + 2, sT + 6, sT + 7
T = 2
PAT = opt("PAT", "CkeeDkweeAeeeBeeeeeeeee,CveeDveeAeeeBeeeeeeeee").split(",")
WOF = 124; RED = 16; OF = [64 + 4*i for i in range(10)]; GR = 104; PD = 116; XV = 244; IA = 250; IG = 252; VL2 = 254; SA = 4; PAD = 3

def qk(dst, kf, q):
    return (f"v_mfma_f32_32x32x16_bf16 {vr(dst,16)}, {vr(kf,4)}, {vr(Q[q],4)}, 0",
            f"v_mfma_f32_32x32x8_bf16 {vr(dst,16)}, {vr(kf+4,2)}, {vr(Q[q]+4,2)}, {vr(dst,16)}")
def pv(q, vf, s):
    return (f"v_smfmac_f32_32x32x32_bf16 {vr(O[q],16)}, {vr(vf,4)}, {vr(s,8)}, v{IDX}",
            f"v_smfmac_f32_32x32x32_bf16 {vr(O[q],16)}, {vr(vf+4,4)}, {vr(s+8,8)}, v{IDX}")
def kread(kt):
    kt &= 15
    f = K[kt & 1]
    return [f"ds_read2st64_b64 {vr(f,4)}, v{AK1 if kt & 1 else AK0} offset0:{5*(kt>>1)} offset1:{5*(kt>>1)+1}",
            f"ds_read_b32 v{f+4}, v{AK2} offset:{(kt>>1)*2560 + (kt&1)*256}"]
def vread(kt):
    f = V[kt & 1]; a = AV
    kt &= 15
    return [f"ds_read_b128 {vr(f,4)}, v{a} offset:{kt*1344}", f"ds_read_b128 {vr(f+4,4)}, v{a} offset:{kt*1344+672}"]
def loop_body(last=False, pat=PAT):
    c = []
    extra = []
    if last:
        cur = []
        for x in [y.replace(f"s{sT+1}", f"s{sT+9}").replace(f"s{sT}", f"s{sT+8}") for y in wo_loads(0, 2)] + item_loads():
            cur.append(x)
            if as_ins(x).kind == 'vmem' or len(cur) == 4: extra.append(cur); cur = []
    for i in range(32):
        kt, q = divmod(i, 2); ktp, qp = divmod(i - 1, 2)
        sc = S[(q, kt & 1)]
        A, B = qk(S[(q, (kt + 1) & 1)], K[(kt + 1) & 1], q)
        C, D = pv(qp, V[ktp & 1], S[(qp, ktp & 1)])
        kf = kread(kt + 2); vf = vread(kt + 1)
        e = f = 0; seen = ""
        for ch in pat[q]:
            if ch in 'AB':
                if not (last and kt == 15): c.append(A if ch == 'A' else B)
                if ch == 'B' and extra: c += extra.pop(0)
            elif ch == 'C': c.append(C)
            elif ch == 'D': c.append(D)
            elif ch == 'e': c.append(f"v_exp_f32 v{sc+e}, v{sc+e}"); e += 1
            elif ch == 'k':
                if kt == 14 and len(kf) == 2:
                    if not last: c += [f"v_add_u32 v{r}, s{sDK}, v{r}" for r in (AK0, AK1, AK2)] + ["s_waitcnt lgkmcnt(2)"]
                    c += ["s_barrier"]
                if kt == 4 and len(kf) == 2 and not last:
                    c += ["s_waitcnt vmcnt(0)", flag_store2(f"s{sT+10}", 160)[3]]
                x = kf.pop(0)
                if not (last and kt >= 14): c.append(x); f += 1
            elif ch == 'v':
                if q == 0: assert ("C" if len(vf) == 2 else "D") in seen
                if kt == 15 and len(vf) == 2 and not last: c += [f"v_mad_i32_i24 v{AV}, v{AVM}, s{sDV}, v{AV}"]
                x = vf.pop(0)
                if not (last and kt == 15): c.append(x); f += 1
            elif ch == 'w': c.append(f"s_waitcnt lgkmcnt({f})")
            seen += ch
        assert e == 16
    assert not extra
    return c
def shift_split(q, m):
    t = T + 6
    return [f"v_sub_f32 v{m}, 0, v{m}",
            f"v_cvt_pk_bf16_f32 v{t}, v{m}, v{m}", f"v_and_b32 v{t}, 0xffff0000, v{t}", f"v_sub_f32 v{t}, v{m}, v{t}",
            f"v_cvt_pk_bf16_f32 v{t+1}, v{m}, v{t}", f"v_and_b32 v{t+2}, 0xffff0000, v{t+1}", f"v_sub_f32 v{t}, v{t}, v{t+2}",
            f"v_cvt_pk_bf16_f32 v{t}, v{t}, 0",
            f"v_cmp_eq_u32 vcc, 0, v{VH}", f"v_cndmask_b32 v{Q[q]+5}, v{t}, v{t+1}, vcc"]
def max16(d, s, acc=False):
    c = [f"v_max3_f32 v{d}, v{s}, v{s+1}, v{d if acc else s}"]
    for j in range(2, 16, 2): c.append(f"v_max3_f32 v{d}, v{s+j}, v{s+j+1}, v{d}")
    return c
def xhalf_max(d):
    return [f"v_mov_b32 v{d+1}, v{d}", f"v_permlane32_swap_b32 v{d}, v{d+1}", f"v_max_f32 v{d}, v{d}, v{d+1}"]

def attn():
    c = [f"v_lshrrev_b32 v{T}, 4, v{VTOK}", f"v_lshlrev_b32 v{T}, 3, v{T}", f"v_and_b32 v{T+1}, 15, v{VTOK}",
         f"v_lshl_add_u32 v{T+2}, v{T+1}, 4, v{T}",
         f"v_lshrrev_b32 v{T+3}, 1, v{T+2}", f"v_xor_b32 v{T+3}, v{T+3}, v{T+2}", f"v_and_b32 v{T+3}, 64, v{T+3}",
         f"v_mul_u32_u24 v{T+3}, 3, v{T+3}", f"v_xor_b32 v{AK0}, v{T+3}, v{T+2}",
         f"v_add_u32 v{AK0}, {KPOS[0]}, v{AK0}", f"v_lshl_add_u32 v{AK2}, v{VH}, 2, v{AK0}", f"v_add_u32 v{AK2}, 2048, v{AK2}",
         f"v_lshl_add_u32 v{AK0}, v{VH}, 10, v{AK0}", f"v_add_u32 v{AK1}, 256, v{AK0}",
         f"s_mul_i32 s{sT}, s{sA}, 2560", f"s_add_u32 s{sT}, s{sT}, {L_Q}", f"v_add_u32 v{T+2}, s{sT}, v{T+2}",
         f"v_lshl_add_u32 v{T+3}, v{VH}, 2, v{T+2}", f"v_lshl_add_u32 v{T+2}, v{VH}, 10, v{T+2}",
         f"v_min_u32 v{AV}, 20, v{VTOK}", f"v_lshlrev_b32 v{AV}, 4, v{AV}", f"v_mul_u32_u24 v{T}, 336, v{VH}", f"v_add_u32 v{VVG}, v{AV}, v{T}",
         f"v_mov_b32 v{T}, 0x011fffff", f"v_lshrrev_b32 v{T}, v{VTOK}, v{T}", f"v_and_b32 v{AVM}, 1, v{T}",
         f"s_mov_b32 s{sT}, {hx(VPOS[0] - 0x30000)}", f"v_add_u32 v{AV}, 0x30000, v{VVG}", f"v_mad_i32_i24 v{AV}, v{AVM}, s{sT}, v{AV}",
         f"v_mov_b32 v{IDX}, 0xdddddddd", f"v_mov_b32 v{K[0]+5}, 0x3f803f80", f"v_mov_b32 v{K[1]+5}, 0x3f803f80",
         f"v_mov_b32 v{Q[0]+5}, 0", f"v_mov_b32 v{Q[1]+5}, 0"]
    c += [f"v_mov_b32 v{r}, 0" for r in range(V[1], V[1]+8)]
    c += [f"v_mfma_f32_32x32x8_bf16 {vr(r,16)}, {vr(V[1],2)}, {vr(V[1],2)}, 0" for r in (O[0], O[1], S[(1,1)])]
    c += ["s_setprio 2"] + stamp(5) + tr("att", 0)
    c += kread(0)
    for q in range(2):
        c += [f"ds_read_b64 {vr(Q[q],2)}, v{T+2} offset:{256*q}", f"ds_read_b64 {vr(Q[q]+2,2)}, v{T+2} offset:{256*q+512}",
              f"ds_read_b32 v{Q[q]+4}, v{T+3} offset:{256*q+2048}"]
    c += kread(1) + vread(0)
    for q in range(2): c += list(qk(S[(q,0)], K[0], q))
    for q in range(2): c += max16(T + 2*q, S[(q,0)]) + xhalf_max(T + 2*q) + shift_split(q, T + 2*q)
    for q in range(2): c += list(qk(S[(q,0)], K[0], q))
    c += f2_addr() + [f"s_mov_b32 s{sT+10}, s{sT}"] + flag_store2(f"s{sT+10}", 160)[:3]
    c += [f"s_mov_b32 s{sIT}, 0", f"s_mov_b32 s{sDK}, {KCH}", f"s_mov_b32 s{sDV}, {hx(VPOS[1] - VPOS[0])}", "s_waitcnt lgkmcnt(0)"]
    c = fin(c)
    body = loop_body()
    upd = [f"s_add_u32 s{sIT}, s{sIT}, 1", f"s_cmp_eq_u32 s{sIT}, 1", f"s_cselect_b32 s{sDK}, {hx(-4*KCH)}, 0", f"s_cselect_b32 s{sDV}, 0, {VPOS[3] - 2*VPOS[2]}",
           f"s_add_u32 s{sDK}, s{sDK}, {KCH}", f"s_add_u32 s{sDV}, s{sDV}, {VPOS[2]}",
           f"s_cmp_lt_u32 s{sIT}, 3", "s_cbranch_scc1 LA_loop"]
    fin_it = loop_body(True)
    two = [as_ins(x) for x in body + upd + body + upd + fin_it]
    assert len(fix_hazards(fix_waits(two), c[-14:])) == len(two), "attention loop needs extra waits/pads"
    c += tr("att", 1) + [".p2align 6", "LA_loop:"] + body + upd + fin_it + stamp(6) + tr("att", 2)
    C, D = pv(1, V[1], S[(1,1)])
    e = [C, D,
         f"s_lshl_b32 s{sT}, s{sQB}, 3", f"s_lshl_b32 s{sT+1}, s{sA}, 1", f"s_add_u32 s{sT}, s{sT}, s{sT+1}",
         f"s_mul_i32 s{sT+10}, s{sT}, 40960", f"s_add_u32 s{sT+10}, s{sT+10}, {hx(WS_O)}",
         f"s_lshl_b32 s{sT+11}, s{sHEAD}, 10", f"s_add_u32 s{sT+11}, s{sT+11}, s{sT+10}",
         f"s_lshl_b32 s{sT}, s{sHEAD}, 8", f"s_add_u32 s{sT+10}, s{sT+10}, s{sT}", f"s_add_u32 s{sT+10}, s{sT+10}, 32768",
         ] + f3_addr(sT + 9) + [
         "LA_fin:", f"v_cmp_eq_u32 vcc, 0, v{VH}",
         f"v_bfe_u32 v{T+2}, v{VL16}, 8, 1", f"v_mul_u32_u24 v{T+2}, {40960 - 256}, v{T+2}", f"v_add_u32 v{T+2}, v{T+2}, v{VL16}", f"v_lshl_add_u32 v{T+2}, v{VH}, 30, v{T+2}"]
    for q in range(2):
        e += [f"v_cndmask_b32 v{T+q}, v{O[q]+8}, v{O[q]+12}, vcc", f"v_rcp_f32 v{T+4}, v{T+q}"]
        e += [f"v_mul_f32 v{16+12*q+j}, v{T+4}, v{O[q]+j}" for j in range(12)]
        P = [48+4*q, 49+4*q, 50+4*q, 51+4*q, 56+2*q, 57+2*q]
        e += [f"v_cvt_pk_bf16_f32 v{P[j]}, v{16+12*q+2*j}, v{16+12*q+2*j+1}" for j in range(6)]
        e += [f"v_and_b32 v{16+12*q+j}, 0x7f807f80, v{P[j]}" for j in range(6)]
        e += [f"v_pk_max_u16 v{16+12*q}, v{16+12*q}, v{16+12*q+j}" for j in range(1, 6)]
    e += ["v_permlane16_swap_b32 v56, v58", "v_permlane16_swap_b32 v57, v59", f"v_pk_max_u16 v16, v16, v28", f"v_add_u32 v16, 0x00800080, v16", f"v_and_b32 v16, 0x80008000, v16",
          f"v_min_f32 v{T+3}, v{T}, v{T+1}", f"v_add_f32 v{T}, v{T}, v{T+1}", f"v_cmp_eq_u32 s[{sT+6}:{sT+7}], 0, v16",
          f"v_cmp_gt_f32 vcc, 0x7f000000, v{T}", f"s_and_b64 s[{sT+4}:{sT+5}], vcc, s[{sT+6}:{sT+7}]", f"v_cmp_lt_f32 vcc, 0x35800000, v{T+3}",
          f"s_and_b64 vcc, vcc, s[{sT+4}:{sT+5}]", f"s_cmp_eq_u64 vcc, exec", f"s_cselect_b32 s{sT+3}, 5, s{sT+2}" if not opt("FORCESLOW") else f"s_mov_b32 s{sT+3}, s{sT+2}", f"s_cmp_eq_u32 s{sT+3}, 3",
          "s_cbranch_scc1 LA_slow"]
    e += [f"buffer_store_dwordx4 v[48:51], v{VL16}, {sr(SWS,4)}, s{sT+11} offen{SC}", f"s_add_u32 s{sT}, s{sT+11}, 40960",
          f"buffer_store_dwordx4 v[52:55], v{VL16}, {sr(SWS,4)}, s{sT} offen{SC}",
          f"buffer_store_dwordx4 v[56:59], v{T+2}, {sr(SWS,4)}, s{sT+10} offen{SC}"]
    e += [f"buffer_store_dword v160, v162, {sr(SWS,4)}, s{sT+9} offen{SC}"]
    e += stamp(7) + ["s_setprio 0"] + p3_setup() + g_items() + ["s_barrier"]
    c += fin(e, pre=fin_it[-12:]) + p3_gemm(0, 2, "L_p3a") + ["s_branch L_p3j"]
    return c + slow_path()

def f3_addr(d):
    return [f"s_lshl_b32 s{d}, s{sQB}, 2", f"s_add_u32 s{d}, s{d}, s{sA}", f"s_lshl_b32 s{d}, s{d}, 5", f"s_add_u32 s{d}, s{d}, s{sHEAD}",
            f"s_lshl_b32 s{d}, s{d}, 7", f"s_add_u32 s{d}, s{d}, {hx(WS_F3)}"]
def f2_addr():
    return [f"s_lshl_b32 s{sT}, s{sRB}, 2", f"s_add_u32 s{sT}, s{sT}, s{sA}", f"s_lshl_b32 s{sT}, s{sT}, 4", f"s_add_u32 s{sT}, s{sT}, s{sCB}",
            f"s_lshl_b32 s{sT}, s{sT}, 6", f"s_and_b32 s{sT+1}, s{sW}, 4", f"s_add_u32 s{sT}, s{sT}, s{sT+1}", f"s_lshl_b32 s{sT}, s{sT}, 1", f"s_add_u32 s{sT}, s{sT}, {hx(WS_F2)}"]
def fr_addr():
    return [f"s_lshl_b32 s{sT}, s{sTASK}, 5", f"s_add_u32 s{sT}, s{sT}, s{sA}", f"s_lshl_b32 s{sT}, s{sT}, 2", f"s_add_u32 s{sT}, s{sT}, {hx(WS_FR)}"]

def slow_path():
    kb, vb, i = sT + 4, sT + 5, sT + 6
    kf = K[0]; vf = V[0]
    def kload():
        return [f"s_lshr_b32 s{sT}, s{i}, 1", f"s_mul_i32 s{sT}, s{sT}, 2560", f"s_and_b32 s{sT+1}, s{i}, 1", f"s_lshl_b32 s{sT+1}, s{sT+1}, 8",
                f"s_add_u32 s{sT}, s{sT}, s{sT+1}", f"s_add_u32 s{sT}, s{sT}, s{kb}",
                f"buffer_load_dwordx2 {vr(kf,2)}, v{AK0}, {sr(SWS,4)}, s{sT} offen{SC}",
                f"buffer_load_dwordx2 {vr(kf+2,2)}, v{AK0}, {sr(SWS,4)}, s{sT} offen offset:512{SC}",
                f"buffer_load_dword v{kf+4}, v{AK2}, {sr(SWS,4)}, s{sT} offen{SC}"]
    c = ["LA_slow:",
         f"s_mul_i32 s{kb}, s{sHEAD}, {HS_QK}", f"s_add_u32 s{kb}, s{kb}, {hx(WS_K)}",
         f"s_mul_i32 s{vb}, s{sHEAD}, {HS_V}", f"s_add_u32 s{vb}, s{vb}, {hx(WS_V)}",
         f"v_subrev_u32 v{AK0}, {KPOS[3]}, v{AK0}", f"v_subrev_u32 v{AK2}, {KPOS[3]}, v{AK2}",
         f"v_mov_b32 v{Q[0]+5}, 0", f"v_mov_b32 v{Q[1]+5}, 0",
         f"v_mov_b32 v{T}, 0xff800000", f"v_mov_b32 v{T+2}, 0xff800000", f"s_mov_b32 s{i}, 0"]
    l1 = ["LA_s1:"] + kload()
    for q in range(2): l1 += list(qk(S[(q,0)], kf, q))
    for q in range(2): l1 += max16(T + 2*q, S[(q,0)], acc=True)
    l1 += [f"s_add_u32 s{i}, s{i}, 1", f"s_cmp_lt_u32 s{i}, 64", "s_cbranch_scc1 LA_s1"]
    mid = []
    for q in range(2): mid += xhalf_max(T + 2*q) + shift_split(q, T + 2*q)
    mid += [f"v_mov_b32 v{r}, 0" for r in range(O[0], O[0]+32)] + [f"s_mov_b32 s{i}, 0"]
    l2 = ["LA_s2:"] + kload()
    l2 += [f"s_mul_i32 s{sT}, s{i}, 1344", f"s_add_u32 s{sT}, s{sT}, s{vb}",
           f"buffer_load_dwordx4 {vr(vf,4)}, v{VVG}, {sr(SWS,4)}, s{sT} offen{SC}",
           f"buffer_load_dwordx4 {vr(vf+4,4)}, v{VVG}, {sr(SWS,4)}, s{sT} offen offset:672{SC}"]
    for q in range(2): l2 += list(qk(S[(q,0)], kf, q))
    for q in range(2):
        l2 += [f"v_exp_f32 v{S[(q,0)]+j}, v{S[(q,0)]+j}" for j in range(16)]
        l2 += list(pv(q, vf, S[(q,0)]))
    l2 += [f"s_add_u32 s{i}, s{i}, 1", f"s_cmp_lt_u32 s{i}, 64", "s_cbranch_scc1 LA_s2",
           f"s_mov_b32 s{sT+2}, 5", "s_nop 15", "s_branch LA_fin"]
    return fin(c + l1 + mid + l2)

GA = 16; FB = 96; NBUF = opt("NBUF", 5)
def gload(buf, sa, sb):
    f = FB + 24 * buf
    c = [f"buffer_load_dwordx4 {vr(f,4)}, v{VL16}, {sr(SWS,4)}, s{sa} offen{SC}"]
    for j in range(4): c += [f"buffer_load_dwordx4 {vr(f+4+4*j,4)}, v{VL16}, {sr(SWS,4)}, s{sb} offen offset:{1024*j}{SC}"]
    c += [f"buffer_load_dwordx4 {vr(f+20,4)}, v{VL2}, {sr(SWS,4)}, s{sb} offen{SC}",
          f"s_add_u32 s{sa}, s{sa}, 1024", f"s_add_u32 s{sb}, s{sb}, 5120"]
    return c
def gemm(nk, sa, sb, hooks):
    c = []
    for k in range(NBUF - 1): c += gload(k, sa, sb)
    for k in range(nk):
        c += hooks.get(k, [])
        f = FB + 24 * (k % NBUF)
        mm = [f"v_mfma_f32_32x32x16_bf16 {vr(GA+16*j,16)}, {vr(f+4+4*j,4)}, {vr(f,4)}, {vr(GA+16*j,16)}" for j in range(5)]
        ld = gload((k + NBUF - 1) % NBUF, sa, sb) if k + NBUF - 1 < nk else []
        for j in range(5):
            c += [mm[j]]
            if ld: c += [ld[j]] if j < 4 else ld[4:]
    return c
def slab_addr():
    a = SA
    return [f"v_and_b32 v{a+1}, 7, v{VTOK}", f"v_xor_b32 v{a+1}, v{a+1}, v{VH}", f"v_mul_u32_u24 v{a}, 640, v{VTOK}", f"v_lshl_add_u32 v{a}, v{a+1}, 4, v{a}",
            f"s_mul_i32 s{sT}, s{sA}, {KCH}", f"s_add_u32 s{sT}, s{sT}, {LK}", f"s_cmp_eq_u32 s{sA}, 1", f"s_cselect_b32 s{sT}, {LK}, s{sT}",
            f"s_cmp_eq_u32 s{sA}, 0", f"s_cselect_b32 s{sT}, 0, s{sT}", f"v_add_u32 v{a}, s{sT}, v{a}"] + [f"v_xor_b32 v{a+q}, {32*q}, v{a}" for q in range(1, 4)]
def slab_tile(acc, j): return [f"ds_write_b128 v{SA+q}, {vr(acc+4*q,4)} offset:{128*j}" for q in range(4)]
def wo_loads(c0, n):
    W0 = WOF + 40 * (3 - n)
    c = [f"s_mul_i32 s{sT}, s{sCG}, 40", f"s_add_u32 s{sT}, s{sT}, s{sA}", f"s_mul_i32 s{sT}, s{sT}, 5120",
         f"s_add_u32 s{sT}, s{sT}, {hx(WS_WOF + 1024*c0)}", f"s_mul_i32 s{sT+1}, s{sA}, 5120"]
    for k in range(10):
        c += [f"buffer_load_dwordx4 {vr(W0+40*j+4*k,4)}, v{VL16}, {sr(SWS,4)}, s{sT} offen offset:{1024*j}{SC}" for j in range(n)]
        if k < 9: c += [f"s_add_u32 s{sT}, s{sT}, {20480 if k < 8 else 5120}"]
        if k == 7: c += [f"s_add_u32 s{sT}, s{sT}, s{sT+1}"]
    return c
def item_loads():
    t = XV
    c = [f"v_lshrrev_b32 v{t}, 8, v{VL16}", f"v_lshl_add_u32 v{t}, s{sW}, 2, v{t}", f"v_bfe_u32 v{t+1}, v{VL16}, 4, 4",
         f"v_and_b32 v{t+2}, 7, v{t}", f"v_xor_b32 v{t+2}, v{t+2}, v{t+1}", f"v_mul_u32_u24 v{IA}, 640, v{t}", f"v_lshl_add_u32 v{IG}, v{t+1}, 2, v{IA}",
         f"v_lshl_add_u32 v{IA}, v{t+2}, 4, v{IA}", f"v_add_u32 v{IA+1}, {SLB[2]}, v{IA}",
         f"s_mul_i32 s{sT+1}, s{sRTILE}, {32*1280}", f"s_mul_i32 s{sT}, s{sCG}, 320", f"s_add_u32 s{sT+1}, s{sT+1}, s{sT}",
         f"v_lshl_add_u32 v{IG}, v{IG}, 1, s{sT+1}", f"v_lshrrev_b32 v{t+1}, 3, v{t+1}", f"v_lshl_add_u32 v{IG+1}, v{t+1}, 30, v{IG}"]
    return c + [f"buffer_load_dwordx2 {vr(XV+2*p,2)}, v{IG + (p == 2)}, {sr(SX,4)}, 0 offen offset:{128*p}" for p in range(3)]
def reduce4():
    c = []
    for p in range(3):
        c += [f"ds_read_b128 {vr(RED+16*p+4*s,4)}, v{IA + (s >> 1)} offset:{SLB[s] - SLB[s & 2] + 256*p}" for s in range(4)]
    for p in range(3):
        b = RED + 16 * p
        c += [f"v_add_f32 v{b+i}, v{b+i}, v{b+4+i}" for i in range(4)] + [f"v_add_f32 v{b+8+i}, v{b+8+i}, v{b+12+i}" for i in range(4)]
        c += [f"v_add_f32 v{b+i}, v{b+i}, v{b+8+i}" for i in range(4)]
    return c
def g_items():
    r = reduce4()
    for p in range(3):
        b = RED + 16 * p; g = GR + 4 * p
        r += [f"v_mul_f32 v{b+4+i}, {fl(-LOG2E)}, v{b+i}" for i in range(4)]
        r += [f"v_exp_f32 v{b+4+i}, v{b+4+i}" for i in range(4)]
        r += [f"v_add_f32 v{b+4+i}, 1.0, v{b+4+i}" for i in range(4)]
        r += [f"v_rcp_f32 v{b+4+i}, v{b+4+i}" for i in range(4)]
        r += [f"v_mul_f32 v{g+i}, v{b+i}, v{b+4+i}" for i in range(4)]
    return r
def p3_setup(slab=True):
    return [f"s_mul_i32 s{sT+4}, s{sRTILE}, 40", f"s_add_u32 s{sT+4}, s{sT+4}, s{sA}", f"s_add_u32 s{sT+5}, s{sT+4}, s{sA}",
            f"s_lshl_b32 s{sT+4}, s{sT+4}, 10", f"s_add_u32 s{sT+4}, s{sT+4}, {hx(WS_O)}", f"s_lshl_b32 s{sT+5}, s{sT+5}, 10", f"s_add_u32 s{sT+5}, s{sT+5}, {hx(WS_O + 32768)}",
            f"v_and_b32 v{PAD}, 0x2f0, v{VL16}", f"v_bfe_u32 v{PD}, v{VL16}, 8, 1", f"v_lshl_add_u32 v{PAD}, v{PD}, 3, v{PAD}",
            f"s_mov_b32 s{sT+6}, {SPIN}"] + (slab_addr() if slab else [])
def unpack(d, s):
    return [f"v_lshlrev_b32 v{d}, 16, v{s}", f"v_and_b32 v{d+1}, 0xffff0000, v{s}",
            f"v_lshlrev_b32 v{d+2}, 16, v{s+1}", f"v_and_b32 v{d+3}, 0xffff0000, v{s+1}"]
def bias2():
    t = FB
    c = [f"v_add_u32 v{t}, s{sA}, v{VH}", f"v_lshlrev_b32 v{t}, 20, v{t}", f"v_lshl_add_u32 v{t}, v{VTOK}, 1, v{t}", f"s_mul_i32 s{sT}, s{sCG}, 320",
         f"v_mov_b32 v{t+2}, 0x3f80", f"v_mov_b32 v{t+3}, 0"]
    c += [f"buffer_load_ushort v{t+4+2*j}, v{t}, {sr(SB2,4)}, s{sT} offen offset:{64*j}" for j in range(5)]
    c += [f"v_mov_b32 v{t+5+2*j}, 0" for j in range(5)]
    return c + [f"v_mfma_f32_32x32x8_bf16 {vr(GA+16*j,16)}, {vr(t+4+2*j,2)}, {vr(t+2,2)}, 0" for j in range(5)]
def b_phase2():
    sa, sb = sT + 11, sT + 7
    t = 2
    g = [f"v_add_u32 v{VL2}, 4096, v{VL16}",
         f"v_and_b32 v{t}, 3, v{VTOK}", f"v_min_u32 v{t}, 2, v{t}", f"v_bfe_u32 v{t+1}, v{VTOK}, 2, 2", f"v_mad_u32_u24 v{t}, v{t+1}, 10, v{t}",
         f"s_mul_i32 s{sT}, s{sCG}, 5", f"s_lshr_b32 s{sT}, s{sT}, 1", f"v_add_lshl_u32 v{t}, v{t}, s{sT}, 7", f"s_mov_b32 s{sT+3}, {hx(WS_FR)}",
         f"v_add_u32 v9, {hx(WS_FR - WS_F2)}, v{t}"]
    g += [f"v_lshlrev_b32 v{t}, 3, v{VL16}", f"v_and_b32 v{t}, 0x780, v{t}", f"s_lshl_b32 s{sT+3}, s{sRTILE}, 11", f"v_add_u32 v{t}, s{sT+3}, v{t}",
         f"v_cmp_eq_u32 vcc, 0, v{VH}", f"v_cndmask_b32 v{t}, v9, v{t}, vcc", f"s_mov_b32 s{sT+3}, {hx(WS_F2)}",
         f"s_lshl_b32 s{sT}, s2, 2", f"s_add_u32 s{sT}, s{sT}, s{sA}", f"s_cmp_eq_u32 s{sT}, 0", "s_cbranch_scc0 LB_nep"]
    ep = [f"v_lshlrev_b32 v10, 3, v{VL16}"]
    for q in range(4):
        ep += [f"s_mov_b32 s{sT}, {hx(WS_F1 + 8192*q)}", poll_load(11, 10, f"s{sT}"), "s_waitcnt vmcnt(0)"] + poll_check(f"LB_pe{q}", 11, 10, f"s{sT}")
    g += opaque(ep + [f"s_mov_b32 s{sT}, {hx(WS_EP)}"] + flag_store(f"s{sT}", t=10)) + ["LB_nep:"] + item_loads() + bias2() + ["s_waitcnt vmcnt(0)", poll_load(4, t, f"s{sT+3}", 4)] + tr("att", 2) + ["s_barrier"] + tr("att", 3)
    g += poll_check("LB_p2", 4, t, f"s{sT+3}", 4) + stamp(6) + slab_addr()
    g += [f"s_mul_i32 s{sa}, s{sRTILE}, 108", f"s_mul_i32 s{sT}, s{sA}, 27", f"s_add_u32 s{sa}, s{sa}, s{sT}", f"s_lshl_b32 s{sa}, s{sa}, 10",
          f"s_add_u32 s{sa}, s{sa}, {hx(WS_H)}",
          f"s_mul_i32 s{sb}, s{sCG}, 108", f"s_add_u32 s{sb}, s{sb}, s{sT}", f"s_mul_i32 s{sb}, s{sb}, 5120", f"s_add_u32 s{sb}, s{sb}, {hx(WS_W2F)}"]
    v3 = vchunk(VPOS[3]) + [mark("v3")]
    h2, h3 = [int(x) for x in opt("GH", "8,21").split(",")]
    g += gemm(27, sa, sb, {h2: tr("att", 4) + ["s_barrier"] + tr("att", 5) + v3, h3: [waitfor("v3")] + tr("att", 6) + ["s_barrier"] + tr("att", 7)})
    g += wo_loads(2, 3)
    for j in range(5): g += slab_tile(GA + 16*j, j)
    g += ["s_waitcnt lgkmcnt(0)"] + stamp(7) + tr("att", 8) + ["s_barrier"] + tr("att", 9) + p3_setup(False) + g_items() + [f"s_cmp_eq_u32 s{sA}, 0", "s_cbranch_scc0 LB_np3"]
    g += opaque(flat([f"v_lshlrev_b32 v2, 7, v{VTOK}", f"s_lshr_b32 s{sT+3}, s{sRTILE}, 1", f"s_lshl_b32 s{sT+3}, s{sT+3}, 12", f"s_add_u32 s{sT+3}, s{sT+3}, {hx(WS_F3)}",
          poll_load(PD, 2, f"s{sT+3}"), "s_waitcnt vmcnt(0)"] + poll_check("LB_p3", PD, 2, f"s{sT+3}"))) + ["LB_np3:", "s_barrier"]
    return fin(g)

def o_load(k):
    if k < 8: return [f"s_add_u32 s{sT}, s{sT+4}, {4096*k}", f"buffer_load_dwordx4 {vr(OF[k],4)}, v{VL16}, {sr(SWS,4)}, s{sT} offen{SC}"]
    return [f"buffer_load_dwordx2 {vr(OF[k]+2*t,2)}, v{PAD}, {sr(SWS,4)}, s{sT+5} offen offset:{1024*(k-8) + 256*t}{SC}" for t in range(2)]
def p3_gemm(c0, n, lab):
    W0 = WOF + 40 * (3 - n)
    mm = lambda j, k: f"v_mfma_f32_32x32x16_bf16 {vr(RED+16*j,16)}, {vr(W0+40*j+4*k,4)}, {vr(OF[k],4)}, {'0' if k == 0 else vr(RED+16*j,16)}"
    c = stamp(8) + [f"{lab}:"] + flat([o_load(k) for k in range(10)])
    for k in range(10):
        c += [mm(0, k), f"v_max3_u32 v{PD}, v{OF[k]}, v{OF[k]+1}, {'0' if k == 0 else f'v{PD}'}", f"v_max3_u32 v{PD}, v{OF[k]+2}, v{OF[k]+3}, v{PD}"]
    c += [mm(1, 0), f"v_cmp_eq_u32 vcc, -1, v{PD}", f"s_sub_u32 s{sT+6}, s{sT+6}, 1", "s_cselect_b64 vcc, 0, vcc", "s_cmp_lg_u64 vcc, 0", f"s_cbranch_scc1 {lab}"]
    for j in range(1, n):
        for k in range(10):
            if (j, k) != (1, 0): c += [mm(j, k)]
            if 5 <= k < 9: c += [slab_tile(RED + 16*(j-1), c0 + j - 1)[k - 5]]
    c += slab_tile(RED + 16*(n-1), c0 + n - 1)
    return fin(c + ["s_waitcnt lgkmcnt(0)"])

def phase3():
    r = p3_gemm(2, 3, "L_p3b") + ["L_p3j:"]
    z = ["s_barrier"] + reduce4()
    for p in range(3):
        b = RED + 16 * p
        z += unpack(b + 4, XV + 2*p)
        z += [f"v_fma_f32 v{b+i}, v{b+i}, v{GR+4*p+i}, v{b+4+i}" for i in range(4)]
        z += [f"v_cvt_pk_bf16_f32 v{b+12}, v{b}, v{b+1}", f"v_cvt_pk_bf16_f32 v{b+13}, v{b+2}, v{b+3}",
              f"buffer_store_dwordx2 {vr(b+12,2)}, v{IG + (p == 2)}, {sr(SOUT,4)}, 0 offen offset:{128*p}"]
    return r + fin(z)

def kernel(name):
    isv = [f"s_sub_u32 s{sT}, s{sCB}, 10", f"s_cmp_lt_u32 s{sT}, 5"]
    def helpers(R, nxt):
        c = [f"s_cmp_eq_u32 s{sCB}, 15", f"s_cbranch_scc1 LH{R}h"] + isv + [f"s_cbranch_scc0 LH{R}q"]
        c += fin(helper(R, 'V'), pre=C_PRE) + [f"s_branch {nxt}", f"LH{R}h:"] + fin(helper(R, 'H'), pre=C_PRE) + [f"s_branch {nxt}", f"LH{R}q:"]
        return c + fin(helper(R, 'QK'), pre=C_PRE)
    er, ev = ext('N')
    c = ["L_first:"] + stamp(0) + stamp(10, True) + tr("r0", 11) + prologue()
    c += [f"s_cmp_lt_u32 s{sW}, 4", "s_cbranch_scc1 LA"]
    c += ["s_setprio 3"] + b_round0() + stamp(3) + [f"s_mov_b32 s{sR}, 1"] + isv + ["s_cbranch_scc0 LC"]
    c += c_body('V') + ["s_branch LB_2"]
    c += ["LC:"] + c_body('N') + [f"s_cmp_eq_u32 s{sR}, 2", "s_cbranch_scc1 LA_3", f"s_cmp_eq_u32 s{sR}, 3", "s_cbranch_scc1 LB_t4"]
    c += ["LB_2:", f"s_mov_b32 s{sR}, 2"] + helpers(2, "LB_3")
    c += ["LB_3:", f"s_mov_b32 s{sR}, 3", f"s_cmp_eq_u32 s{sNR}, 4", "s_cbranch_scc1 LC"]
    c += fin(stamp(4) + wdma(4) + [mark("w4")] + f1_addr(True) + kv_base(0) + poll_check("LB_p1", PF, PA, f"s{sT+3}", 4) + first_kv()
             + f1_addr(False) + [waitfor("w4"), "s_barrier", f"s_cmp_ge_u32 s{sTASK}, 40", "s_cbranch_scc1 LB_r1"] + opaque(relayout_read())
             + ["LB_r1:", "s_waitcnt vmcnt(0) lgkmcnt(0)", "s_barrier"] + stamp(5) + f2_addr() + flag_store2(f"s{sT}", TB)
             + [f"s_cmp_ge_u32 s{sTASK}, 40", "s_cbranch_scc1 LB_r2"] + opaque(relayout_store()) + ["LB_r2:"]
             + poll_check("LB_p5", PF, PA, f"s{sT+3}", 4) + rest_kv() + ["s_branch LB_g"])
    c += ["LB_t4:"] + fin(stamp(4) + stamp(5) + er + f1_addr(False) + kv_base(1) + [f"s_lshl_b32 s{sCT}, s{sHU}, 1", f"s_add_u32 s{sCT}, s{sCT}, 2"] + ev + epi_h(0) + epi_h(1) + [mark("h"), "s_setprio 0"]
             + poll_check("LB_p4", PF, PA, f"s{sT+3}", 4) + rest_kv()[:54] + f2_addr() + [waitfor("h")] + flag_store2(f"s{sT}", TB) + rest_kv()[54:], pre=C_PRE)
    c += ["LB_g:", "s_setprio 0"] + tr("att", 1) + b_phase2() + phase3()
    c += ["s_waitcnt vmcnt(0)"] * bool(STAMP) + stamp(9) + stamp(11, True) + stamp_flush(SWS, sW) + ["L_end:", "s_endpgm"]
    c += fix_hazards(["LA:"] + code_prefetch() + lane_setup('A') + aim(1) + stamp(1) + ["s_waitcnt lgkmcnt(0)", f"s_add_u32 s{sN}, s{sN}, 1", "s_setprio 1"]
                     + isv + ["s_cbranch_scc0 LA_n"] + ones_rows())
    c += a_round0('V') + ["s_branch LA_1", "LA_n:"] + a_round0('N')
    c += ["LA_1:", f"s_mov_b32 s{sR}, 1"] + stamp(3) + helpers(1, "LA_2") + ["LA_2:", f"s_mov_b32 s{sR}, 2", "s_branch LC"]
    c += ["LA_3:", f"s_mov_b32 s{sR}, 3", f"s_lshl_b32 s{sCT}, s{sHU}, 1", f"s_cmp_eq_u32 s{sNR}, 4", "s_cbranch_scc1 LA_h3"]
    c += fin(stamp(4) + er + ev + epi_h(0) + ["s_barrier"] + epi_h(1) + ["s_barrier", "s_branch LA_att"], pre=C_PRE)
    c += ["LA_h3:"] + fin(helper(3, 'H') + stamp(4), pre=C_PRE) + ["LA_att:"] + attn() + ["L_last:"]
    return kernel_head(name) + render(c)

if __name__ == "__main__":
    import sys
    name = "recurrent_scan__mha_block__mixer_channel_mlp__prompt_kernel"
    HEAD = open("recurrent_scan__mha_block__mixer_channel_mlp__prompt.s.ref").read().split("; Override")[0]
    s = HEAD + "; @launch grid=(256,1,1) block=(512,1,1) lds=163840\n" + '.amdgcn_target "amdgcn-amd-amdhsa--gfx950"\n'
    s += kernel(name) + kernel_desc(name, 256, 102)
    open(sys.argv[1], "w").write(s)
```

```python
from common import *

sW, sA, sN, sRB, sCB = 3, 4, 5, 6, 7
SX, SWD, SWS, SB1, SB2, SOUT = 8, 12, 16, 20, 28, 32
sWQ, sCSB, sDST = 24, 26, 27
sW1, sW2, sWO = 36, 38, 40
sWOFF, sST, sR, sNR, sCT, sHU, sQKROW, sVOFF, sHOFF, sXOFF, sM4, sTASK = range(42, 54)
sHEAD, sQB, sRTILE, sCG = 54, 55, 56, 57
sT = 58
U = 16384
MISC = 9 * U
XBUF = [3*U, 7*U, 0, 3*U, 7*U]; WSL0 = [5, 6, 2, 5, 6]
L_PART = MISC; L_RS = MISC + 2048; L_CNT = MISC + 3072; L_ST = MISC + 4096; L_Q = MISC + 4096 + 0
VCH = 21504; KCH = 20480
LK = 43520; KPOS = [LK + 2*KCH, LK + 3*KCH, LK, LK + KCH]; VPOS = [LK + 4*KCH, 0, VCH, LK + 4*KCH]
SLB = [0, LK, LK + 2*KCH, LK + 3*KCH]
WS_F2 = 0x1c00000
WS_FR = 0x1c40000
WS_F3 = 0x1c80000
WS_F1 = 0x1cc0000
WS_EP = 0x1cf0000
SC = " sc1"
SPIN = 100000

class Tag(Ins):
    def __init__(self, name, kind):
        Ins.__init__(self, ""); self.name = name; self.tk = kind
def mark(name): return Tag(name, 'mark')
def waitfor(name, extra="", older=0):
    t = Tag(name, 'wait'); t.extra = extra; t.older = older; return t
def resolve(code):
    out = []; n = 0; at = {}
    for x in code:
        x = as_ins(x)
        if isinstance(x, Tag):
            if x.tk == 'mark': at[x.name] = n
            else:
                k = n - at[x.name] if x.name in at else n + x.older
                k = min(k, 63)
                out.append(Ins(f"s_waitcnt vmcnt({k}){x.extra}"))
            continue
        if x.kind == 'vmem' and not x.opaque: n += 1
        out.append(x)
    return out
def flat(c):
    o = []
    for y in c: o += flat(y) if isinstance(y, (list, tuple)) else [y]
    return o
def cost(x):
    t = 0
    for y in flat([x]):
        y = as_ins(y)
        t += {'valu': 13 if (getattr(y, 'trans', False) or 'permlane' in y.mn) else 7, 'salu': 5, 'ds': 8, 'vmem': 14, 'mfma': 30, 'wait': 5}.get(y.kind, 0)
        if y.kind == 'nop': t += 4 * y.n
    return t
DSP = opt("DSP", 90); LSP = opt("LSP", 20)
def sched(main, dmas=(), side=(), dsp=None):
    main = list(main); side = list(side); dsp = dsp or DSP
    d = []; cur = []
    for x in dmas:
        cur.append(x)
        if isinstance(x, Tag): d[-1] += cur; cur = []
        elif not isinstance(x, list) and as_ins(x).kind == 'vmem': d.append(cur); cur = []
    if cur: d[-1] += cur
    out = []; t = 0; nd = 0; nl = 0
    while main or d or side:
        if side and t >= nl: x = side.pop(0); nl = t + LSP
        elif d and (t >= nd or not (main or side)): x = d.pop(0); nd = t + dsp
        elif main: x = main.pop(0)
        else: x = f"s_nop {min(15, max(0, (nl - t + 3) // 4 - 1))}"
        out.append(x); t += cost(x)
    return out
def fin(c, pend_lg=(), pre=()):
    return fix_hazards(fix_waits(resolve(flat(c)), pend_lg=pend_lg), pre)
def pk(op, d, *src): return f"v_pk_{op}_f32 {vr(d,2)}, " + ", ".join(s if isinstance(s, str) else vr(s,2) for s in src)

X = 96; ACC = [64, 80]; WF = 32
VT = [2, 3]; VT4 = [4, 5]; EXTX = 6; RSA = 8; RS2 = 9; GC = 10; CSI = 11; VCA = 12
VL16, VH, VTOK = 13, 14, 15
CSA = 16; CSD = [20, 24]; VW = 28
TB = 32; CF = 48
VBIAS = [0, 1]
LA = 6

def c_read(n, r0=False):
    g, k = n & 1, (n % 80) >> 1; f = WF + 4 * (n % 8)
    s, l = divmod(k, 8)
    if r0: a, o = (VT[g], (WSL0[s] - 5) * U) if WSL0[s] >= 5 else (EXTX + g, 0)
    else: a, o = (VT4[g], 0) if s == 4 else (VT[g], s * U)
    o += l * 2048
    return [f"ds_read_b64_tr_b16 {vr(f,2)}, v{a} offset:{o}", f"ds_read_b64_tr_b16 {vr(f+2,2)}, v{a} offset:{o+512}"]
def c_mfma(n, orient):
    g, k = n & 1, n >> 1; f = WF + 4 * (n % 8); x = X + 4 * k
    a, b = (vr(f,4), vr(x,4)) if orient == 'N' else (vr(x,4), vr(f,4))
    i = Ins(f"v_mfma_f32_32x32x16_bf16 {vr(ACC[g],16)}, {a}, {b}, {'0' if k == 0 else vr(ACC[g],16)}")
    if n % 2 == 0: i.r = i.r | vset(WF + 4 * ((n + 1) % 8), 4)
    return i
def c_first(): return flat([c_read(n) for n in range(LA)])
def c_end(n): return ["s_waitcnt lgkmcnt(0)", "s_setprio 3"] + tr("body", 4) + ["s_barrier"] + tr("body", 5) if n == 76 else []
def c_body(orient):
    c = tr("body", 0) + c_first() + ["s_setprio 1"]
    for n in range(80):
        if n == 40: c += ["s_waitcnt vmcnt(0)"] + tr("body", 2) + ["s_barrier"] + tr("body", 3)
        c += c_end(n) + [c_mfma(n, orient)]
        if n + LA < 80: c += c_read(n + LA)
    return fin(c + tr("body", 6))
C_PRE = [c_mfma(78, 'N'), c_mfma(79, 'N')]

AD = 20; AONE = RSA; VXA = RS2
def xreads(s, t):
    xr = [[f"v_add_u32 v{t}, {XBUF[s]}, v{VXA if t == VCA else TB+4}", f"ds_read_b128 {vr(X+32*s,4)}, v{t}"]]
    for i in range(1, 8): xr.append([f"v_xor_b32 v{t}, {32*(i ^ (i-1))}, v{t}", f"ds_read_b128 {vr(X+32*s+4*i,4)}, v{t}"])
    return xr
def a_round0(orient):
    R = lambda n: c_read(n, True)
    xr = xreads(0, VCA)
    c = tr("r0", 0) + ["s_barrier"] + tr("r0", 1) + stamp(2) + xr[0] + R(0) + R(1) + xr[1:3] + R(2) + R(3) + xr[3:]
    for n in range(80):
        s, l = divmod(n, 16)
        if l == (4 if s == 0 else 0):
            for i in range(32):
                x = X + 32 * s + i
                c += [f"v_dot2c_f32_bf16 v{AD + (i & 3)}, v{x}, v{AONE}", f"v_dot2c_f32_bf16 v{AD + 4 + (i & 3)}, v{x}, v{x}"]
        if n == 76: c += ["s_waitcnt lgkmcnt(0)", "s_setprio 3", "s_barrier"]
        c += [c_mfma(n, orient)]
        if l == 0: c += R(n + 4) + R(n + 5)
        if l < 10: c += R(n + 6)
        if s < 4:
            if l == 11:
                xr = xreads(s + 1, VCA)
                c += ["s_waitcnt lgkmcnt(0)"] + tr("r0", 2*s+2) + ["s_barrier"] + tr("r0", 2*s+3)
            if l >= 12: c += R(n + 4) + xr[2*(l-12)] + xr[2*(l-12)+1]
        if n == opt("PFN", 17) and opt("PF1", 1): c += touch(sW1, 640*3456) + touch(sW2, 1728*1280) + touch(sWO, 640*1280)
        if n == 70:
            c += [f"v_add_f32 v{AD}, v{AD}, v{AD+1}", f"v_add_f32 v{AD+2}, v{AD+2}, v{AD+3}", f"v_add_f32 v{AD+4}, v{AD+4}, v{AD+5}", f"v_add_f32 v{AD+6}, v{AD+6}, v{AD+7}"]
        if n == 71: c += [f"v_add_f32 v{EXTX}, v{AD}, v{AD+2}", f"v_add_f32 v{EXTX+1}, v{AD+4}, v{AD+6}"]
        if 72 <= n < 76: c += [f"v_mov_b32 v{CSD[0]+2*(n-72)}, 0", f"v_mov_b32 v{CSD[0]+2*(n-72)+1}, 0"]
    return fin(c + tr("r0", 10))

def wdma(st, unit=None):
    if unit is not None: c = [f"s_add_u32 m0, s{sM4}, {hx((unit-4)*U)}"]
    elif st == 4: c = [f"s_mov_b32 m0, s{sM4}"]
    else: c = [f"s_add_u32 m0, s{sDST}, {st*U}"]
    c += [f"s_mul_i32 s{sT}, s{sST}, {st}", f"s_add_u32 s{sT}, s{sT}, s{sWOFF}"]
    c += [f"buffer_load_dwordx4 v{VW+e}, {sr(SWD,4)}, s{sT} offen offset:{1024*e} lds" for e in range(4)]
    return c
VX = TB
def xdma(stage):
    c = [f"s_lshl_b32 s{sT}, s{sA}, 13", f"s_add_u32 m0, s{sT}, {XBUF[stage]}"]
    c += [f"buffer_load_dwordx4 v{VX+q}, {sr(SX,4)}, s{sXOFF} offen offset:{1024*q} lds" for q in range(4)]
    c += [f"s_add_u32 m0, m0, 4096", f"s_add_u32 s{sT}, s{sXOFF}, 20480"]
    c += [f"buffer_load_dwordx4 v{VX+q}, {sr(SX,4)}, s{sT} offen offset:{1024*q} lds" for q in range(4)]
    c += [f"s_add_u32 s{sXOFF}, s{sXOFF}, 256"]
    return c
def set_w():
    a, b = sT + 5, sT + 6
    return [f"s_lshl_b32 s{sST}, s{a}, 7", f"s_mul_i32 s{sWOFF}, s{sA}, s{a}", f"s_lshl_b32 s{sWOFF}, s{sWOFF}, 5", f"s_add_u32 s{sWOFF}, s{sWOFF}, s{b}",
            f"v_lshrrev_b32 v{VW+1}, 7, v{VL16}", f"v_mul_u32_u24 v{VW}, s{a}, v{VW+1}",
            f"v_lshrrev_b32 v{VW+1}, 2, v{VL16}", f"v_xor_b32 v{VW+1}, v{VW+1}, v{VL16}",
            f"v_and_b32 v{VW+1}, 0x40, v{VW+1}", f"v_and_b32 v{VW+2}, 0x30, v{VL16}", f"v_add3_u32 v{VW}, v{VW}, v{VW+1}, v{VW+2}",
            f"s_lshl_b32 s{a}, s{a}, 3", f"s_sub_u32 s{a}, s{a}, 1024",
            f"v_add_u32 v{VW+1}, s{a}, v{VW}", f"v_add_u32 v{VW+2}, s{a}, v{VW+1}", f"v_add_u32 v{VW+3}, s{a}, v{VW+2}"]
def aim(R):
    a, b = sT + 5, sT + 6
    if R < 2:
        return [f"s_lshl_b32 s{b}, s{sCB}, 8", f"s_cmp_eq_u32 s{sCB}, 15", f"s_cselect_b32 s{b}, {24*128}, s{b}",
                f"s_cselect_b32 s{SWD}, s{sW1}, s{sWQ}", f"s_cselect_b32 s{SWD+1}, s{sW1+1}, s{sWQ+1}",
                f"s_cselect_b32 s{a}, 0, 384", f"s_add_u32 s{a}, s{a}, 3456", f"s_mul_i32 s{SWD+2}, s{a}, 640"] + [f"s_add_u32 s{b}, s{b}, 128"] * R + set_w()
    c = [f"s_mov_b32 s{SWD}, s{sW1}", f"s_mov_b32 s{SWD+1}, s{sW1+1}", f"s_mov_b32 s{SWD+2}, {640*3456}", f"s_movk_i32 s{a}, 3456",
         f"s_lshl_b32 s{b}, s{sHU}, 7"] + [f"s_add_u32 s{b}, s{b}, 128"] * (R - 2)
    return c + set_w()
def aim_next3(lab):
    a, b = sT + 5, sT + 6
    c = [f"s_cmp_eq_u32 s{sNR}, 3", f"s_cbranch_scc1 {lab}_r", f"s_add_u32 s{sWOFF}, s{sWOFF}, 128", f"s_branch {lab}_d", f"{lab}_r:",
         f"s_mul_i32 s{a}, s{sTASK}, 6554", f"s_lshr_b32 s{a}, s{a}, 16", f"s_mul_i32 s{b}, s{a}, 10", f"s_sub_u32 s{b}, s{sTASK}, s{b}", f"s_lshl_b32 s{b}, s{b}, 7",
         f"s_cmp_lt_u32 s{a}, 3", f"s_cselect_b32 s{SWD}, s{sW2}, s{sWO}", f"s_cselect_b32 s{SWD+1}, s{sW2+1}, s{sWO+1}",
         f"s_cselect_b32 s{SWD+2}, {1088*1280}, 0", f"s_cselect_b32 s{a}, s{a}, 0", f"s_add_u32 s{SWD+2}, s{SWD+2}, {640*1280}",
         f"s_mul_i32 s{a}, s{a}, {640*1280}", f"s_add_u32 s{b}, s{b}, s{a}",
         f"s_cmp_lt_u32 s{sTASK}, 40", f"s_cselect_b32 s{SWD+2}, s{SWD+2}, 0", f"s_movk_i32 s{a}, 1280"] + set_w() + [f"{lab}_d:"]
    return opaque(c)

def cs_stage(off_sgpr, off):
    c = []
    for g in range(2):
        rd = [f"ds_read_b64_tr_b16 {vr(CF+8*g+2*j,2)}, v{VCA} offset:{off + (j>>1)*2048 + (j&1)*512}" for j in range(4)]
        c += [[f"v_add_u32 v{VCA}, s{off_sgpr}, v{VT4[g]}", rd[0]]] + rd[1:]
    return c
def csm(): return [[f"v_smfmac_f32_16x16x64_bf16 {vr(CSD[g],4)}, {vr(CSA,4)}, {vr(CF+8*g,8)}, v{CSI}" for g in range(2)]]
GAP = [[], [], [], []]
def bias_ld(R):
    t = VCA
    c = [f"v_lshlrev_b32 v{t}, 1, v{VTOK}", f"v_xor_b32 v{VBIAS[0]}, 1, v{VH}", f"v_add_u32 v{VBIAS[0]}, s{sA}, v{VBIAS[0]}", f"v_lshl_add_u32 v{t}, v{VBIAS[0]}, 20, v{t}"]
    if R < 2: c += [f"s_cmp_eq_u32 s{sCB}, 15", f"s_cselect_b32 s{SB1+2}, 3456, 0", f"s_movk_i32 s{sT}, {(24+R)*128}"]
    else: c += [f"s_movk_i32 s{SB1+2}, 3456", f"s_lshl_b32 s{sT}, s{sHU}, 7"] + [f"s_add_u32 s{sT}, s{sT}, 128"] * (R - 2)
    return c + [f"buffer_load_short_d16_hi v{VBIAS[g]}, v{t}, {sr(SB1,4)}, s{sT} offen offset:{64*g}" for g in range(2)]
def partw(R):
    c = [f"s_lshl_b32 s{sT}, s{sA}, 2", f"s_add_u32 s{sT}, s{sT}, {L_PART}", f"v_add_u32 v{VCA}, s{sT}, v{VL16}"]
    for g in range(2):
        c += [f"v_add_f32 v{CSD[g]}, v{CSD[g]}, v{CSD[g]+1}", f"v_add_f32 v{CSD[g]}, v{CSD[g]}, v{VBIAS[g]}"]
    c += [f"ds_write2st64_b32 v{VCA}, v{CSD[0]}, v{CSD[1]} offset0:0 offset1:4"]
    for g in range(2): c += [f"v_mov_b32 v{CSD[g]}, 0", f"v_mov_b32 v{CSD[g]+1}, 0"]
    return c
def ext(orient):
    c = [f"v_add_u32 v{VCA}, {L_PART}, v{VL16}"] + [f"ds_read_b128 {vr(TB+4*g,4)}, v{VCA} offset:{1024*g}" for g in range(2)]
    v = []
    for g in range(2):
        t = TB + 4 * g
        v += [f"v_add_f32 v{t}, v{t}, v{t+1}", f"v_add_f32 v{t+2}, v{t+2}, v{t+3}", f"v_add_f32 v{t}, v{t}, v{t+2}",
              f"v_cvt_pk_bf16_f32 v{t+3}, v{t}, 0", f"v_lshlrev_b32 v{t+1}, 16, v{t+3}", f"v_sub_f32 v{t+1}, v{t}, v{t+1}",
              f"v_cvt_pk_bf16_f32 v{t+2}, v{t}, v{t+1}"]
    for g in range(2):
        t = TB + 4 * g
        a, b = (vr(t+2,2), vr(EXTX,2)) if orient == 'N' else (vr(EXTX,2), vr(t+2,2))
        v += [f"v_mfma_f32_32x32x8_bf16 {vr(ACC[g],16)}, {a}, {b}, {vr(ACC[g],16)}"]
    return c, v

def epi_qk(g):
    c = []; q = TB; b = TB + 1
    if g == 0:
        c += [f"v_bfe_u32 v{q}, v{VL16}, 8, 1", f"v_lshl_add_u32 v{q}, v{q}, 1, v{VH}", f"v_lshl_add_u32 v{q}, s{sCT}, 3, v{q}",
              f"v_and_b32 v{b}, 0xf0, v{VL16}", f"v_lshl_add_u32 v{b}, v{q}, 9, v{b}", f"v_mul_u32_u24 v{q}, 13108, v{q}"]
    for p in range(2):
        a = ACC[g] + 8 * p; o = TB + 8 + 4 * p; t = TB + 2 + p
        c += [f"v_lshrrev_b32 v{t}, 16, v{q}", f"v_mul_u32_u24 v{t}, {HS_QK - 2560}, v{t}", f"v_add_u32 v{t}, v{t}, v{b}"]
        if 2*g + p < 3: c += [f"v_add_u32 v{q}, {4*13108}, v{q}"]
        if 2*g + p == 1: c += [f"v_add_u32 v{b}, 4096, v{b}"]
        c += [f"v_mul_f32 v{a+i}, v{RSA}, v{a+i}" for i in range(8)]
        c += [f"v_cvt_pk_bf16_f32 v{o+i}, v{a+2*i}, v{a+2*i+1}" for i in (0, 2, 1, 3)]
        c += [f"v_permlane16_swap_b32 v{o}, v{o+2}", f"v_permlane16_swap_b32 v{o+1}, v{o+3}",
              f"buffer_store_dwordx4 {vr(o,4)}, v{t}, {sr(SWS,4)}, s{sQKROW} offen offset:{2048*p}{SC}"]
    return c
def v_addr(ad, a2, first_col):
    return [f"v_mul_u32_u24 v{ad}, 3277, v{a2}", f"v_lshrrev_b32 v{ad}, 16, v{ad}",
            f"v_mul_u32_u24 v{ad}, {HS_V - 320}, v{ad}", f"v_lshl_add_u32 v{ad}, v{a2}, 4, v{ad}",
            f"v_mul_u32_u24 v{a2}, 336, v{VH}", f"v_add_u32 v{ad}, v{ad}, v{a2}"]
def epi_v(g):
    e = ACC[g]; ad = TB + 12; a2 = TB + 13; ra = TB + 14; r = TB; p = TB + 8
    c = [[f"s_lshl_b32 s{sT+4}, s{sA}, 7", f"s_add_u32 s{sT+4}, s{sT+4}, {L_RS}", f"v_lshl_add_u32 v{ra}, v{VH}, 4, s{sT+4}"]]
    for j in range(2):
        c += [f"ds_read_b128 {vr(r+4*q,4)}, v{ra} offset:{64*j+32*q}" for q in range(2)]
        if j == 0:
            c += [[f"s_lshl_b32 s{sT+4}, s{sCT}, 5", f"s_sub_u32 s{sT+4}, s{sT+4}, {1280 - 32*g}", f"v_add_u32 v{a2}, s{sT+4}, v{VTOK}"]] + v_addr(ad, a2, 0)
        c += [f"v_mul_f32 v{e+8*j+i}, v{r+i}, v{e+8*j+i}" for i in range(8)]
        c += [f"v_cvt_pk_bf16_f32 v{p+i}, v{e+8*j+2*i}, v{e+8*j+2*i+1}" for i in range(4)]
        c += [f"buffer_store_dwordx4 {vr(p,4)}, v{ad}, {sr(SWS,4)}, s{sVOFF} offen offset:{672*j}{SC}"]
    return c
def epi_h(g):
    c = []
    for hf in range(2):
        a = ACC[g] + 8 * hf; t = TB; p = TB + 8 + 4 * hf
        R8 = range(8)
        c += [f"v_mul_f32 v{a+i}, v{RS2}, v{a+i}" for i in R8]
        c += [f"v_mul_f32 v{t+i}, v{a+i}, v{a+i}" for i in R8]
        c += [f"v_fmaak_f32 v{t+i}, v{t+i}, v{GC}, {fl(GC1)}" for i in R8]
        c += [f"v_mul_f32 v{t+i}, v{t+i}, v{a+i}" for i in R8]
        c += [f"v_exp_f32 v{t+i}, v{t+i}" for i in R8]
        c += [f"v_add_f32 v{t+i}, 1.0, v{t+i}" for i in R8]
        c += [f"v_rcp_f32 v{t+i}, v{t+i}" for i in R8]
        c += [f"v_mul_f32 v{a+i}, v{a+i}, v{t+i}" for i in R8]
        c += [f"v_cvt_pk_bf16_f32 v{p+i}, v{a+2*i}, v{a+2*i+1}" for i in range(4)]
        c += [[f"s_lshl_b32 s{sT+4}, s{sCT}, 11", f"s_add_u32 s{sT+4}, s{sT+4}, s{sHOFF}",
               f"buffer_store_dwordx4 {vr(p,4)}, v{VL16}, {sr(SWS,4)}, s{sT+4} offen offset:{2048*g + 1024*hf}{SC}"]]
    return c
EPI = {'QK': epi_qk, 'V': epi_v, 'H': epi_h}

def rbf(d, s): return [f"v_cvt_pk_bf16_f32 v{d}, v{s}, v{s}", f"v_and_b32 v{d}, 0xffff0000, v{d}"]
def stats(vt):
    m, v, d, u = EXTX, EXTX + 1, TB + 8, TB + 9
    D = TB + 12; t = TB + 8
    c = [
          f"v_permlane32_swap_b32 v{m}, v{v}", f"v_add_f32 v{m}, v{m}, v{v}", f"v_mul_f32 v{m}, {fl(1/640)}, v{m}", f"v_mov_b32 v{v}, v{m}",
          f"v_permlane32_swap_b32 v{m}, v{v}",
          f"v_fma_f32 v{v}, -v{m}, v{m}, v{v}", f"v_max_f32 v{v}, 0, v{v}"]
    c += rbf(d, v) + [f"v_add_f32 v{d}, {fl(1e-5)}, v{d}"] + rbf(d, d) + [f"v_sqrt_f32 v{d}, v{d}"] + rbf(d, d)
    c += [f"v_rcp_f32 v{u}, v{d}",
          [f"s_lshl_b32 s{sT+4}, s{sA}, 7", f"s_add_u32 s{sT+4}, s{sT+4}, {L_RS}", f"v_lshl_add_u32 v{D}, v{VTOK}, 2, s{sT+4}", f"ds_write_b32 v{D}, v{u}"] if vt else [],
          [f"s_cmp_lt_u32 s{sCB}, 5", f"s_cselect_b32 s{sT+4}, {fl(QSCALE)}, 1.0", f"v_mul_f32 v{RSA}, s{sT+4}, v{u}"],
          f"v_mul_f32 v{v}, v{v}, v{u}", f"v_mul_f32 v{v}, v{v}, v{u}"]
    c += rbf(v, v) + [f"v_add_f32 v{v}, {fl(1e-5)}, v{v}"] + rbf(v, v) + [f"v_sqrt_f32 v{v}, v{v}"] + rbf(v, v)
    c += [f"v_mul_f32 v{d}, v{d}, v{v}", f"v_rcp_f32 v{RS2}, v{d}", f"v_sub_f32 v{u}, 0, v{m}",
          [f"v_cmp_eq_u32 vcc, 0, v{VH}", f"v_cndmask_b32 v{u}, v{d}, v{u}, vcc"],
          f"v_cvt_pk_bf16_f32 v{EXTX}, v{u}, v{u}", f"v_and_b32 v{d}, 0xffff0000, v{EXTX}",
          f"v_sub_f32 v{u}, v{u}, v{d}", f"v_cvt_pk_bf16_f32 v{EXTX+1}, v{u}, 0"]
    return c
def st_addr(t): return [f"s_lshl_b32 s{sT+4}, s{sA}, 10", f"s_add_u32 s{sT+4}, s{sT+4}, {L_ST}", f"v_add_u32 v{t}, s{sT+4}, v{VL16}"]

def poll_load(t, voff, soff, n=1): return f"buffer_load_dword{'x4' if n == 4 else ''} {vr(t,n)}, v{voff}, {sr(SWS,4)}, {soff} offen{SC}"
def poll_check(lab, t, voff, soff, n=1):
    c = [f"s_mov_b32 s{sT+2}, {SPIN}", f"{lab}:"]
    if n == 4:
        c += [f"v_xor_b32 v{t+i}, s{sN}, v{t+i}" for i in range(4)]
        c += [f"v_or3_b32 v{t}, v{t}, v{t+1}, v{t+2}", f"v_or_b32 v{t}, v{t}, v{t+3}", f"v_cmp_ne_u32 vcc, 0, v{t}"]
    else: c += [f"v_cmp_ne_u32 vcc, s{sN}, v{t}"]
    c += ["s_nop 0", "s_cmp_eq_u64 vcc, 0", f"s_cbranch_scc1 {lab}_x"]
    c += opaque([f"s_sleep {opt('SLEEP', 1)}", poll_load(t, voff, soff, n), f"s_sub_u32 s{sT+2}, s{sT+2}, 1", "s_waitcnt vmcnt(0)", f"s_cbranch_scc0 {lab}"])
    return c + [f"{lab}_x:"]
sK, sV, sPC = sT + 9, sT + 10, sT + 8
def kvdma(n, so, lds_base):
    c = []
    for j in range(n):
        c += [f"s_add_u32 m0, s{sPC}, {lds_base + 4096*j}",
              f"buffer_load_dwordx4 v{VL16}, {sr(SWS,4)}, s{so} offen{SC} lds", f"s_add_u32 s{so}, s{so}, 4096"]
    return c
def vchunk(pos):
    return kvdma(5, sV, pos) + [f"s_cmp_eq_u32 s{sA}, 0", f"s_cselect_b32 s{sT+1}, s{sV}, {hx(WS_SIZE)}", f"s_cselect_b32 s{sT}, {hx(pos + 20480 - MISC - 15360)}, 0",
            f"s_add_u32 m0, s{sT}, {MISC + 15360}", f"buffer_load_dwordx4 v{VL16}, {sr(SWS,4)}, s{sT+1} offen{SC} lds", f"s_add_u32 s{sV}, s{sV}, 1024"]
PF, PA = 96, 100
def f1_addr(first):
    t = PA + 1
    c = [f"v_lshrrev_b32 v{t}, {6 if first else 8}, v{VL16}"] + ([f"v_min_u32 v{t}, 5, v{t}"] if first else [])
    c += [f"v_and_b32 v{t+1}, 1, v{t}", f"v_mul_u32_u24 v{t+1}, 19, v{t+1}", f"v_lshrrev_b32 v{t}, 1, v{t}",
          f"v_mul_u32_u24 v{PA}, 640, v{t}", f"s_mul_i32 s{sT+3}, s{sHEAD}, 20", f"s_add_u32 s{sT+3}, s{sT+3}, 640", f"v_add3_u32 v{PA}, v{PA}, v{t+1}, s{sT+3}",
          f"v_lshrrev_b32 v{PA}, 7, v{PA}"]
    if first:
        c += [f"v_bfe_u32 v{t+1}, v{VL16}, 4, 2", f"v_lshl_add_u32 v{PA}, v{PA}, 4, v{t+1}",
              f"v_and_b32 v{t+2}, {hx(~2)}, v{PA}", f"s_lshl_b32 s{sT+3}, s{sQB}, 1", f"s_sub_u32 s{sT+3}, s{sT+3}, 240", f"v_add_u32 v{t+2}, s{sT+3}, v{t+2}",
              f"v_cmp_eq_u32 vcc, 2, v{t}", f"v_cndmask_b32 v{PA}, v{PA}, v{t+2}, vcc"]
    else:
        c += [f"v_bfe_u32 v{t+1}, v{VL16}, 4, 4", f"v_lshl_add_u32 v{PA}, v{PA}, 4, v{t+1}"]
    return c + [f"v_lshlrev_b32 v{PA}, 7, v{PA}", f"s_mov_b32 s{sT+3}, {hx(WS_F1)}", poll_load(PF, PA, f"s{sT+3}", 4)]
def kv_base(skip):
    return [f"s_lshl_b32 s{sPC}, s{sA}, 10",
            f"s_mul_i32 s{sK}, s{sHEAD}, {HS_QK}", f"s_add_u32 s{sK}, s{sK}, s{sPC}",
            f"s_mul_i32 s{sT+7}, s{sQB}, 10240", f"s_add_u32 s{sT+7}, s{sT+7}, s{sK}", f"s_add_u32 s{sK}, s{sK}, {hx(WS_K + skip*KCH)}",
            f"s_mul_i32 s{sV}, s{sHEAD}, {HS_V}", f"s_add_u32 s{sV}, s{sV}, {hx(WS_V + skip*VCH)}", f"s_add_u32 s{sV}, s{sV}, s{sPC}"]
def first_kv(): return kvdma(3, sT + 7, L_Q) + kvdma(5, sK, KPOS[0]) + vchunk(VPOS[0]) + [mark("kv0")]
def rest_kv(): return kvdma(5, sK, KPOS[1]) + vchunk(VPOS[1]) + kvdma(10, sK, KPOS[2]) + vchunk(VPOS[2])
def flag_store2(soff, t):
    return [f"v_lshlrev_b32 v{t+2}, 21, v{VL16}", f"v_mov_b32 v{t}, s{sN}", f"v_mov_b32 v{t+1}, s{sN}", f"buffer_store_dwordx2 {vr(t,2)}, v{t+2}, {sr(SWS,4)}, {soff} offen{SC}"]
def flag_store(soff, t):
    return [f"v_lshlrev_b32 v{t}, 21, v{VL16}", f"v_mov_b32 v{t+1}, s{sN}", f"buffer_store_dword v{t+1}, v{t}, {sr(SWS,4)}, {soff} offen{SC}"]
def f1_signal():
    return [[f"s_lshl_b32 s{sT+4}, s{sCB}, 4", f"s_add_u32 s{sT+4}, s{sT+4}, s{sRB}", f"s_lshl_b32 s{sT+4}, s{sT+4}, 5", f"s_add_u32 s{sT+4}, s{sT+4}, s{sA}",
             f"s_lshl_b32 s{sT+4}, s{sT+4}, 2", f"s_add_u32 s{sT+4}, s{sT+4}, {hx(WS_F1)}"] + flag_store(f"s{sT+4}", CSD[0] + 2)
            + [f"v_mov_b32 v{CSD[0]+2}, 0", f"v_mov_b32 v{CSD[0]+3}, 0"]]
def take(lst, budget):
    t = 0
    for i, x in enumerate(lst):
        t += cost(x)
        if t > budget: return lst[:i], lst[i:]
    return lst, []
def helper(R, etype):
    er, ev = ext('V' if etype == 'V' else 'N')
    epi = EPI[etype](0) + EPI[etype](1)
    c = tr("body", 0) + er
    if R == 2: c += st_addr(TB + 8) + [f"ds_read_b128 {vr(EXTX,4)}, v{TB+8}"]
    if R == 3: c += [f"s_add_u32 s{sWOFF}, s{sWOFF}, 128"]
    main = (stats(etype == 'V') if R == 1 else []) + ev + epi
    late = cs_stage(sM4, 0)
    late = [[late[0][0], f"v_subrev_u32 v{VCA}, {4*U}, v{VCA}", late[0][1]]] + late[1:4] + [[late[4][0], f"v_subrev_u32 v{VCA}, {4*U}, v{VCA}", late[4][1]]] + late[5:]
    st = [cs_stage(sCSB, s * U) for s in range(4)] + [late]
    ma, mb = csm()[0]
    cs1 = st[0] + [ma] + st[1][:4] + [mb] + st[1][4:] + [ma] + st[2][:4] + [mb] + st[2][4:] + [ma]
    cs2 = st[3][:4] + [mb] + st[3][4:] + [ma] + st[4][:4] + [mb] + st[4][4:] + [ma]
    y1 = tr("body", 2) + [waitfor("m1")] + tr("body", 3) + ["s_barrier"]
    if R < 3:
        nxt = aim(2) if R == 1 else aim_next3("LH2" + etype)
        d = [nxt] + wdma(0) + wdma(1) + wdma(2) + [mark("m2")] + wdma(3)
        c += wdma(4) + [mark("m1")] + bias_ld(R)
        if R == 1:
            m1, m2 = take(main, 520)
            c += sched(m1, d[:23], cs1[:14], dsp=70) + y1 + sched(m2, d[23:], cs1[14:] + cs2 + GAP + [mb], dsp=70)
            c += st_addr(VCA) + [f"ds_write_b128 v{VCA}, {vr(EXTX,4)}"]
        else:
            m1, m2 = take(main, 760) if etype == 'H' else (main, [])
            c += sched(m1 + [mark("st")], side=cs1[:9]) + sched([], d[:8], dsp=40) + y1
            c += sched([], d[8:15], cs1[9:19], dsp=50) + tr("body", 8) + [waitfor("st")] + tr("body", 9) + f1_signal()
            c += sched(m2, d[15:], cs1[19:] + cs2 + GAP + [mb], dsp=50)
        c += partw(R)
        c += tr("body", 4) + [waitfor("m2", " lgkmcnt(0)")] + tr("body", 5)
        if R == 1 and etype == 'QK': c += [f"s_cmp_lt_u32 s{sCB}, 5", "s_cbranch_scc1 LA_nmk"] + opaque(o_marks()) + ["LA_nmk:"]
        c += ["s_barrier"]
    else:
        f1 = f1_addr(True)
        c += wdma(4) + [mark("m1")] + bias_ld(R)
        m0, m1 = take(main, opt("K0", 200)); m1, m2 = take(m1, opt("K1", 400)); m2, m3 = take(m2, opt("K2", 900))
        c += sched(m0 + [f1], side=cs1[:9]) + tr("body", 7) + sched(m1 + [kv_base(0)], side=cs1[9:])
        c += tr("body", 8) + poll_check("LH3p", PF, PA, f"s{sT+3}", 4) + tr("body", 9) + y1
        c += sched(m2, first_kv(), cs2 + GAP + [mb], dsp=30) + partw(R)
        c += tr("body", 4) + [waitfor("kv0", " lgkmcnt(0)")] + tr("body", 5) + ["s_barrier"] + m3 + tr("body", 6)
    return c

def lane_setup(grp):
    t = TB + 8
    c = [f"v_bfe_u32 v{t}, v0, 2, 2", f"v_lshl_add_u32 v{t+1}, v{VH}, 3, v{t}", f"v_lshlrev_b32 v{t+1}, 7, v{t+1}",
         f"v_lshrrev_b32 v{t}, 1, v{t}", f"v_lshl_add_u32 v{t+1}, v{t}, 6, v{t+1}",
         f"v_bfe_u32 v{t}, v0, 4, 1", f"v_lshl_add_u32 v{t+1}, v{t}, 5, v{t+1}",
         f"v_and_b32 v{t}, 3, v0", f"v_lshl_add_u32 v{VT[0]}, v{t}, 3, v{t+1}", f"v_xor_b32 v{VT[1]}, 64, v{VT[0]}",
         f"v_add_u32 v{VT4[0]}, {4*U}, v{VT[0]}", f"v_add_u32 v{VT4[1]}, {4*U}, v{VT[1]}"]
    xa = VXA if grp == 'A' else TB + 4
    c += [f"v_and_b32 v{t}, 15, v0", f"v_xor_b32 v{t}, v{t}, v{VH}", f"v_lshlrev_b32 v{t}, 4, v{t}",
          f"v_lshl_add_u32 v{t}, v{VTOK}, 8, v{t}", f"s_lshl_b32 s{sT}, s{sA}, 13", f"v_add_u32 v{xa}, s{sT}, v{t}"]
    if grp == 'A':
        c += [f"v_add_u32 v{EXTX+g}, {2*U}, v{VT[g]}" for g in range(2)] + [f"v_add_u32 v{VT[g]}, {5*U}, v{VT[g]}" for g in range(2)]
        c += [f"s_sub_u32 s{sCSB}, s{sM4}, {8*U}", f"s_add_u32 s{sDST}, s{sM4}, {U}", f"v_mov_b32 v{AONE}, 0x3f803f80"]
    else:
        c += [f"s_sub_u32 s{sCSB}, s{sM4}, {3*U}", f"s_sub_u32 s{sDST}, s{sM4}, {4*U}"]
    c += [f"v_mov_b32 v{GC}, {fl(GC2)}", f"v_mov_b32 v{t+1}, 0x3f803f80", f"v_and_b32 v{t}, 14, v0",
          f"v_cmp_eq_u32 vcc, 0, v{t}", f"v_cndmask_b32 v{CSA}, 0, v{t+1}, vcc", f"v_mov_b32 v{CSA+1}, v{CSA}",
          f"v_cmp_eq_u32 vcc, 4, v{t}", f"v_cndmask_b32 v{CSA+2}, 0, v{t+1}, vcc", f"v_mov_b32 v{CSA+3}, v{CSA+2}",
          f"v_and_b32 v{t}, 1, v0", f"v_mul_u32_u24 v{t}, 0xaaaa, v{t}", f"v_add_u32 v{CSI}, 0x4444, v{t}"]
    c += [f"v_mov_b32 v{r}, 0" for r in range(CSD[0], CSD[0]+8)]
    c += [f"s_lshl_b32 s{sT}, s{sRB}, 2", f"s_add_u32 s{sT}, s{sT}, s{sA}",
          f"s_lshr_b32 s{sT+1}, s{sT}, 1", f"s_mul_i32 s{sQKROW}, s{sT+1}, 2560", f"s_and_b32 s{sT+1}, s{sT}, 1",
          f"s_lshl_b32 s{sT+1}, s{sT+1}, 8", f"s_add_u32 s{sQKROW}, s{sQKROW}, s{sT+1}",
          f"s_mul_i32 s{sVOFF}, s{sT}, 1344", f"s_add_u32 s{sVOFF}, s{sVOFF}, {hx(WS_V)}",
          f"s_mul_i32 s{sHOFF}, s{sT}, {108*1024}", f"s_add_u32 s{sHOFF}, s{sHOFF}, {hx(WS_H)}",
          f"s_lshl_b32 s{sCT}, s{sCB}, 2", f"s_cmp_eq_u32 s{sCB}, 15", f"s_cselect_b32 s{sCT}, 48, s{sCT}"]
    if grp == 'B': c += [f"s_add_u32 s{sCT}, s{sCT}, 2"]
    return c
def ones_rows():
    t = TB + 8
    return [f"s_lshl_b32 s{sT}, s{sCB}, 7", f"s_sub_u32 s{sT}, s{sT}, {1280 - 19}", f"s_mul_i32 s{sT+1}, s{sT}, 3277", f"s_lshr_b32 s{sT+1}, s{sT+1}, 16",
            f"v_lshrrev_b32 v{t}, 2, v0", f"v_add_u32 v{t}, s{sT+1}, v{t}",
            f"v_mul_u32_u24 v{t+1}, 20, v{t}", f"s_add_u32 s{sT}, s{sT}, {128 - 19}", f"v_cmp_gt_u32 vcc, s{sT}, v{t+1}",
            f"v_mul_u32_u24 v{t}, {HS_V}, v{t}", f"v_and_b32 v{t+1}, 3, v0", f"v_mul_u32_u24 v{t+1}, 336, v{t+1}", f"v_add_u32 v{t}, v{t}, v{t+1}",
            f"v_mov_b32 v{t+1}, {hx(OOB)}", f"v_cndmask_b32 v{t}, v{t+1}, v{t}, vcc"] + [f"v_mov_b32 v{t+4+i}, 0x3f803f80" for i in range(4)] + [
            f"buffer_store_dwordx4 {vr(t+4,4)}, v{t}, {sr(SWS,4)}, s{sVOFF} offen offset:320{SC}"]

def o_marks():
    t = TB + 8
    c = [f"s_lshl_b32 s{sT}, s{sCB}, 7", f"s_sub_u32 s{sT}, s{sT}, {640 - 19}", f"s_mul_i32 s{sT+1}, s{sT}, 3277", f"s_lshr_b32 s{sT+1}, s{sT+1}, 16",
         f"s_add_u32 s{sT}, s{sT}, 128", f"s_mul_i32 s{sT}, s{sT}, 3277", f"s_lshr_b32 s{sT}, s{sT}, 16",
         f"s_lshl_b32 s{sT+2}, s{sRB}, 2", f"s_add_u32 s{sT+2}, s{sT+2}, s{sA}", f"s_mul_i32 s{sT+2}, s{sT+2}, 40960", f"s_add_u32 s{sT+2}, s{sT+2}, {hx(WS_O)}",
         f"v_lshrrev_b32 v{t}, 8, v{VL16}", f"v_lshl_add_u32 v{t}, v{t}, 28, v{VL16}"] + [f"v_mov_b32 v{t+4+i}, -1" for i in range(4)]
    c += ["LA_mk:", f"s_lshl_b32 s{sT+3}, s{sT+1}, 10", f"s_add_u32 s{sT+3}, s{sT+3}, s{sT+2}",
          f"buffer_store_dwordx4 {vr(t+4,4)}, v{VL16}, {sr(SWS,4)}, s{sT+3} offen{SC}",
          f"s_lshl_b32 s{sT+3}, s{sT+1}, 8", f"s_add_u32 s{sT+3}, s{sT+3}, s{sT+2}", f"s_add_u32 s{sT+3}, s{sT+3}, 32768",
          f"buffer_store_dwordx4 {vr(t+4,4)}, v{t}, {sr(SWS,4)}, s{sT+3} offen{SC}",
          f"s_add_u32 s{sT+1}, s{sT+1}, 1", f"s_cmp_lt_u32 s{sT+1}, s{sT}", "s_cbranch_scc1 LA_mk"]
    return c

def b_round0():
    c = xdma(0) + aim(0) + wdma(0, WSL0[0]) + [mark("d0")] + lane_setup('B')
    c += bias_ld(0)
    c += xdma(1) + wdma(1, WSL0[1]) + [mark("d1")] + stamp(1) + ["s_waitcnt lgkmcnt(0)", f"s_add_u32 s{sN}, s{sN}, 1"]
    for s in range(5):
        c += tr("r0", 2*s) + [waitfor(f"d{s}", " lgkmcnt(0)")] + tr("r0", 2*s+1) + ["s_barrier"]
        if s == 0: c += stamp(2)
        c += [f"s_add_u32 s{sT+1}, s{sM4}, {hx((WSL0[s]-8)*U)}"]
        side = xreads(s, TB + 5) + cs_stage(sT + 1, 0)
        if s < 3: d = xdma(s + 2) + wdma(s + 2, WSL0[s + 2]) + [mark(f"d{s+2}")]
        if s == 3: d = [f"s_add_u32 s{sWOFF}, s{sWOFF}, 128"] + wdma(0) + [mark("m1")] + wdma(1) + wdma(2) + [mark("m2")]
        if s == 4: d = wdma(3)
        c += sched([], d, side, dsp=24) + csm()
    c += aim(2) + partw(0) + [waitfor("m2", " lgkmcnt(0)"), "s_barrier"]
    return fin(c + tr("r0", 10))

RL = 112
def relayout_read():
    t = TB; u = sT
    c = [f"v_and_b32 v{t}, 0x1ff, v{VT[0]}", f"s_cmp_lt_u32 s{sTASK}, 30",
         f"s_cselect_b32 s{u}, 16, 20", f"s_cselect_b32 s{u+1}, 4, 40", f"s_cselect_b32 s{u+4}, 8, 20", f"s_cselect_b32 s{u+5}, 16, 80", f"s_cselect_b32 s{u+6}, 512, 16",
         f"s_lshl_b32 s{u}, s{u}, 7", f"s_lshl_b32 s{u+1}, s{u+1}, 7", f"s_lshl_b32 s{u+4}, s{u+4}, 7", f"s_lshl_b32 s{u+5}, s{u+5}, 7", f"s_lshl_b32 s{u+6}, s{u+6}, 7",
         f"s_mul_i32 s{u+2}, s{u}, s{sA}", f"s_lshl_b32 s{u+2}, s{u+2}, 3",
         f"v_lshl_add_u32 v{t+1}, v{VH}, 9, v{t}", f"v_add_u32 v{t+1}, s{u+2}, v{t+1}"]
    for k in range(8):
        c += [f"v_xor_b32 v{t+2}, 64, v{t+1}"]
        for g in range(2):
            c += [f"ds_read_b64_tr_b16 {vr(RL+8*k+4*g,2)}, v{t+1+g}", f"ds_read_b64_tr_b16 {vr(RL+8*k+4*g+2,2)}, v{t+1+g} offset:1024"]
        c += [f"v_add_u32 v{t+1}, s{u}, v{t+1}"]
    c += [f"s_mul_i32 s{u+2}, s{u+5}, s{sA}", f"s_lshl_b32 s{u+2}, s{u+2}, 1", f"s_add_u32 s{u+2}, s{u+2}, s{u+6}",
          f"v_mad_u32_u24 v{t+1}, v{VH}, s{u+1}, v{t}", f"v_add_u32 v{t+1}, s{u+2}, v{t+1}"]
    for k in (8, 9):
        c += [f"v_add_u32 v{t+2}, s{u+4}, v{t+1}", f"v_xor_b32 v{t+3}, 64, v{t+1}", f"v_xor_b32 v{t+4}, 64, v{t+2}"]
        c += [f"ds_read_b64_tr_b16 {vr(RL+8*k+2*i,2)}, v{t+1+i}" for i in range(4)]
        c += [f"v_add_u32 v{t+1}, s{u+5}, v{t+1}"]
    return c
def relayout_store():
    u = sT; d0, d1, ks, lim = sR, sCT, sXOFF, sST
    c = [f"s_mul_i32 s{u+2}, s{sTASK}, 6554", f"s_lshr_b32 s{u+2}, s{u+2}, 16",
         f"s_mul_i32 s{u}, s{u+2}, 10", f"s_sub_u32 s{u}, s{sTASK}, s{u}", f"s_lshl_b32 s{u+6}, s{u}, 1",
         f"s_cmp_lt_u32 s{u+2}, 3", f"s_cselect_b32 s{u+5}, 108, 40", f"s_cselect_b32 s{u+4}, 0, {hx(WS_WOF - WS_W2F)}", f"s_cselect_b32 s{u+2}, s{u+2}, 0",
         f"s_mul_i32 s{u+2}, s{u+2}, {40*5120}", f"s_mul_i32 s{u+5}, s{u+5}, 5120", f"s_sub_u32 s{lim}, s{u+5}, s{u+2}",
         f"s_add_u32 s{u+4}, s{u+4}, s{u+2}", f"s_add_u32 s{u+4}, s{u+4}, {hx(WS_W2F)}"]
    for g, d in ((0, d0), (1, d1)):
        c += [f"s_add_u32 s{u}, s{u+6}, {g}", f"s_mul_i32 s{u+1}, s{u}, 52429", f"s_lshr_b32 s{u+1}, s{u+1}, 18",
              f"s_mul_i32 s{u+2}, s{u+1}, 5", f"s_sub_u32 s{u}, s{u}, s{u+2}", f"s_lshl_b32 s{u}, s{u}, 10",
              f"s_mul_i32 s{u+1}, s{u+1}, s{u+5}", f"s_add_u32 s{d}, s{u}, s{u+1}", f"s_add_u32 s{d}, s{d}, s{u+4}"]
    c += [f"s_mul_i32 s{ks}, s{sA}, {8*5120}"]
    for k in range(10):
        if k == 8: c += [f"s_mul_i32 s{ks}, s{sA}, {2*5120}", f"s_add_u32 s{ks}, s{ks}, {32*5120}"]
        c += [f"s_cmp_lt_u32 s{ks}, s{lim}", f"s_cbranch_scc0 LB_rs{k}", f"s_add_u32 s{u}, s{ks}, s{d0}", f"s_add_u32 s{u+1}, s{ks}, s{d1}",
              f"buffer_store_dwordx4 {vr(RL+8*k,4)}, v{VL16}, {sr(SWS,4)}, s{u} offen{SC}",
              f"buffer_store_dwordx4 {vr(RL+8*k+4,4)}, v{VL16}, {sr(SWS,4)}, s{u+1} offen{SC}", f"LB_rs{k}:", f"s_add_u32 s{ks}, s{ks}, 5120"]
    return c + fr_addr() + ["s_waitcnt vmcnt(0)"] + flag_store(f"s{sT}", TB)

def prologue():
    t = TB + 8; j = sT + 3
    c = ["s_cmp_ge_u32 s2, 256", "s_cbranch_scc1 L_end",
         f"s_load_dwordx2 {sr(SX,2)}, s[0:1], 0", f"s_load_dwordx2 {sr(sWQ,2)}, s[0:1], 8", f"s_load_dwordx2 {sr(sW1,2)}, s[0:1], 32",
         f"s_load_dwordx2 {sr(SWS,2)}, s[0:1], 80", f"s_load_dwordx2 {sr(SB1,2)}, s[0:1], 40", f"s_load_dwordx2 {sr(sWO,2)}, s[0:1], 16",
         f"s_load_dwordx2 {sr(sW2,2)}, s[0:1], 48", f"s_load_dwordx2 {sr(SB2,2)}, s[0:1], 56", f"s_load_dwordx2 {sr(SOUT,2)}, s[0:1], 64",
         f"v_lshrrev_b32 v1, 6, v0", f"v_and_b32 v0, 63, v0", f"v_readfirstlane_b32 s{sW}, v1",
         f"v_lshlrev_b32 v{VL16}, 4, v0", f"v_lshrrev_b32 v{VH}, 5, v0", f"v_and_b32 v{VTOK}, 31, v0",
         f"s_and_b32 s{sA}, s{sW}, 3", f"s_lshr_b32 s{j}, s2, 3", f"s_and_b32 s{sT}, s2, 7",
         f"s_and_b32 s{sRB}, s2, 3", f"s_lshl_b32 s{sRB}, s{sRB}, 2", f"s_and_b32 s{sCG}, s{j}, 3", f"s_add_u32 s{sRB}, s{sRB}, s{sCG}",
         f"s_lshr_b32 s{sT+1}, s{j}, 2", f"s_lshl_b32 s{sCB}, s{sT+1}, 1", f"s_lshr_b32 s{sT+2}, s{sT}, 2", f"s_add_u32 s{sCB}, s{sCB}, s{sT+2}",
         f"s_lshl_b32 s{sRTILE}, s{sT}, 3", f"s_add_u32 s{sRTILE}, s{sRTILE}, s{sT+1}",
         f"s_lshl_b32 s{sHEAD}, s{sT}, 2", f"s_lshr_b32 s{sT+2}, s{j}, 3", f"s_add_u32 s{sHEAD}, s{sHEAD}, s{sT+2}", f"s_and_b32 s{sQB}, s{j}, 7",
         f"s_mul_i32 s{sTASK}, s{sT}, 5", f"s_sub_u32 s{sT+1}, s{j}, 20", f"s_add_u32 s{sTASK}, s{sTASK}, s{sT+1}",
         f"s_cmp_lt_u32 s{sT+1}, 5", f"s_cselect_b32 s{sTASK}, s{sTASK}, 99",
         f"s_lshl_b32 s{sHU}, s{sCB}, 1", f"s_add_u32 s{sT}, s{sCB}, 9", f"s_cmp_lt_u32 s{sCB}, 9", f"s_cselect_b32 s{sHU}, s{sHU}, s{sT}",
         f"s_cselect_b32 s{sNR}, 4, 3", f"s_cmp_eq_u32 s{sCB}, 15", f"s_cselect_b32 s{sHU}, 26, s{sHU}",
         f"s_lshl_b32 s{sT}, s{sRB}, 2", f"s_add_u32 s{sT}, s{sT}, s{sA}", f"s_mul_i32 s{sXOFF}, s{sT}, {32*1280}",
         f"s_lshl_b32 s{sM4}, s{sA}, 12", f"s_add_u32 s{sM4}, s{sM4}, {4*U}",
         f"v_lshrrev_b32 v{t}, 4, v0", f"v_xor_b32 v{t+1}, v{t}, v0", f"v_and_b32 v{t+1}, 15, v{t+1}", f"v_lshlrev_b32 v{t+1}, 4, v{t+1}",
         f"v_mul_u32_u24 v{t}, 1280, v{t}", f"v_add_u32 v{VX}, v{t}, v{t+1}"]
    for q in range(1, 4):
        c += [f"v_xor_b32 v{t+2}, {64*q}, v{t+1}", f"v_add_u32 v{t+2}, {4096*q}, v{t+2}", f"v_add_u32 v{VX+q}, v{t}, v{t+2}"]
    for d, size in ((SX, 2621440), (SWD, 0), (SWS, WS_SIZE), (SB1, 0), (SB2, 1280), (SOUT, 2621440)):
        c += [f"s_mov_b32 s{d+2}, {hx(size)}", f"s_mov_b32 s{d+3}, 0x00020000"]
    c += ["s_waitcnt lgkmcnt(0)", f"s_add_u32 s{sT+8}, s{SWS}, {hx(WS_EP)}", f"s_addc_u32 s{sT+9}, s{SWS+1}, 0", f"s_load_dword s{sN}, {sr(sT+8,2)}, 0"]
    return fix_hazards(c)
def touch(ptr, nbytes):
    n = -(-nbytes // 128 // 1024); t = VCA; d = sT + 6
    return [f"s_mov_b32 s{d}, s{ptr}", f"s_mov_b32 s{d+1}, s{ptr+1}", f"s_mov_b32 s{d+2}, {nbytes}", f"s_mov_b32 s{d+3}, 0x00020000",
            f"s_lshl_b32 s{sT}, s2, 2", f"s_add_u32 s{sT}, s{sT}, s{sA}", f"s_mul_i32 s{sT}, s{sT}, {n*128}",
            f"v_min_u32 v{t}, {16*(n-1)}, v{VL16}", f"v_lshl_add_u32 v{t}, v{t}, 3, s{sT}", f"buffer_load_dword v1, v{t}, {sr(d,4)}, 0 offen"]
def page_touch():
    c = [f"s_lshl_b32 s{sT}, s{sA}, 23", f"s_add_u32 s{sT+6}, s{SWS}, s{sT}", f"s_addc_u32 s{sT+7}, s{SWS+1}, 0"]
    for k in range(8):
        c += [f"s_load_dword s101, {sr(sT+6,2)}, 0", f"s_add_u32 s{sT+6}, s{sT+6}, 0x100000", f"s_addc_u32 s{sT+7}, s{sT+7}, 0"]
    c += [f"s_mul_i32 s{sT}, s{sA}, 0xa0000", f"s_add_u32 s{sT+6}, s{SOUT}, s{sT}", f"s_addc_u32 s{sT+7}, s{SOUT+1}, 0", f"s_load_dword s101, {sr(sT+6,2)}, 0"]
    return c
def code_prefetch():
    t = TB + 8
    return [f"s_getpc_b64 s[{sT+6}:{sT+7}]", "L_pc:", f"s_sub_u32 s{sT+6}, s{sT+6}, L_pc-L_first", f"s_subb_u32 s{sT+7}, s{sT+7}, 0",
            f"s_lshr_b32 s{sT}, s2, 3", f"s_lshl_b32 s{sT}, s{sT}, 2", f"s_add_u32 s{sT}, s{sT}, s{sA}", f"s_lshl_b32 s{sT}, s{sT}, 7",
            f"v_lshlrev_b32 v{t}, 14, v0", f"v_add_u32 v{t}, s{sT}, v{t}", f"v_min_u32 v{t}, L_last-L_first-4, v{t}",
            f"global_load_dword v1, v{t}, s[{sT+6}:{sT+7}]"]

S = {(0,0): 16, (1,0): 32, (0,1): 48, (1,1): 64}
O = [80, 96]; Q = [112, 118]; K = [124, 130]; V = [136, 144]; IDX = 152
AK0, AK1, AK2, AV, AVM, VVG = 153, 154, 155, 156, 157, 158
sIT, sDK, sDV = sT + 2, sT + 6, sT + 7
T = 2
PAT = opt("PAT", "CkeeDkweeAeeeBeeeeeeeee,CveeDveeAeeeBeeeeeeeee").split(",")
WOF = 124; RED = 16; OF = [64 + 4*i for i in range(10)]; GR = 104; PD = 116; XV = 244; IA = 250; IG = 252; VL2 = 254; SA = 4; PAD = 3

def qk(dst, kf, q):
    return (f"v_mfma_f32_32x32x16_bf16 {vr(dst,16)}, {vr(kf,4)}, {vr(Q[q],4)}, 0",
            f"v_mfma_f32_32x32x8_bf16 {vr(dst,16)}, {vr(kf+4,2)}, {vr(Q[q]+4,2)}, {vr(dst,16)}")
def pv(q, vf, s):
    return (f"v_smfmac_f32_32x32x32_bf16 {vr(O[q],16)}, {vr(vf,4)}, {vr(s,8)}, v{IDX}",
            f"v_smfmac_f32_32x32x32_bf16 {vr(O[q],16)}, {vr(vf+4,4)}, {vr(s+8,8)}, v{IDX}")
def kread(kt):
    kt &= 15
    f = K[kt & 1]
    return [f"ds_read2st64_b64 {vr(f,4)}, v{AK1 if kt & 1 else AK0} offset0:{5*(kt>>1)} offset1:{5*(kt>>1)+1}",
            f"ds_read_b32 v{f+4}, v{AK2} offset:{(kt>>1)*2560 + (kt&1)*256}"]
def vread(kt):
    f = V[kt & 1]; a = AV
    kt &= 15
    return [f"ds_read_b128 {vr(f,4)}, v{a} offset:{kt*1344}", f"ds_read_b128 {vr(f+4,4)}, v{a} offset:{kt*1344+672}"]
def loop_body(last=False, pat=PAT):
    c = []
    extra = []
    if last:
        cur = []
        for x in [y.replace(f"s{sT+1}", f"s{sT+9}").replace(f"s{sT}", f"s{sT+8}") for y in wo_loads(0, 2)] + item_loads():
            cur.append(x)
            if as_ins(x).kind == 'vmem' or len(cur) == 4: extra.append(cur); cur = []
    for i in range(32):
        kt, q = divmod(i, 2); ktp, qp = divmod(i - 1, 2)
        sc = S[(q, kt & 1)]
        A, B = qk(S[(q, (kt + 1) & 1)], K[(kt + 1) & 1], q)
        C, D = pv(qp, V[ktp & 1], S[(qp, ktp & 1)])
        kf = kread(kt + 2); vf = vread(kt + 1)
        e = f = 0; seen = ""
        for ch in pat[q]:
            if ch in 'AB':
                if not (last and kt == 15): c.append(A if ch == 'A' else B)
                if ch == 'B' and extra: c += extra.pop(0)
            elif ch == 'C': c.append(C)
            elif ch == 'D': c.append(D)
            elif ch == 'e': c.append(f"v_exp_f32 v{sc+e}, v{sc+e}"); e += 1
            elif ch == 'k':
                if kt == 14 and len(kf) == 2:
                    if not last: c += [f"v_add_u32 v{r}, s{sDK}, v{r}" for r in (AK0, AK1, AK2)] + ["s_waitcnt lgkmcnt(2)"]
                    c += ["s_barrier"]
                if kt == 4 and len(kf) == 2 and not last:
                    c += ["s_waitcnt vmcnt(0)", flag_store2(f"s{sT+10}", 160)[3]]
                x = kf.pop(0)
                if not (last and kt >= 14): c.append(x); f += 1
            elif ch == 'v':
                if q == 0: assert ("C" if len(vf) == 2 else "D") in seen
                if kt == 15 and len(vf) == 2 and not last: c += [f"v_mad_i32_i24 v{AV}, v{AVM}, s{sDV}, v{AV}"]
                x = vf.pop(0)
                if not (last and kt == 15): c.append(x); f += 1
            elif ch == 'w': c.append(f"s_waitcnt lgkmcnt({f})")
            seen += ch
        assert e == 16
    assert not extra
    return c
def shift_split(q, m):
    t = T + 6
    return [f"v_sub_f32 v{m}, 0, v{m}",
            f"v_cvt_pk_bf16_f32 v{t}, v{m}, v{m}", f"v_and_b32 v{t}, 0xffff0000, v{t}", f"v_sub_f32 v{t}, v{m}, v{t}",
            f"v_cvt_pk_bf16_f32 v{t+1}, v{m}, v{t}", f"v_and_b32 v{t+2}, 0xffff0000, v{t+1}", f"v_sub_f32 v{t}, v{t}, v{t+2}",
            f"v_cvt_pk_bf16_f32 v{t}, v{t}, 0",
            f"v_cmp_eq_u32 vcc, 0, v{VH}", f"v_cndmask_b32 v{Q[q]+5}, v{t}, v{t+1}, vcc"]
def max16(d, s, acc=False):
    c = [f"v_max3_f32 v{d}, v{s}, v{s+1}, v{d if acc else s}"]
    for j in range(2, 16, 2): c.append(f"v_max3_f32 v{d}, v{s+j}, v{s+j+1}, v{d}")
    return c
def xhalf_max(d):
    return [f"v_mov_b32 v{d+1}, v{d}", f"v_permlane32_swap_b32 v{d}, v{d+1}", f"v_max_f32 v{d}, v{d}, v{d+1}"]

def attn():
    c = [f"v_lshrrev_b32 v{T}, 4, v{VTOK}", f"v_lshlrev_b32 v{T}, 3, v{T}", f"v_and_b32 v{T+1}, 15, v{VTOK}",
         f"v_lshl_add_u32 v{T+2}, v{T+1}, 4, v{T}",
         f"v_lshrrev_b32 v{T+3}, 1, v{T+2}", f"v_xor_b32 v{T+3}, v{T+3}, v{T+2}", f"v_and_b32 v{T+3}, 64, v{T+3}",
         f"v_mul_u32_u24 v{T+3}, 3, v{T+3}", f"v_xor_b32 v{AK0}, v{T+3}, v{T+2}",
         f"v_add_u32 v{AK0}, {KPOS[0]}, v{AK0}", f"v_lshl_add_u32 v{AK2}, v{VH}, 2, v{AK0}", f"v_add_u32 v{AK2}, 2048, v{AK2}",
         f"v_lshl_add_u32 v{AK0}, v{VH}, 10, v{AK0}", f"v_add_u32 v{AK1}, 256, v{AK0}",
         f"s_mul_i32 s{sT}, s{sA}, 2560", f"s_add_u32 s{sT}, s{sT}, {L_Q}", f"v_add_u32 v{T+2}, s{sT}, v{T+2}",
         f"v_lshl_add_u32 v{T+3}, v{VH}, 2, v{T+2}", f"v_lshl_add_u32 v{T+2}, v{VH}, 10, v{T+2}",
         f"v_min_u32 v{AV}, 20, v{VTOK}", f"v_lshlrev_b32 v{AV}, 4, v{AV}", f"v_mul_u32_u24 v{T}, 336, v{VH}", f"v_add_u32 v{VVG}, v{AV}, v{T}",
         f"v_mov_b32 v{T}, 0x011fffff", f"v_lshrrev_b32 v{T}, v{VTOK}, v{T}", f"v_and_b32 v{AVM}, 1, v{T}",
         f"s_mov_b32 s{sT}, {hx(VPOS[0] - 0x30000)}", f"v_add_u32 v{AV}, 0x30000, v{VVG}", f"v_mad_i32_i24 v{AV}, v{AVM}, s{sT}, v{AV}",
         f"v_mov_b32 v{IDX}, 0xdddddddd", f"v_mov_b32 v{K[0]+5}, 0x3f803f80", f"v_mov_b32 v{K[1]+5}, 0x3f803f80",
         f"v_mov_b32 v{Q[0]+5}, 0", f"v_mov_b32 v{Q[1]+5}, 0"]
    c += [f"v_mov_b32 v{r}, 0" for r in range(V[1], V[1]+8)]
    c += [f"v_mfma_f32_32x32x8_bf16 {vr(r,16)}, {vr(V[1],2)}, {vr(V[1],2)}, 0" for r in (O[0], O[1], S[(1,1)])]
    c += ["s_setprio 2"] + stamp(5) + tr("att", 0)
    c += kread(0)
    for q in range(2):
        c += [f"ds_read_b64 {vr(Q[q],2)}, v{T+2} offset:{256*q}", f"ds_read_b64 {vr(Q[q]+2,2)}, v{T+2} offset:{256*q+512}",
              f"ds_read_b32 v{Q[q]+4}, v{T+3} offset:{256*q+2048}"]
    c += kread(1) + vread(0)
    for q in range(2): c += list(qk(S[(q,0)], K[0], q))
    for q in range(2): c += max16(T + 2*q, S[(q,0)]) + xhalf_max(T + 2*q) + shift_split(q, T + 2*q)
    for q in range(2): c += list(qk(S[(q,0)], K[0], q))
    c += f2_addr() + [f"s_mov_b32 s{sT+10}, s{sT}"] + flag_store2(f"s{sT+10}", 160)[:3]
    c += [f"s_mov_b32 s{sIT}, 0", f"s_mov_b32 s{sDK}, {KCH}", f"s_mov_b32 s{sDV}, {hx(VPOS[1] - VPOS[0])}", "s_waitcnt lgkmcnt(0)"]
    c = fin(c)
    body = loop_body()
    upd = [f"s_add_u32 s{sIT}, s{sIT}, 1", f"s_cmp_eq_u32 s{sIT}, 1", f"s_cselect_b32 s{sDK}, {hx(-4*KCH)}, 0", f"s_cselect_b32 s{sDV}, 0, {VPOS[3] - 2*VPOS[2]}",
           f"s_add_u32 s{sDK}, s{sDK}, {KCH}", f"s_add_u32 s{sDV}, s{sDV}, {VPOS[2]}",
           f"s_cmp_lt_u32 s{sIT}, 3", "s_cbranch_scc1 LA_loop"]
    fin_it = loop_body(True)
    two = [as_ins(x) for x in body + upd + body + upd + fin_it]
    assert len(fix_hazards(fix_waits(two), c[-14:])) == len(two), "attention loop needs extra waits/pads"
    c += tr("att", 1) + [".p2align 6", "LA_loop:"] + body + upd + fin_it + stamp(6) + tr("att", 2)
    C, D = pv(1, V[1], S[(1,1)])
    e = [C, D,
         f"s_lshl_b32 s{sT}, s{sQB}, 3", f"s_lshl_b32 s{sT+1}, s{sA}, 1", f"s_add_u32 s{sT}, s{sT}, s{sT+1}",
         f"s_mul_i32 s{sT+10}, s{sT}, 40960", f"s_add_u32 s{sT+10}, s{sT+10}, {hx(WS_O)}",
         f"s_lshl_b32 s{sT+11}, s{sHEAD}, 10", f"s_add_u32 s{sT+11}, s{sT+11}, s{sT+10}",
         f"s_lshl_b32 s{sT}, s{sHEAD}, 8", f"s_add_u32 s{sT+10}, s{sT+10}, s{sT}", f"s_add_u32 s{sT+10}, s{sT+10}, 32768",
         ] + f3_addr(sT + 9) + [
         "LA_fin:", f"v_cmp_eq_u32 vcc, 0, v{VH}",
         f"v_bfe_u32 v{T+2}, v{VL16}, 8, 1", f"v_mul_u32_u24 v{T+2}, {40960 - 256}, v{T+2}", f"v_add_u32 v{T+2}, v{T+2}, v{VL16}", f"v_lshl_add_u32 v{T+2}, v{VH}, 30, v{T+2}"]
    for q in range(2):
        e += [f"v_cndmask_b32 v{T+q}, v{O[q]+8}, v{O[q]+12}, vcc", f"v_rcp_f32 v{T+4}, v{T+q}"]
        e += [f"v_mul_f32 v{16+12*q+j}, v{T+4}, v{O[q]+j}" for j in range(12)]
        P = [48+4*q, 49+4*q, 50+4*q, 51+4*q, 56+2*q, 57+2*q]
        e += [f"v_cvt_pk_bf16_f32 v{P[j]}, v{16+12*q+2*j}, v{16+12*q+2*j+1}" for j in range(6)]
        e += [f"v_and_b32 v{16+12*q+j}, 0x7f807f80, v{P[j]}" for j in range(6)]
        e += [f"v_pk_max_u16 v{16+12*q}, v{16+12*q}, v{16+12*q+j}" for j in range(1, 6)]
    e += ["v_permlane16_swap_b32 v56, v58", "v_permlane16_swap_b32 v57, v59", f"v_pk_max_u16 v16, v16, v28", f"v_add_u32 v16, 0x00800080, v16", f"v_and_b32 v16, 0x80008000, v16",
          f"v_min_f32 v{T+3}, v{T}, v{T+1}", f"v_add_f32 v{T}, v{T}, v{T+1}", f"v_cmp_eq_u32 s[{sT+6}:{sT+7}], 0, v16",
          f"v_cmp_gt_f32 vcc, 0x7f000000, v{T}", f"s_and_b64 s[{sT+4}:{sT+5}], vcc, s[{sT+6}:{sT+7}]", f"v_cmp_lt_f32 vcc, 0x35800000, v{T+3}",
          f"s_and_b64 vcc, vcc, s[{sT+4}:{sT+5}]", f"s_cmp_eq_u64 vcc, exec", f"s_cselect_b32 s{sT+3}, 5, s{sT+2}" if not opt("FORCESLOW") else f"s_mov_b32 s{sT+3}, s{sT+2}", f"s_cmp_eq_u32 s{sT+3}, 3",
          "s_cbranch_scc1 LA_slow"]
    e += [f"buffer_store_dwordx4 v[48:51], v{VL16}, {sr(SWS,4)}, s{sT+11} offen{SC}", f"s_add_u32 s{sT}, s{sT+11}, 40960",
          f"buffer_store_dwordx4 v[52:55], v{VL16}, {sr(SWS,4)}, s{sT} offen{SC}",
          f"buffer_store_dwordx4 v[56:59], v{T+2}, {sr(SWS,4)}, s{sT+10} offen{SC}"]
    e += [f"buffer_store_dword v160, v162, {sr(SWS,4)}, s{sT+9} offen{SC}"]
    e += stamp(7) + ["s_setprio 0"] + p3_setup() + g_items() + ["s_barrier"]
    c += fin(e, pre=fin_it[-12:]) + p3_gemm(0, 2, "L_p3a") + ["s_branch L_p3j"]
    return c + slow_path()

def f3_addr(d):
    return [f"s_lshl_b32 s{d}, s{sQB}, 2", f"s_add_u32 s{d}, s{d}, s{sA}", f"s_lshl_b32 s{d}, s{d}, 5", f"s_add_u32 s{d}, s{d}, s{sHEAD}",
            f"s_lshl_b32 s{d}, s{d}, 7", f"s_add_u32 s{d}, s{d}, {hx(WS_F3)}"]
def f2_addr():
    return [f"s_lshl_b32 s{sT}, s{sRB}, 2", f"s_add_u32 s{sT}, s{sT}, s{sA}", f"s_lshl_b32 s{sT}, s{sT}, 4", f"s_add_u32 s{sT}, s{sT}, s{sCB}",
            f"s_lshl_b32 s{sT}, s{sT}, 6", f"s_and_b32 s{sT+1}, s{sW}, 4", f"s_add_u32 s{sT}, s{sT}, s{sT+1}", f"s_lshl_b32 s{sT}, s{sT}, 1", f"s_add_u32 s{sT}, s{sT}, {hx(WS_F2)}"]
def fr_addr():
    return [f"s_lshl_b32 s{sT}, s{sTASK}, 5", f"s_add_u32 s{sT}, s{sT}, s{sA}", f"s_lshl_b32 s{sT}, s{sT}, 2", f"s_add_u32 s{sT}, s{sT}, {hx(WS_FR)}"]

def slow_path():
    kb, vb, i = sT + 4, sT + 5, sT + 6
    kf = K[0]; vf = V[0]
    def kload():
        return [f"s_lshr_b32 s{sT}, s{i}, 1", f"s_mul_i32 s{sT}, s{sT}, 2560", f"s_and_b32 s{sT+1}, s{i}, 1", f"s_lshl_b32 s{sT+1}, s{sT+1}, 8",
                f"s_add_u32 s{sT}, s{sT}, s{sT+1}", f"s_add_u32 s{sT}, s{sT}, s{kb}",
                f"buffer_load_dwordx2 {vr(kf,2)}, v{AK0}, {sr(SWS,4)}, s{sT} offen{SC}",
                f"buffer_load_dwordx2 {vr(kf+2,2)}, v{AK0}, {sr(SWS,4)}, s{sT} offen offset:512{SC}",
                f"buffer_load_dword v{kf+4}, v{AK2}, {sr(SWS,4)}, s{sT} offen{SC}"]
    c = ["LA_slow:",
         f"s_mul_i32 s{kb}, s{sHEAD}, {HS_QK}", f"s_add_u32 s{kb}, s{kb}, {hx(WS_K)}",
         f"s_mul_i32 s{vb}, s{sHEAD}, {HS_V}", f"s_add_u32 s{vb}, s{vb}, {hx(WS_V)}",
         f"v_subrev_u32 v{AK0}, {KPOS[3]}, v{AK0}", f"v_subrev_u32 v{AK2}, {KPOS[3]}, v{AK2}",
         f"v_mov_b32 v{Q[0]+5}, 0", f"v_mov_b32 v{Q[1]+5}, 0",
         f"v_mov_b32 v{T}, 0xff800000", f"v_mov_b32 v{T+2}, 0xff800000", f"s_mov_b32 s{i}, 0"]
    l1 = ["LA_s1:"] + kload()
    for q in range(2): l1 += list(qk(S[(q,0)], kf, q))
    for q in range(2): l1 += max16(T + 2*q, S[(q,0)], acc=True)
    l1 += [f"s_add_u32 s{i}, s{i}, 1", f"s_cmp_lt_u32 s{i}, 64", "s_cbranch_scc1 LA_s1"]
    mid = []
    for q in range(2): mid += xhalf_max(T + 2*q) + shift_split(q, T + 2*q)
    mid += [f"v_mov_b32 v{r}, 0" for r in range(O[0], O[0]+32)] + [f"s_mov_b32 s{i}, 0"]
    l2 = ["LA_s2:"] + kload()
    l2 += [f"s_mul_i32 s{sT}, s{i}, 1344", f"s_add_u32 s{sT}, s{sT}, s{vb}",
           f"buffer_load_dwordx4 {vr(vf,4)}, v{VVG}, {sr(SWS,4)}, s{sT} offen{SC}",
           f"buffer_load_dwordx4 {vr(vf+4,4)}, v{VVG}, {sr(SWS,4)}, s{sT} offen offset:672{SC}"]
    for q in range(2): l2 += list(qk(S[(q,0)], kf, q))
    for q in range(2):
        l2 += [f"v_exp_f32 v{S[(q,0)]+j}, v{S[(q,0)]+j}" for j in range(16)]
        l2 += list(pv(q, vf, S[(q,0)]))
    l2 += [f"s_add_u32 s{i}, s{i}, 1", f"s_cmp_lt_u32 s{i}, 64", "s_cbranch_scc1 LA_s2",
           f"s_mov_b32 s{sT+2}, 5", "s_nop 15", "s_branch LA_fin"]
    return fin(c + l1 + mid + l2)

GA = 16; FB = 96; NBUF = opt("NBUF", 5)
def gload(buf, sa, sb):
    f = FB + 24 * buf
    c = [f"buffer_load_dwordx4 {vr(f,4)}, v{VL16}, {sr(SWS,4)}, s{sa} offen{SC}"]
    for j in range(4): c += [f"buffer_load_dwordx4 {vr(f+4+4*j,4)}, v{VL16}, {sr(SWS,4)}, s{sb} offen offset:{1024*j}{SC}"]
    c += [f"buffer_load_dwordx4 {vr(f+20,4)}, v{VL2}, {sr(SWS,4)}, s{sb} offen{SC}",
          f"s_add_u32 s{sa}, s{sa}, 1024", f"s_add_u32 s{sb}, s{sb}, 5120"]
    return c
def gemm(nk, sa, sb, hooks):
    c = []
    for k in range(NBUF - 1): c += gload(k, sa, sb)
    for k in range(nk):
        c += hooks.get(k, [])
        f = FB + 24 * (k % NBUF)
        mm = [f"v_mfma_f32_32x32x16_bf16 {vr(GA+16*j,16)}, {vr(f+4+4*j,4)}, {vr(f,4)}, {vr(GA+16*j,16)}" for j in range(5)]
        ld = gload((k + NBUF - 1) % NBUF, sa, sb) if k + NBUF - 1 < nk else []
        for j in range(5):
            c += [mm[j]]
            if ld: c += [ld[j]] if j < 4 else ld[4:]
    return c
def slab_addr():
    a = SA
    return [f"v_and_b32 v{a+1}, 7, v{VTOK}", f"v_xor_b32 v{a+1}, v{a+1}, v{VH}", f"v_mul_u32_u24 v{a}, 640, v{VTOK}", f"v_lshl_add_u32 v{a}, v{a+1}, 4, v{a}",
            f"s_mul_i32 s{sT}, s{sA}, {KCH}", f"s_add_u32 s{sT}, s{sT}, {LK}", f"s_cmp_eq_u32 s{sA}, 1", f"s_cselect_b32 s{sT}, {LK}, s{sT}",
            f"s_cmp_eq_u32 s{sA}, 0", f"s_cselect_b32 s{sT}, 0, s{sT}", f"v_add_u32 v{a}, s{sT}, v{a}"] + [f"v_xor_b32 v{a+q}, {32*q}, v{a}" for q in range(1, 4)]
def slab_tile(acc, j): return [f"ds_write_b128 v{SA+q}, {vr(acc+4*q,4)} offset:{128*j}" for q in range(4)]
def wo_loads(c0, n):
    W0 = WOF + 40 * (3 - n)
    c = [f"s_mul_i32 s{sT}, s{sCG}, 40", f"s_add_u32 s{sT}, s{sT}, s{sA}", f"s_mul_i32 s{sT}, s{sT}, 5120",
         f"s_add_u32 s{sT}, s{sT}, {hx(WS_WOF + 1024*c0)}", f"s_mul_i32 s{sT+1}, s{sA}, 5120"]
    for k in range(10):
        c += [f"buffer_load_dwordx4 {vr(W0+40*j+4*k,4)}, v{VL16}, {sr(SWS,4)}, s{sT} offen offset:{1024*j}{SC}" for j in range(n)]
        if k < 9: c += [f"s_add_u32 s{sT}, s{sT}, {20480 if k < 8 else 5120}"]
        if k == 7: c += [f"s_add_u32 s{sT}, s{sT}, s{sT+1}"]
    return c
def item_loads():
    t = XV
    c = [f"v_lshrrev_b32 v{t}, 8, v{VL16}", f"v_lshl_add_u32 v{t}, s{sW}, 2, v{t}", f"v_bfe_u32 v{t+1}, v{VL16}, 4, 4",
         f"v_and_b32 v{t+2}, 7, v{t}", f"v_xor_b32 v{t+2}, v{t+2}, v{t+1}", f"v_mul_u32_u24 v{IA}, 640, v{t}", f"v_lshl_add_u32 v{IG}, v{t+1}, 2, v{IA}",
         f"v_lshl_add_u32 v{IA}, v{t+2}, 4, v{IA}", f"v_add_u32 v{IA+1}, {SLB[2]}, v{IA}",
         f"s_mul_i32 s{sT+1}, s{sRTILE}, {32*1280}", f"s_mul_i32 s{sT}, s{sCG}, 320", f"s_add_u32 s{sT+1}, s{sT+1}, s{sT}",
         f"v_lshl_add_u32 v{IG}, v{IG}, 1, s{sT+1}", f"v_lshrrev_b32 v{t+1}, 3, v{t+1}", f"v_lshl_add_u32 v{IG+1}, v{t+1}, 30, v{IG}"]
    return c + [f"buffer_load_dwordx2 {vr(XV+2*p,2)}, v{IG + (p == 2)}, {sr(SX,4)}, 0 offen offset:{128*p}" for p in range(3)]
def reduce4():
    c = []
    for p in range(3):
        c += [f"ds_read_b128 {vr(RED+16*p+4*s,4)}, v{IA + (s >> 1)} offset:{SLB[s] - SLB[s & 2] + 256*p}" for s in range(4)]
    for p in range(3):
        b = RED + 16 * p
        c += [f"v_add_f32 v{b+i}, v{b+i}, v{b+4+i}" for i in range(4)] + [f"v_add_f32 v{b+8+i}, v{b+8+i}, v{b+12+i}" for i in range(4)]
        c += [f"v_add_f32 v{b+i}, v{b+i}, v{b+8+i}" for i in range(4)]
    return c
def g_items():
    r = reduce4()
    for p in range(3):
        b = RED + 16 * p; g = GR + 4 * p
        r += [f"v_mul_f32 v{b+4+i}, {fl(-LOG2E)}, v{b+i}" for i in range(4)]
        r += [f"v_exp_f32 v{b+4+i}, v{b+4+i}" for i in range(4)]
        r += [f"v_add_f32 v{b+4+i}, 1.0, v{b+4+i}" for i in range(4)]
        r += [f"v_rcp_f32 v{b+4+i}, v{b+4+i}" for i in range(4)]
        r += [f"v_mul_f32 v{g+i}, v{b+i}, v{b+4+i}" for i in range(4)]
    return r
def p3_setup(slab=True):
    return [f"s_mul_i32 s{sT+4}, s{sRTILE}, 40", f"s_add_u32 s{sT+4}, s{sT+4}, s{sA}", f"s_add_u32 s{sT+5}, s{sT+4}, s{sA}",
            f"s_lshl_b32 s{sT+4}, s{sT+4}, 10", f"s_add_u32 s{sT+4}, s{sT+4}, {hx(WS_O)}", f"s_lshl_b32 s{sT+5}, s{sT+5}, 10", f"s_add_u32 s{sT+5}, s{sT+5}, {hx(WS_O + 32768)}",
            f"v_and_b32 v{PAD}, 0x2f0, v{VL16}", f"v_bfe_u32 v{PD}, v{VL16}, 8, 1", f"v_lshl_add_u32 v{PAD}, v{PD}, 3, v{PAD}",
            f"s_mov_b32 s{sT+6}, {SPIN}"] + (slab_addr() if slab else [])
def unpack(d, s):
    return [f"v_lshlrev_b32 v{d}, 16, v{s}", f"v_and_b32 v{d+1}, 0xffff0000, v{s}",
            f"v_lshlrev_b32 v{d+2}, 16, v{s+1}", f"v_and_b32 v{d+3}, 0xffff0000, v{s+1}"]
def bias2():
    t = FB
    c = [f"v_add_u32 v{t}, s{sA}, v{VH}", f"v_lshlrev_b32 v{t}, 20, v{t}", f"v_lshl_add_u32 v{t}, v{VTOK}, 1, v{t}", f"s_mul_i32 s{sT}, s{sCG}, 320",
         f"v_mov_b32 v{t+2}, 0x3f80", f"v_mov_b32 v{t+3}, 0"]
    c += [f"buffer_load_ushort v{t+4+2*j}, v{t}, {sr(SB2,4)}, s{sT} offen offset:{64*j}" for j in range(5)]
    c += [f"v_mov_b32 v{t+5+2*j}, 0" for j in range(5)]
    return c + [f"v_mfma_f32_32x32x8_bf16 {vr(GA+16*j,16)}, {vr(t+4+2*j,2)}, {vr(t+2,2)}, 0" for j in range(5)]
def b_phase2():
    sa, sb = sT + 11, sT + 7
    t = 2
    g = [f"v_add_u32 v{VL2}, 4096, v{VL16}",
         f"v_and_b32 v{t}, 3, v{VTOK}", f"v_min_u32 v{t}, 2, v{t}", f"v_bfe_u32 v{t+1}, v{VTOK}, 2, 2", f"v_mad_u32_u24 v{t}, v{t+1}, 10, v{t}",
         f"s_mul_i32 s{sT}, s{sCG}, 5", f"s_lshr_b32 s{sT}, s{sT}, 1", f"v_add_lshl_u32 v{t}, v{t}, s{sT}, 7", f"s_mov_b32 s{sT+3}, {hx(WS_FR)}",
         f"v_add_u32 v9, {hx(WS_FR - WS_F2)}, v{t}"]
    g += [f"v_lshlrev_b32 v{t}, 3, v{VL16}", f"v_and_b32 v{t}, 0x780, v{t}", f"s_lshl_b32 s{sT+3}, s{sRTILE}, 11", f"v_add_u32 v{t}, s{sT+3}, v{t}",
         f"v_cmp_eq_u32 vcc, 0, v{VH}", f"v_cndmask_b32 v{t}, v9, v{t}, vcc", f"s_mov_b32 s{sT+3}, {hx(WS_F2)}",
         f"s_lshl_b32 s{sT}, s2, 2", f"s_add_u32 s{sT}, s{sT}, s{sA}", f"s_cmp_eq_u32 s{sT}, 0", "s_cbranch_scc0 LB_nep"]
    ep = [f"v_lshlrev_b32 v10, 3, v{VL16}"]
    for q in range(4):
        ep += [f"s_mov_b32 s{sT}, {hx(WS_F1 + 8192*q)}", poll_load(11, 10, f"s{sT}"), "s_waitcnt vmcnt(0)"] + poll_check(f"LB_pe{q}", 11, 10, f"s{sT}")
    g += opaque(ep + [f"s_mov_b32 s{sT}, {hx(WS_EP)}"] + flag_store(f"s{sT}", t=10)) + ["LB_nep:"] + item_loads() + bias2() + ["s_waitcnt vmcnt(0)", poll_load(4, t, f"s{sT+3}", 4)] + tr("att", 2) + ["s_barrier"] + tr("att", 3)
    g += poll_check("LB_p2", 4, t, f"s{sT+3}", 4) + stamp(6) + slab_addr()
    g += [f"s_mul_i32 s{sa}, s{sRTILE}, 108", f"s_mul_i32 s{sT}, s{sA}, 27", f"s_add_u32 s{sa}, s{sa}, s{sT}", f"s_lshl_b32 s{sa}, s{sa}, 10",
          f"s_add_u32 s{sa}, s{sa}, {hx(WS_H)}",
          f"s_mul_i32 s{sb}, s{sCG}, 108", f"s_add_u32 s{sb}, s{sb}, s{sT}", f"s_mul_i32 s{sb}, s{sb}, 5120", f"s_add_u32 s{sb}, s{sb}, {hx(WS_W2F)}"]
    v3 = vchunk(VPOS[3]) + [mark("v3")]
    h2, h3 = [int(x) for x in opt("GH", "8,21").split(",")]
    g += gemm(27, sa, sb, {h2: tr("att", 4) + ["s_barrier"] + tr("att", 5) + v3, h3: [waitfor("v3")] + tr("att", 6) + ["s_barrier"] + tr("att", 7)})
    g += wo_loads(2, 3)
    for j in range(5): g += slab_tile(GA + 16*j, j)
    g += ["s_waitcnt lgkmcnt(0)"] + stamp(7) + tr("att", 8) + ["s_barrier"] + tr("att", 9) + p3_setup(False) + g_items() + [f"s_cmp_eq_u32 s{sA}, 0", "s_cbranch_scc0 LB_np3"]
    g += opaque(flat([f"v_lshlrev_b32 v2, 7, v{VTOK}", f"s_lshr_b32 s{sT+3}, s{sRTILE}, 1", f"s_lshl_b32 s{sT+3}, s{sT+3}, 12", f"s_add_u32 s{sT+3}, s{sT+3}, {hx(WS_F3)}",
          poll_load(PD, 2, f"s{sT+3}"), "s_waitcnt vmcnt(0)"] + poll_check("LB_p3", PD, 2, f"s{sT+3}"))) + ["LB_np3:", "s_barrier"]
    return fin(g)

def o_load(k):
    if k < 8: return [f"s_add_u32 s{sT}, s{sT+4}, {4096*k}", f"buffer_load_dwordx4 {vr(OF[k],4)}, v{VL16}, {sr(SWS,4)}, s{sT} offen{SC}"]
    return [f"buffer_load_dwordx2 {vr(OF[k]+2*t,2)}, v{PAD}, {sr(SWS,4)}, s{sT+5} offen offset:{1024*(k-8) + 256*t}{SC}" for t in range(2)]
def p3_gemm(c0, n, lab):
    W0 = WOF + 40 * (3 - n)
    mm = lambda j, k: f"v_mfma_f32_32x32x16_bf16 {vr(RED+16*j,16)}, {vr(W0+40*j+4*k,4)}, {vr(OF[k],4)}, {'0' if k == 0 else vr(RED+16*j,16)}"
    c = stamp(8) + [f"{lab}:"] + flat([o_load(k) for k in range(10)])
    for k in range(10):
        c += [mm(0, k), f"v_max3_u32 v{PD}, v{OF[k]}, v{OF[k]+1}, {'0' if k == 0 else f'v{PD}'}", f"v_max3_u32 v{PD}, v{OF[k]+2}, v{OF[k]+3}, v{PD}"]
    c += [mm(1, 0), f"v_cmp_eq_u32 vcc, -1, v{PD}", f"s_sub_u32 s{sT+6}, s{sT+6}, 1", "s_cselect_b64 vcc, 0, vcc", "s_cmp_lg_u64 vcc, 0", f"s_cbranch_scc1 {lab}"]
    for j in range(1, n):
        for k in range(10):
            if (j, k) != (1, 0): c += [mm(j, k)]
            if 5 <= k < 9: c += [slab_tile(RED + 16*(j-1), c0 + j - 1)[k - 5]]
    c += slab_tile(RED + 16*(n-1), c0 + n - 1)
    return fin(c + ["s_waitcnt lgkmcnt(0)"])

def phase3():
    r = p3_gemm(2, 3, "L_p3b") + ["L_p3j:"]
    z = ["s_barrier"] + reduce4()
    for p in range(3):
        b = RED + 16 * p
        z += unpack(b + 4, XV + 2*p)
        z += [f"v_fma_f32 v{b+i}, v{b+i}, v{GR+4*p+i}, v{b+4+i}" for i in range(4)]
        z += [f"v_cvt_pk_bf16_f32 v{b+12}, v{b}, v{b+1}", f"v_cvt_pk_bf16_f32 v{b+13}, v{b+2}, v{b+3}",
              f"buffer_store_dwordx2 {vr(b+12,2)}, v{IG + (p == 2)}, {sr(SOUT,4)}, 0 offen offset:{128*p}"]
    return r + fin(z)

def kernel(name):
    isv = [f"s_sub_u32 s{sT}, s{sCB}, 10", f"s_cmp_lt_u32 s{sT}, 5"]
    def helpers(R, nxt):
        c = [f"s_cmp_eq_u32 s{sCB}, 15", f"s_cbranch_scc1 LH{R}h"] + isv + [f"s_cbranch_scc0 LH{R}q"]
        c += fin(helper(R, 'V'), pre=C_PRE) + [f"s_branch {nxt}", f"LH{R}h:"] + fin(helper(R, 'H'), pre=C_PRE) + [f"s_branch {nxt}", f"LH{R}q:"]
        return c + fin(helper(R, 'QK'), pre=C_PRE)
    er, ev = ext('N')
    c = ["L_first:"] + stamp(0) + stamp(10, True) + tr("r0", 11) + prologue()
    c += [f"s_cmp_lt_u32 s{sW}, 4", "s_cbranch_scc1 LA"]
    c += ["s_setprio 3"] + b_round0() + stamp(3) + [f"s_mov_b32 s{sR}, 1"] + isv + ["s_cbranch_scc0 LC"]
    c += c_body('V') + ["s_branch LB_2"]
    c += ["LC:"] + c_body('N') + [f"s_cmp_eq_u32 s{sR}, 2", "s_cbranch_scc1 LA_3", f"s_cmp_eq_u32 s{sR}, 3", "s_cbranch_scc1 LB_t4"]
    c += ["LB_2:", f"s_mov_b32 s{sR}, 2"] + helpers(2, "LB_3")
    c += ["LB_3:", f"s_mov_b32 s{sR}, 3", f"s_cmp_eq_u32 s{sNR}, 4", "s_cbranch_scc1 LC"]
    c += fin(stamp(4) + wdma(4) + [mark("w4")] + f1_addr(True) + kv_base(0) + poll_check("LB_p1", PF, PA, f"s{sT+3}", 4) + first_kv()
             + f1_addr(False) + [waitfor("w4"), "s_barrier", f"s_cmp_ge_u32 s{sTASK}, 40", "s_cbranch_scc1 LB_r1"] + opaque(relayout_read())
             + ["LB_r1:", "s_waitcnt vmcnt(0) lgkmcnt(0)", "s_barrier"] + stamp(5) + f2_addr() + flag_store2(f"s{sT}", TB)
             + [f"s_cmp_ge_u32 s{sTASK}, 40", "s_cbranch_scc1 LB_r2"] + opaque(relayout_store()) + ["LB_r2:"]
             + poll_check("LB_p5", PF, PA, f"s{sT+3}", 4) + rest_kv() + ["s_branch LB_g"])
    c += ["LB_t4:"] + fin(stamp(4) + stamp(5) + er + f1_addr(False) + kv_base(1) + [f"s_lshl_b32 s{sCT}, s{sHU}, 1", f"s_add_u32 s{sCT}, s{sCT}, 2"] + ev + epi_h(0) + epi_h(1) + [mark("h"), "s_setprio 0"]
             + poll_check("LB_p4", PF, PA, f"s{sT+3}", 4) + rest_kv()[:54] + f2_addr() + [waitfor("h")] + flag_store2(f"s{sT}", TB) + rest_kv()[54:], pre=C_PRE)
    c += ["LB_g:", "s_setprio 0"] + tr("att", 1) + b_phase2() + phase3()
    c += ["s_waitcnt vmcnt(0)"] * bool(STAMP) + stamp(9) + stamp(11, True) + stamp_flush(SWS, sW) + ["L_end:", "s_endpgm"]
    c += fix_hazards(["LA:"] + (touch(SX, 2621440) + touch(sWQ, 640*3840) if opt("PF0", 1) else []) + code_prefetch() + (page_touch() if opt("PFT", 1) else []) + lane_setup('A') + aim(1) + stamp(1) + ["s_waitcnt lgkmcnt(0)", f"s_add_u32 s{sN}, s{sN}, 1", "s_setprio 1"]
                     + isv + ["s_cbranch_scc0 LA_n"] + ones_rows())
    c += a_round0('V') + ["s_branch LA_1", "LA_n:"] + a_round0('N')
    c += ["LA_1:", f"s_mov_b32 s{sR}, 1"] + stamp(3) + helpers(1, "LA_2") + ["LA_2:", f"s_mov_b32 s{sR}, 2", "s_branch LC"]
    c += ["LA_3:", f"s_mov_b32 s{sR}, 3", f"s_lshl_b32 s{sCT}, s{sHU}, 1", f"s_cmp_eq_u32 s{sNR}, 4", "s_cbranch_scc1 LA_h3"]
    c += fin(stamp(4) + er + ev + epi_h(0) + ["s_barrier"] + epi_h(1) + ["s_barrier", "s_branch LA_att"], pre=C_PRE)
    c += ["LA_h3:"] + fin(helper(3, 'H') + stamp(4), pre=C_PRE) + ["LA_att:"] + attn() + ["L_last:"]
    return kernel_head(name) + render(c)

if __name__ == "__main__":
    import sys
    name = "recurrent_scan__mha_block__mixer_channel_mlp__prompt_kernel"
    HEAD = open("recurrent_scan__mha_block__mixer_channel_mlp__prompt.s.ref").read().split("; Override")[0]
    s = HEAD + "; @launch grid=(256,1,1) block=(512,1,1) lds=163840\n" + '.amdgcn_target "amdgcn-amd-amdhsa--gfx950"\n'
    s += kernel(name) + kernel_desc(name, 256, 102)
    open(sys.argv[1], "w").write(s)
```

```python
from common import *

sW, sA, sN, sRB, sCB = 3, 4, 5, 6, 7
SX, SWD, SWS, SB1, SB2, SOUT = 8, 12, 16, 20, 28, 32
sWQ, sCSB, sDST = 24, 26, 27
sW1, sW2, sWO = 36, 38, 40
sWOFF, sST, sR, sNR, sCT, sHU, sQKROW, sVOFF, sHOFF, sXOFF, sM4, sTASK = range(42, 54)
sHEAD, sQB, sRTILE, sCG = 54, 55, 56, 57
sT = 58
U = 16384
MISC = 9 * U
XBUF = [3*U, 7*U, 0, 3*U, 7*U]; WSL0 = [5, 6, 2, 5, 6]
L_PART = MISC; L_RS = MISC + 2048; L_CNT = MISC + 3072; L_ST = MISC + 4096; L_Q = MISC + 4096 + 0
VCH = 21504; KCH = 20480
LK = 43520; KPOS = [LK + 2*KCH, LK + 3*KCH, LK, LK + KCH]; VPOS = [LK + 4*KCH, 0, VCH, LK + 4*KCH]
SLB = [0, LK, LK + 2*KCH, LK + 3*KCH]
WS_F2 = 0x1c00000
WS_FR = 0x1c40000
WS_F3 = 0x1c80000
WS_F1 = 0x1cc0000
WS_EP = 0x1cf0000
SC = " sc1"
SPIN = 100000

class Tag(Ins):
    def __init__(self, name, kind):
        Ins.__init__(self, ""); self.name = name; self.tk = kind
def mark(name): return Tag(name, 'mark')
def waitfor(name, extra="", older=0):
    t = Tag(name, 'wait'); t.extra = extra; t.older = older; return t
def resolve(code):
    out = []; n = 0; at = {}
    for x in code:
        x = as_ins(x)
        if isinstance(x, Tag):
            if x.tk == 'mark': at[x.name] = n
            else:
                k = n - at[x.name] if x.name in at else n + x.older
                k = min(k, 63)
                out.append(Ins(f"s_waitcnt vmcnt({k}){x.extra}"))
            continue
        if x.kind == 'vmem' and not x.opaque: n += 1
        out.append(x)
    return out
def flat(c):
    o = []
    for y in c: o += flat(y) if isinstance(y, (list, tuple)) else [y]
    return o
def cost(x):
    t = 0
    for y in flat([x]):
        y = as_ins(y)
        t += {'valu': 13 if (getattr(y, 'trans', False) or 'permlane' in y.mn) else 7, 'salu': 5, 'ds': 8, 'vmem': 14, 'mfma': 30, 'wait': 5}.get(y.kind, 0)
        if y.kind == 'nop': t += 4 * y.n
    return t
DSP = opt("DSP", 90); LSP = opt("LSP", 20)
def sched(main, dmas=(), side=(), dsp=None):
    main = list(main); side = list(side); dsp = dsp or DSP
    d = []; cur = []
    for x in dmas:
        cur.append(x)
        if isinstance(x, Tag): d[-1] += cur; cur = []
        elif not isinstance(x, list) and as_ins(x).kind == 'vmem': d.append(cur); cur = []
    if cur: d[-1] += cur
    out = []; t = 0; nd = 0; nl = 0
    while main or d or side:
        if side and t >= nl: x = side.pop(0); nl = t + LSP
        elif d and (t >= nd or not (main or side)): x = d.pop(0); nd = t + dsp
        elif main: x = main.pop(0)
        else: x = f"s_nop {min(15, max(0, (nl - t + 3) // 4 - 1))}"
        out.append(x); t += cost(x)
    return out
def fin(c, pend_lg=(), pre=()):
    return fix_hazards(fix_waits(resolve(flat(c)), pend_lg=pend_lg), pre)
def pk(op, d, *src): return f"v_pk_{op}_f32 {vr(d,2)}, " + ", ".join(s if isinstance(s, str) else vr(s,2) for s in src)

X = 96; ACC = [64, 80]; WF = 32
VT = [2, 3]; VT4 = [4, 5]; EXTX = 6; RSA = 8; RS2 = 9; GC = 10; CSI = 11; VCA = 12
VL16, VH, VTOK = 13, 14, 15
CSA = 16; CSD = [20, 24]; VW = 28
TB = 32; CF = 48
VBIAS = [0, 1]
LA = 6

def c_read(n, r0=False):
    g, k = n & 1, (n % 80) >> 1; f = WF + 4 * (n % 8)
    s, l = divmod(k, 8)
    if r0: a, o = (VT[g], (WSL0[s] - 5) * U) if WSL0[s] >= 5 else (EXTX + g, 0)
    else: a, o = (VT4[g], 0) if s == 4 else (VT[g], s * U)
    o += l * 2048
    return [f"ds_read_b64_tr_b16 {vr(f,2)}, v{a} offset:{o}", f"ds_read_b64_tr_b16 {vr(f+2,2)}, v{a} offset:{o+512}"]
def c_mfma(n, orient):
    g, k = n & 1, n >> 1; f = WF + 4 * (n % 8); x = X + 4 * k
    a, b = (vr(f,4), vr(x,4)) if orient == 'N' else (vr(x,4), vr(f,4))
    i = Ins(f"v_mfma_f32_32x32x16_bf16 {vr(ACC[g],16)}, {a}, {b}, {'0' if k == 0 else vr(ACC[g],16)}")
    if n % 2 == 0: i.r = i.r | vset(WF + 4 * ((n + 1) % 8), 4)
    return i
def c_first(): return flat([c_read(n) for n in range(LA)])
def c_end(n): return ["s_waitcnt lgkmcnt(0)", "s_setprio 3"] + tr("body", 4) + ["s_barrier"] + tr("body", 5) if n == 76 else []
def c_body(orient):
    c = tr("body", 0) + c_first() + ["s_setprio 1"]
    for n in range(80):
        if n == 40: c += ["s_waitcnt vmcnt(0)"] + tr("body", 2) + ["s_barrier"] + tr("body", 3)
        c += c_end(n) + [c_mfma(n, orient)]
        if n + LA < 80: c += c_read(n + LA)
    return fin(c + tr("body", 6))
C_PRE = [c_mfma(78, 'N'), c_mfma(79, 'N')]

AD = 20; AONE = RSA; VXA = RS2
def xreads(s, t):
    xr = [[f"v_add_u32 v{t}, {XBUF[s]}, v{VXA if t == VCA else TB+4}", f"ds_read_b128 {vr(X+32*s,4)}, v{t}"]]
    for i in range(1, 8): xr.append([f"v_xor_b32 v{t}, {32*(i ^ (i-1))}, v{t}", f"ds_read_b128 {vr(X+32*s+4*i,4)}, v{t}"])
    return xr
def a_round0(orient):
    R = lambda n: c_read(n, True)
    xr = xreads(0, VCA)
    c = tr("r0", 0) + ["s_barrier"] + tr("r0", 1) + stamp(2) + xr[0] + R(0) + R(1) + xr[1:3] + R(2) + R(3) + xr[3:]
    for n in range(80):
        s, l = divmod(n, 16)
        if l == (4 if s == 0 else 0):
            for i in range(32):
                x = X + 32 * s + i
                c += [f"v_dot2c_f32_bf16 v{AD + (i & 3)}, v{x}, v{AONE}", f"v_dot2c_f32_bf16 v{AD + 4 + (i & 3)}, v{x}, v{x}"]
        if n == 76: c += ["s_waitcnt lgkmcnt(0)", "s_setprio 3", "s_barrier"]
        c += [c_mfma(n, orient)]
        if l == 0: c += R(n + 4) + R(n + 5)
        if l < 10: c += R(n + 6)
        if s < 4:
            if l == 11:
                xr = xreads(s + 1, VCA)
                c += ["s_waitcnt lgkmcnt(0)"] + tr("r0", 2*s+2) + ["s_barrier"] + tr("r0", 2*s+3)
            if l >= 12: c += R(n + 4) + xr[2*(l-12)] + xr[2*(l-12)+1]
        if n == opt("PFN", 17) and opt("PF1", 1): c += touch(sW1, 640*3456) + touch(sW2, 1728*1280) + touch(sWO, 640*1280)
        if n == 70:
            c += [f"v_add_f32 v{AD}, v{AD}, v{AD+1}", f"v_add_f32 v{AD+2}, v{AD+2}, v{AD+3}", f"v_add_f32 v{AD+4}, v{AD+4}, v{AD+5}", f"v_add_f32 v{AD+6}, v{AD+6}, v{AD+7}"]
        if n == 71: c += [f"v_add_f32 v{EXTX}, v{AD}, v{AD+2}", f"v_add_f32 v{EXTX+1}, v{AD+4}, v{AD+6}"]
        if 72 <= n < 76: c += [f"v_mov_b32 v{CSD[0]+2*(n-72)}, 0", f"v_mov_b32 v{CSD[0]+2*(n-72)+1}, 0"]
    return fin(c + tr("r0", 10))

def wdma(st, unit=None):
    if unit is not None: c = [f"s_add_u32 m0, s{sM4}, {hx((unit-4)*U)}"]
    elif st == 4: c = [f"s_mov_b32 m0, s{sM4}"]
    else: c = [f"s_add_u32 m0, s{sDST}, {st*U}"]
    c += [f"s_mul_i32 s{sT}, s{sST}, {st}", f"s_add_u32 s{sT}, s{sT}, s{sWOFF}"]
    c += [f"buffer_load_dwordx4 v{VW+e}, {sr(SWD,4)}, s{sT} offen offset:{1024*e} lds" for e in range(4)]
    return c
VX = TB
def xdma(stage):
    c = [f"s_lshl_b32 s{sT}, s{sA}, 13", f"s_add_u32 m0, s{sT}, {XBUF[stage]}"]
    c += [f"buffer_load_dwordx4 v{VX+q}, {sr(SX,4)}, s{sXOFF} offen offset:{1024*q} lds" for q in range(4)]
    c += [f"s_add_u32 m0, m0, 4096", f"s_add_u32 s{sT}, s{sXOFF}, 20480"]
    c += [f"buffer_load_dwordx4 v{VX+q}, {sr(SX,4)}, s{sT} offen offset:{1024*q} lds" for q in range(4)]
    c += [f"s_add_u32 s{sXOFF}, s{sXOFF}, 256"]
    return c
def set_w():
    a, b = sT + 5, sT + 6
    return [f"s_lshl_b32 s{sST}, s{a}, 7", f"s_mul_i32 s{sWOFF}, s{sA}, s{a}", f"s_lshl_b32 s{sWOFF}, s{sWOFF}, 5", f"s_add_u32 s{sWOFF}, s{sWOFF}, s{b}",
            f"v_lshrrev_b32 v{VW+1}, 7, v{VL16}", f"v_mul_u32_u24 v{VW}, s{a}, v{VW+1}",
            f"v_lshrrev_b32 v{VW+1}, 2, v{VL16}", f"v_xor_b32 v{VW+1}, v{VW+1}, v{VL16}",
            f"v_and_b32 v{VW+1}, 0x40, v{VW+1}", f"v_and_b32 v{VW+2}, 0x30, v{VL16}", f"v_add3_u32 v{VW}, v{VW}, v{VW+1}, v{VW+2}",
            f"s_lshl_b32 s{a}, s{a}, 3", f"s_sub_u32 s{a}, s{a}, 1024",
            f"v_add_u32 v{VW+1}, s{a}, v{VW}", f"v_add_u32 v{VW+2}, s{a}, v{VW+1}", f"v_add_u32 v{VW+3}, s{a}, v{VW+2}"]
def aim(R):
    a, b = sT + 5, sT + 6
    if R < 2:
        return [f"s_lshl_b32 s{b}, s{sCB}, 8", f"s_cmp_eq_u32 s{sCB}, 15", f"s_cselect_b32 s{b}, {24*128}, s{b}",
                f"s_cselect_b32 s{SWD}, s{sW1}, s{sWQ}", f"s_cselect_b32 s{SWD+1}, s{sW1+1}, s{sWQ+1}",
                f"s_cselect_b32 s{a}, 0, 384", f"s_add_u32 s{a}, s{a}, 3456", f"s_mul_i32 s{SWD+2}, s{a}, 640"] + [f"s_add_u32 s{b}, s{b}, 128"] * R + set_w()
    c = [f"s_mov_b32 s{SWD}, s{sW1}", f"s_mov_b32 s{SWD+1}, s{sW1+1}", f"s_mov_b32 s{SWD+2}, {640*3456}", f"s_movk_i32 s{a}, 3456",
         f"s_lshl_b32 s{b}, s{sHU}, 7"] + [f"s_add_u32 s{b}, s{b}, 128"] * (R - 2)
    return c + set_w()
def aim_next3(lab):
    a, b = sT + 5, sT + 6
    c = [f"s_cmp_eq_u32 s{sNR}, 3", f"s_cbranch_scc1 {lab}_r", f"s_add_u32 s{sWOFF}, s{sWOFF}, 128", f"s_branch {lab}_d", f"{lab}_r:",
         f"s_mul_i32 s{a}, s{sTASK}, 6554", f"s_lshr_b32 s{a}, s{a}, 16", f"s_mul_i32 s{b}, s{a}, 10", f"s_sub_u32 s{b}, s{sTASK}, s{b}", f"s_lshl_b32 s{b}, s{b}, 7",
         f"s_cmp_lt_u32 s{a}, 3", f"s_cselect_b32 s{SWD}, s{sW2}, s{sWO}", f"s_cselect_b32 s{SWD+1}, s{sW2+1}, s{sWO+1}",
         f"s_cselect_b32 s{SWD+2}, {1088*1280}, 0", f"s_cselect_b32 s{a}, s{a}, 0", f"s_add_u32 s{SWD+2}, s{SWD+2}, {640*1280}",
         f"s_mul_i32 s{a}, s{a}, {640*1280}", f"s_add_u32 s{b}, s{b}, s{a}",
         f"s_cmp_lt_u32 s{sTASK}, 40", f"s_cselect_b32 s{SWD+2}, s{SWD+2}, 0", f"s_movk_i32 s{a}, 1280"] + set_w() + [f"{lab}_d:"]
    return opaque(c)

def cs_stage(off_sgpr, off):
    c = []
    for g in range(2):
        rd = [f"ds_read_b64_tr_b16 {vr(CF+8*g+2*j,2)}, v{VCA} offset:{off + (j>>1)*2048 + (j&1)*512}" for j in range(4)]
        c += [[f"v_add_u32 v{VCA}, s{off_sgpr}, v{VT4[g]}", rd[0]]] + rd[1:]
    return c
def csm(): return [[f"v_smfmac_f32_16x16x64_bf16 {vr(CSD[g],4)}, {vr(CSA,4)}, {vr(CF+8*g,8)}, v{CSI}" for g in range(2)]]
GAP = [[], [], [], []]
def bias_ld(R):
    t = VCA
    c = [f"v_lshlrev_b32 v{t}, 1, v{VTOK}", f"v_xor_b32 v{VBIAS[0]}, 1, v{VH}", f"v_add_u32 v{VBIAS[0]}, s{sA}, v{VBIAS[0]}", f"v_lshl_add_u32 v{t}, v{VBIAS[0]}, 20, v{t}"]
    if R < 2: c += [f"s_cmp_eq_u32 s{sCB}, 15", f"s_cselect_b32 s{SB1+2}, 3456, 0", f"s_movk_i32 s{sT}, {(24+R)*128}"]
    else: c += [f"s_movk_i32 s{SB1+2}, 3456", f"s_lshl_b32 s{sT}, s{sHU}, 7"] + [f"s_add_u32 s{sT}, s{sT}, 128"] * (R - 2)
    return c + [f"buffer_load_short_d16_hi v{VBIAS[g]}, v{t}, {sr(SB1,4)}, s{sT} offen offset:{64*g}" for g in range(2)]
def partw(R):
    c = [f"s_lshl_b32 s{sT}, s{sA}, 2", f"s_add_u32 s{sT}, s{sT}, {L_PART}", f"v_add_u32 v{VCA}, s{sT}, v{VL16}"]
    for g in range(2):
        c += [f"v_add_f32 v{CSD[g]}, v{CSD[g]}, v{CSD[g]+1}", f"v_add_f32 v{CSD[g]}, v{CSD[g]}, v{VBIAS[g]}"]
    c += [f"ds_write2st64_b32 v{VCA}, v{CSD[0]}, v{CSD[1]} offset0:0 offset1:4"]
    for g in range(2): c += [f"v_mov_b32 v{CSD[g]}, 0", f"v_mov_b32 v{CSD[g]+1}, 0"]
    return c
def ext(orient):
    c = [f"v_add_u32 v{VCA}, {L_PART}, v{VL16}"] + [f"ds_read_b128 {vr(TB+4*g,4)}, v{VCA} offset:{1024*g}" for g in range(2)]
    v = []
    for g in range(2):
        t = TB + 4 * g
        v += [f"v_add_f32 v{t}, v{t}, v{t+1}", f"v_add_f32 v{t+2}, v{t+2}, v{t+3}", f"v_add_f32 v{t}, v{t}, v{t+2}",
              f"v_cvt_pk_bf16_f32 v{t+3}, v{t}, 0", f"v_lshlrev_b32 v{t+1}, 16, v{t+3}", f"v_sub_f32 v{t+1}, v{t}, v{t+1}",
              f"v_cvt_pk_bf16_f32 v{t+2}, v{t}, v{t+1}"]
    for g in range(2):
        t = TB + 4 * g
        a, b = (vr(t+2,2), vr(EXTX,2)) if orient == 'N' else (vr(EXTX,2), vr(t+2,2))
        v += [f"v_mfma_f32_32x32x8_bf16 {vr(ACC[g],16)}, {a}, {b}, {vr(ACC[g],16)}"]
    return c, v

def epi_qk(g):
    c = []; q = TB; b = TB + 1
    if g == 0:
        c += [f"v_bfe_u32 v{q}, v{VL16}, 8, 1", f"v_lshl_add_u32 v{q}, v{q}, 1, v{VH}", f"v_lshl_add_u32 v{q}, s{sCT}, 3, v{q}",
              f"v_and_b32 v{b}, 0xf0, v{VL16}", f"v_lshl_add_u32 v{b}, v{q}, 9, v{b}", f"v_mul_u32_u24 v{q}, 13108, v{q}"]
    for p in range(2):
        a = ACC[g] + 8 * p; o = TB + 8 + 4 * p; t = TB + 2 + p
        c += [f"v_lshrrev_b32 v{t}, 16, v{q}", f"v_mul_u32_u24 v{t}, {HS_QK - 2560}, v{t}", f"v_add_u32 v{t}, v{t}, v{b}"]
        if 2*g + p < 3: c += [f"v_add_u32 v{q}, {4*13108}, v{q}"]
        if 2*g + p == 1: c += [f"v_add_u32 v{b}, 4096, v{b}"]
        c += [f"v_mul_f32 v{a+i}, v{RSA}, v{a+i}" for i in range(8)]
        c += [f"v_cvt_pk_bf16_f32 v{o+i}, v{a+2*i}, v{a+2*i+1}" for i in (0, 2, 1, 3)]
        c += [f"v_permlane16_swap_b32 v{o}, v{o+2}", f"v_permlane16_swap_b32 v{o+1}, v{o+3}",
              f"buffer_store_dwordx4 {vr(o,4)}, v{t}, {sr(SWS,4)}, s{sQKROW} offen offset:{2048*p}{SC}"]
    return c
def v_addr(ad, a2, first_col):
    return [f"v_mul_u32_u24 v{ad}, 3277, v{a2}", f"v_lshrrev_b32 v{ad}, 16, v{ad}",
            f"v_mul_u32_u24 v{ad}, {HS_V - 320}, v{ad}", f"v_lshl_add_u32 v{ad}, v{a2}, 4, v{ad}",
            f"v_mul_u32_u24 v{a2}, 336, v{VH}", f"v_add_u32 v{ad}, v{ad}, v{a2}"]
def epi_v(g):
    e = ACC[g]; ad = TB + 12; a2 = TB + 13; ra = TB + 14; r = TB; p = TB + 8
    c = [[f"s_lshl_b32 s{sT+4}, s{sA}, 7", f"s_add_u32 s{sT+4}, s{sT+4}, {L_RS}", f"v_lshl_add_u32 v{ra}, v{VH}, 4, s{sT+4}"]]
    for j in range(2):
        c += [f"ds_read_b128 {vr(r+4*q,4)}, v{ra} offset:{64*j+32*q}" for q in range(2)]
        if j == 0:
            c += [[f"s_lshl_b32 s{sT+4}, s{sCT}, 5", f"s_sub_u32 s{sT+4}, s{sT+4}, {1280 - 32*g}", f"v_add_u32 v{a2}, s{sT+4}, v{VTOK}"]] + v_addr(ad, a2, 0)
        c += [f"v_mul_f32 v{e+8*j+i}, v{r+i}, v{e+8*j+i}" for i in range(8)]
        c += [f"v_cvt_pk_bf16_f32 v{p+i}, v{e+8*j+2*i}, v{e+8*j+2*i+1}" for i in range(4)]
        c += [f"buffer_store_dwordx4 {vr(p,4)}, v{ad}, {sr(SWS,4)}, s{sVOFF} offen offset:{672*j}{SC}"]
    return c
def epi_h(g):
    c = []
    for hf in range(2):
        a = ACC[g] + 8 * hf; t = TB; p = TB + 8 + 4 * hf
        R8 = range(8)
        c += [f"v_mul_f32 v{a+i}, v{RS2}, v{a+i}" for i in R8]
        c += [f"v_mul_f32 v{t+i}, v{a+i}, v{a+i}" for i in R8]
        c += [f"v_fmaak_f32 v{t+i}, v{t+i}, v{GC}, {fl(GC1)}" for i in R8]
        c += [f"v_mul_f32 v{t+i}, v{t+i}, v{a+i}" for i in R8]
        c += [f"v_exp_f32 v{t+i}, v{t+i}" for i in R8]
        c += [f"v_add_f32 v{t+i}, 1.0, v{t+i}" for i in R8]
        c += [f"v_rcp_f32 v{t+i}, v{t+i}" for i in R8]
        c += [f"v_mul_f32 v{a+i}, v{a+i}, v{t+i}" for i in R8]
        c += [f"v_cvt_pk_bf16_f32 v{p+i}, v{a+2*i}, v{a+2*i+1}" for i in range(4)]
        c += [[f"s_lshl_b32 s{sT+4}, s{sCT}, 11", f"s_add_u32 s{sT+4}, s{sT+4}, s{sHOFF}",
               f"buffer_store_dwordx4 {vr(p,4)}, v{VL16}, {sr(SWS,4)}, s{sT+4} offen offset:{2048*g + 1024*hf}{SC}"]]
    return c
EPI = {'QK': epi_qk, 'V': epi_v, 'H': epi_h}

def rbf(d, s): return [f"v_cvt_pk_bf16_f32 v{d}, v{s}, v{s}", f"v_and_b32 v{d}, 0xffff0000, v{d}"]
def stats(vt):
    m, v, d, u = EXTX, EXTX + 1, TB + 8, TB + 9
    D = TB + 12; t = TB + 8
    c = [
          f"v_permlane32_swap_b32 v{m}, v{v}", f"v_add_f32 v{m}, v{m}, v{v}", f"v_mul_f32 v{m}, {fl(1/640)}, v{m}", f"v_mov_b32 v{v}, v{m}",
          f"v_permlane32_swap_b32 v{m}, v{v}",
          f"v_fma_f32 v{v}, -v{m}, v{m}, v{v}", f"v_max_f32 v{v}, 0, v{v}"]
    c += rbf(d, v) + [f"v_add_f32 v{d}, {fl(1e-5)}, v{d}"] + rbf(d, d) + [f"v_sqrt_f32 v{d}, v{d}"] + rbf(d, d)
    c += [f"v_rcp_f32 v{u}, v{d}",
          [f"s_lshl_b32 s{sT+4}, s{sA}, 7", f"s_add_u32 s{sT+4}, s{sT+4}, {L_RS}", f"v_lshl_add_u32 v{D}, v{VTOK}, 2, s{sT+4}", f"ds_write_b32 v{D}, v{u}"] if vt else [],
          [f"s_cmp_lt_u32 s{sCB}, 5", f"s_cselect_b32 s{sT+4}, {fl(QSCALE)}, 1.0", f"v_mul_f32 v{RSA}, s{sT+4}, v{u}"],
          f"v_mul_f32 v{v}, v{v}, v{u}", f"v_mul_f32 v{v}, v{v}, v{u}"]
    c += rbf(v, v) + [f"v_add_f32 v{v}, {fl(1e-5)}, v{v}"] + rbf(v, v) + [f"v_sqrt_f32 v{v}, v{v}"] + rbf(v, v)
    c += [f"v_mul_f32 v{d}, v{d}, v{v}", f"v_rcp_f32 v{RS2}, v{d}", f"v_sub_f32 v{u}, 0, v{m}",
          [f"v_cmp_eq_u32 vcc, 0, v{VH}", f"v_cndmask_b32 v{u}, v{d}, v{u}, vcc"],
          f"v_cvt_pk_bf16_f32 v{EXTX}, v{u}, v{u}", f"v_and_b32 v{d}, 0xffff0000, v{EXTX}",
          f"v_sub_f32 v{u}, v{u}, v{d}", f"v_cvt_pk_bf16_f32 v{EXTX+1}, v{u}, 0"]
    return c
def st_addr(t): return [f"s_lshl_b32 s{sT+4}, s{sA}, 10", f"s_add_u32 s{sT+4}, s{sT+4}, {L_ST}", f"v_add_u32 v{t}, s{sT+4}, v{VL16}"]

def poll_load(t, voff, soff, n=1): return f"buffer_load_dword{'x4' if n == 4 else ''} {vr(t,n)}, v{voff}, {sr(SWS,4)}, {soff} offen{SC}"
def poll_check(lab, t, voff, soff, n=1):
    c = [f"s_mov_b32 s{sT+2}, {SPIN}", f"{lab}:"]
    if n == 4:
        c += [f"v_xor_b32 v{t+i}, s{sN}, v{t+i}" for i in range(4)]
        c += [f"v_or3_b32 v{t}, v{t}, v{t+1}, v{t+2}", f"v_or_b32 v{t}, v{t}, v{t+3}", f"v_cmp_ne_u32 vcc, 0, v{t}"]
    else: c += [f"v_cmp_ne_u32 vcc, s{sN}, v{t}"]
    c += ["s_nop 0", "s_cmp_eq_u64 vcc, 0", f"s_cbranch_scc1 {lab}_x"]
    c += opaque([f"s_sleep {opt('SLEEP', 1)}", poll_load(t, voff, soff, n), f"s_sub_u32 s{sT+2}, s{sT+2}, 1", "s_waitcnt vmcnt(0)", f"s_cbranch_scc0 {lab}"])
    return c + [f"{lab}_x:"]
sK, sV, sPC = sT + 9, sT + 10, sT + 8
def kvdma(n, so, lds_base):
    c = []
    for j in range(n):
        c += [f"s_add_u32 m0, s{sPC}, {lds_base + 4096*j}",
              f"buffer_load_dwordx4 v{VL16}, {sr(SWS,4)}, s{so} offen{SC} lds", f"s_add_u32 s{so}, s{so}, 4096"]
    return c
def vchunk(pos):
    return kvdma(5, sV, pos) + [f"s_cmp_eq_u32 s{sA}, 0", f"s_cselect_b32 s{sT+1}, s{sV}, {hx(WS_SIZE)}", f"s_cselect_b32 s{sT}, {hx(pos + 20480 - MISC - 15360)}, 0",
            f"s_add_u32 m0, s{sT}, {MISC + 15360}", f"buffer_load_dwordx4 v{VL16}, {sr(SWS,4)}, s{sT+1} offen{SC} lds", f"s_add_u32 s{sV}, s{sV}, 1024"]
PF, PA = 96, 100
def f1_addr(first):
    t = PA + 1
    c = [f"v_lshrrev_b32 v{t}, {6 if first else 8}, v{VL16}"] + ([f"v_min_u32 v{t}, 5, v{t}"] if first else [])
    c += [f"v_and_b32 v{t+1}, 1, v{t}", f"v_mul_u32_u24 v{t+1}, 19, v{t+1}", f"v_lshrrev_b32 v{t}, 1, v{t}",
          f"v_mul_u32_u24 v{PA}, 640, v{t}", f"s_mul_i32 s{sT+3}, s{sHEAD}, 20", f"s_add_u32 s{sT+3}, s{sT+3}, 640", f"v_add3_u32 v{PA}, v{PA}, v{t+1}, s{sT+3}",
          f"v_lshrrev_b32 v{PA}, 7, v{PA}"]
    if first:
        c += [f"v_bfe_u32 v{t+1}, v{VL16}, 4, 2", f"v_lshl_add_u32 v{PA}, v{PA}, 4, v{t+1}",
              f"v_and_b32 v{t+2}, {hx(~2)}, v{PA}", f"s_lshl_b32 s{sT+3}, s{sQB}, 1", f"s_sub_u32 s{sT+3}, s{sT+3}, 240", f"v_add_u32 v{t+2}, s{sT+3}, v{t+2}",
              f"v_cmp_eq_u32 vcc, 2, v{t}", f"v_cndmask_b32 v{PA}, v{PA}, v{t+2}, vcc"]
    else:
        c += [f"v_bfe_u32 v{t+1}, v{VL16}, 4, 4", f"v_lshl_add_u32 v{PA}, v{PA}, 4, v{t+1}"]
    return c + [f"v_lshlrev_b32 v{PA}, 7, v{PA}", f"s_mov_b32 s{sT+3}, {hx(WS_F1)}", poll_load(PF, PA, f"s{sT+3}", 4)]
def kv_base(skip):
    return [f"s_lshl_b32 s{sPC}, s{sA}, 10",
            f"s_mul_i32 s{sK}, s{sHEAD}, {HS_QK}", f"s_add_u32 s{sK}, s{sK}, s{sPC}",
            f"s_mul_i32 s{sT+7}, s{sQB}, 10240", f"s_add_u32 s{sT+7}, s{sT+7}, s{sK}", f"s_add_u32 s{sK}, s{sK}, {hx(WS_K + skip*KCH)}",
            f"s_mul_i32 s{sV}, s{sHEAD}, {HS_V}", f"s_add_u32 s{sV}, s{sV}, {hx(WS_V + skip*VCH)}", f"s_add_u32 s{sV}, s{sV}, s{sPC}"]
def first_kv(): return kvdma(3, sT + 7, L_Q) + kvdma(5, sK, KPOS[0]) + vchunk(VPOS[0]) + [mark("kv0")]
def rest_kv(): return kvdma(5, sK, KPOS[1]) + vchunk(VPOS[1]) + kvdma(10, sK, KPOS[2]) + vchunk(VPOS[2])
def flag_store2(soff, t):
    return [f"v_lshlrev_b32 v{t+2}, 21, v{VL16}", f"v_mov_b32 v{t}, s{sN}", f"v_mov_b32 v{t+1}, s{sN}", f"buffer_store_dwordx2 {vr(t,2)}, v{t+2}, {sr(SWS,4)}, {soff} offen{SC}"]
def flag_store(soff, t):
    return [f"v_lshlrev_b32 v{t}, 21, v{VL16}", f"v_mov_b32 v{t+1}, s{sN}", f"buffer_store_dword v{t+1}, v{t}, {sr(SWS,4)}, {soff} offen{SC}"]
def f1_signal():
    return [[f"s_lshl_b32 s{sT+4}, s{sCB}, 4", f"s_add_u32 s{sT+4}, s{sT+4}, s{sRB}", f"s_lshl_b32 s{sT+4}, s{sT+4}, 5", f"s_add_u32 s{sT+4}, s{sT+4}, s{sA}",
             f"s_lshl_b32 s{sT+4}, s{sT+4}, 2", f"s_add_u32 s{sT+4}, s{sT+4}, {hx(WS_F1)}"] + flag_store(f"s{sT+4}", CSD[0] + 2)
            + [f"v_mov_b32 v{CSD[0]+2}, 0", f"v_mov_b32 v{CSD[0]+3}, 0"]]
def xs(name): return stamp(1) if opt("XS", "") == name else []
def take(lst, budget):
    t = 0
    for i, x in enumerate(lst):
        t += cost(x)
        if t > budget: return lst[:i], lst[i:]
    return lst, []
def helper(R, etype):
    er, ev = ext('V' if etype == 'V' else 'N')
    epi = EPI[etype](0) + EPI[etype](1)
    c = tr("body", 0) + er
    if R == 2: c += st_addr(TB + 8) + [f"ds_read_b128 {vr(EXTX,4)}, v{TB+8}"]
    if R == 3: c += [f"s_add_u32 s{sWOFF}, s{sWOFF}, 128"]
    main = (stats(etype == 'V') if R == 1 else []) + ev + epi
    late = cs_stage(sM4, 0)
    late = [[late[0][0], f"v_subrev_u32 v{VCA}, {4*U}, v{VCA}", late[0][1]]] + late[1:4] + [[late[4][0], f"v_subrev_u32 v{VCA}, {4*U}, v{VCA}", late[4][1]]] + late[5:]
    st = [cs_stage(sCSB, s * U) for s in range(4)] + [late]
    ma, mb = csm()[0]
    cs1 = st[0] + [ma] + st[1][:4] + [mb] + st[1][4:] + [ma] + st[2][:4] + [mb] + st[2][4:] + [ma]
    cs2 = st[3][:4] + [mb] + st[3][4:] + [ma] + st[4][:4] + [mb] + st[4][4:] + [ma]
    y1 = tr("body", 2) + [waitfor("m1")] + tr("body", 3) + ["s_barrier"]
    if R < 3:
        nxt = aim(2) if R == 1 else aim_next3("LH2" + etype)
        d = [nxt] + wdma(0) + wdma(1) + wdma(2) + [mark("m2")] + wdma(3)
        c += wdma(4) + [mark("m1")] + bias_ld(R)
        if R == 1:
            m1, m2 = take(main, 520)
            c += sched(m1, d[:23], cs1[:14], dsp=70) + y1 + sched(m2, d[23:], cs1[14:] + cs2 + GAP + [mb], dsp=70)
            c += st_addr(VCA) + [f"ds_write_b128 v{VCA}, {vr(EXTX,4)}"]
        else:
            m1, m2 = take(main, 760) if etype == 'H' else (main, [])
            c += sched(m1 + [mark("st")], side=cs1[:9]) + sched([], d[:8], dsp=40) + y1
            c += sched([], d[8:15], cs1[9:19], dsp=50) + tr("body", 8) + [waitfor("st")] + xs("f1") + tr("body", 9) + f1_signal()
            c += sched(m2, d[15:], cs1[19:] + cs2 + GAP + [mb], dsp=50)
        c += partw(R)
        c += tr("body", 4) + [waitfor("m2", " lgkmcnt(0)")] + tr("body", 5)
        if R == 1 and etype == 'QK': c += [f"s_cmp_lt_u32 s{sCB}, 5", "s_cbranch_scc1 LA_nmk"] + opaque(o_marks()) + ["LA_nmk:"]
        c += ["s_barrier"]
    else:
        f1 = f1_addr(True)
        c += wdma(4) + [mark("m1")] + bias_ld(R)
        m0, m1 = take(main, opt("K0", 200)); m1, m2 = take(m1, opt("K1", 400)); m2, m3 = take(m2, opt("K2", 900))
        c += sched(m0 + [f1], side=cs1[:9]) + tr("body", 7) + sched(m1 + [kv_base(0)], side=cs1[9:])
        c += tr("body", 8) + poll_check("LH3p", PF, PA, f"s{sT+3}", 4) + xs("poll") + tr("body", 9) + y1
        c += sched(m2, first_kv(), cs2 + GAP + [mb], dsp=30) + partw(R)
        c += tr("body", 4) + [waitfor("kv0", " lgkmcnt(0)")] + tr("body", 5) + ["s_barrier"] + xs("T") + m3 + tr("body", 6)
    return c

def lane_setup(grp):
    t = TB + 8
    c = [f"v_bfe_u32 v{t}, v0, 2, 2", f"v_lshl_add_u32 v{t+1}, v{VH}, 3, v{t}", f"v_lshlrev_b32 v{t+1}, 7, v{t+1}",
         f"v_lshrrev_b32 v{t}, 1, v{t}", f"v_lshl_add_u32 v{t+1}, v{t}, 6, v{t+1}",
         f"v_bfe_u32 v{t}, v0, 4, 1", f"v_lshl_add_u32 v{t+1}, v{t}, 5, v{t+1}",
         f"v_and_b32 v{t}, 3, v0", f"v_lshl_add_u32 v{VT[0]}, v{t}, 3, v{t+1}", f"v_xor_b32 v{VT[1]}, 64, v{VT[0]}",
         f"v_add_u32 v{VT4[0]}, {4*U}, v{VT[0]}", f"v_add_u32 v{VT4[1]}, {4*U}, v{VT[1]}"]
    xa = VXA if grp == 'A' else TB + 4
    c += [f"v_and_b32 v{t}, 15, v0", f"v_xor_b32 v{t}, v{t}, v{VH}", f"v_lshlrev_b32 v{t}, 4, v{t}",
          f"v_lshl_add_u32 v{t}, v{VTOK}, 8, v{t}", f"s_lshl_b32 s{sT}, s{sA}, 13", f"v_add_u32 v{xa}, s{sT}, v{t}"]
    if grp == 'A':
        c += [f"v_add_u32 v{EXTX+g}, {2*U}, v{VT[g]}" for g in range(2)] + [f"v_add_u32 v{VT[g]}, {5*U}, v{VT[g]}" for g in range(2)]
        c += [f"s_sub_u32 s{sCSB}, s{sM4}, {8*U}", f"s_add_u32 s{sDST}, s{sM4}, {U}", f"v_mov_b32 v{AONE}, 0x3f803f80"]
    else:
        c += [f"s_sub_u32 s{sCSB}, s{sM4}, {3*U}", f"s_sub_u32 s{sDST}, s{sM4}, {4*U}"]
    c += [f"v_mov_b32 v{GC}, {fl(GC2)}", f"v_mov_b32 v{t+1}, 0x3f803f80", f"v_and_b32 v{t}, 14, v0",
          f"v_cmp_eq_u32 vcc, 0, v{t}", f"v_cndmask_b32 v{CSA}, 0, v{t+1}, vcc", f"v_mov_b32 v{CSA+1}, v{CSA}",
          f"v_cmp_eq_u32 vcc, 4, v{t}", f"v_cndmask_b32 v{CSA+2}, 0, v{t+1}, vcc", f"v_mov_b32 v{CSA+3}, v{CSA+2}",
          f"v_and_b32 v{t}, 1, v0", f"v_mul_u32_u24 v{t}, 0xaaaa, v{t}", f"v_add_u32 v{CSI}, 0x4444, v{t}"]
    c += [f"v_mov_b32 v{r}, 0" for r in range(CSD[0], CSD[0]+8)]
    c += [f"s_lshl_b32 s{sT}, s{sRB}, 2", f"s_add_u32 s{sT}, s{sT}, s{sA}",
          f"s_lshr_b32 s{sT+1}, s{sT}, 1", f"s_mul_i32 s{sQKROW}, s{sT+1}, 2560", f"s_and_b32 s{sT+1}, s{sT}, 1",
          f"s_lshl_b32 s{sT+1}, s{sT+1}, 8", f"s_add_u32 s{sQKROW}, s{sQKROW}, s{sT+1}",
          f"s_mul_i32 s{sVOFF}, s{sT}, 1344", f"s_add_u32 s{sVOFF}, s{sVOFF}, {hx(WS_V)}",
          f"s_mul_i32 s{sHOFF}, s{sT}, {108*1024}", f"s_add_u32 s{sHOFF}, s{sHOFF}, {hx(WS_H)}",
          f"s_lshl_b32 s{sCT}, s{sCB}, 2", f"s_cmp_eq_u32 s{sCB}, 15", f"s_cselect_b32 s{sCT}, 48, s{sCT}"]
    if grp == 'B': c += [f"s_add_u32 s{sCT}, s{sCT}, 2"]
    return c
def ones_rows():
    t = TB + 8
    return [f"s_lshl_b32 s{sT}, s{sCB}, 7", f"s_sub_u32 s{sT}, s{sT}, {1280 - 19}", f"s_mul_i32 s{sT+1}, s{sT}, 3277", f"s_lshr_b32 s{sT+1}, s{sT+1}, 16",
            f"v_lshrrev_b32 v{t}, 2, v0", f"v_add_u32 v{t}, s{sT+1}, v{t}",
            f"v_mul_u32_u24 v{t+1}, 20, v{t}", f"s_add_u32 s{sT}, s{sT}, {128 - 19}", f"v_cmp_gt_u32 vcc, s{sT}, v{t+1}",
            f"v_mul_u32_u24 v{t}, {HS_V}, v{t}", f"v_and_b32 v{t+1}, 3, v0", f"v_mul_u32_u24 v{t+1}, 336, v{t+1}", f"v_add_u32 v{t}, v{t}, v{t+1}",
            f"v_mov_b32 v{t+1}, {hx(OOB)}", f"v_cndmask_b32 v{t}, v{t+1}, v{t}, vcc"] + [f"v_mov_b32 v{t+4+i}, 0x3f803f80" for i in range(4)] + [
            f"buffer_store_dwordx4 {vr(t+4,4)}, v{t}, {sr(SWS,4)}, s{sVOFF} offen offset:320{SC}"]

def o_marks():
    t = TB + 8
    c = [f"s_lshl_b32 s{sT}, s{sCB}, 7", f"s_sub_u32 s{sT}, s{sT}, {640 - 19}", f"s_mul_i32 s{sT+1}, s{sT}, 3277", f"s_lshr_b32 s{sT+1}, s{sT+1}, 16",
         f"s_add_u32 s{sT}, s{sT}, 128", f"s_mul_i32 s{sT}, s{sT}, 3277", f"s_lshr_b32 s{sT}, s{sT}, 16",
         f"s_lshl_b32 s{sT+2}, s{sRB}, 2", f"s_add_u32 s{sT+2}, s{sT+2}, s{sA}", f"s_mul_i32 s{sT+2}, s{sT+2}, 40960", f"s_add_u32 s{sT+2}, s{sT+2}, {hx(WS_O)}",
         f"v_lshrrev_b32 v{t}, 8, v{VL16}", f"v_lshl_add_u32 v{t}, v{t}, 28, v{VL16}"] + [f"v_mov_b32 v{t+4+i}, -1" for i in range(4)]
    c += ["LA_mk:", f"s_lshl_b32 s{sT+3}, s{sT+1}, 10", f"s_add_u32 s{sT+3}, s{sT+3}, s{sT+2}",
          f"buffer_store_dwordx4 {vr(t+4,4)}, v{VL16}, {sr(SWS,4)}, s{sT+3} offen{SC}",
          f"s_lshl_b32 s{sT+3}, s{sT+1}, 8", f"s_add_u32 s{sT+3}, s{sT+3}, s{sT+2}", f"s_add_u32 s{sT+3}, s{sT+3}, 32768",
          f"buffer_store_dwordx4 {vr(t+4,4)}, v{t}, {sr(SWS,4)}, s{sT+3} offen{SC}",
          f"s_add_u32 s{sT+1}, s{sT+1}, 1", f"s_cmp_lt_u32 s{sT+1}, s{sT}", "s_cbranch_scc1 LA_mk"]
    return c

def b_round0():
    c = xdma(0) + aim(0) + wdma(0, WSL0[0]) + [mark("d0")] + lane_setup('B')
    c += bias_ld(0)
    c += xdma(1) + wdma(1, WSL0[1]) + [mark("d1")] + stamp(1) + ["s_waitcnt lgkmcnt(0)", f"s_add_u32 s{sN}, s{sN}, 1"]
    for s in range(5):
        c += tr("r0", 2*s) + [waitfor(f"d{s}", " lgkmcnt(0)")] + tr("r0", 2*s+1) + ["s_barrier"]
        if s == 0: c += stamp(2)
        c += [f"s_add_u32 s{sT+1}, s{sM4}, {hx((WSL0[s]-8)*U)}"]
        side = xreads(s, TB + 5) + cs_stage(sT + 1, 0)
        if s < 3: d = xdma(s + 2) + wdma(s + 2, WSL0[s + 2]) + [mark(f"d{s+2}")]
        if s == 3: d = [f"s_add_u32 s{sWOFF}, s{sWOFF}, 128"] + wdma(0) + [mark("m1")] + wdma(1) + wdma(2) + [mark("m2")]
        if s == 4: d = wdma(3)
        c += sched([], d, side, dsp=24) + csm()
    c += aim(2) + partw(0) + [waitfor("m2", " lgkmcnt(0)"), "s_barrier"]
    return fin(c + tr("r0", 10))

RL = 112
def relayout_read():
    t = TB; u = sT
    c = [f"v_and_b32 v{t}, 0x1ff, v{VT[0]}", f"s_cmp_lt_u32 s{sTASK}, 30",
         f"s_cselect_b32 s{u}, 16, 20", f"s_cselect_b32 s{u+1}, 4, 40", f"s_cselect_b32 s{u+4}, 8, 20", f"s_cselect_b32 s{u+5}, 16, 80", f"s_cselect_b32 s{u+6}, 512, 16",
         f"s_lshl_b32 s{u}, s{u}, 7", f"s_lshl_b32 s{u+1}, s{u+1}, 7", f"s_lshl_b32 s{u+4}, s{u+4}, 7", f"s_lshl_b32 s{u+5}, s{u+5}, 7", f"s_lshl_b32 s{u+6}, s{u+6}, 7",
         f"s_mul_i32 s{u+2}, s{u}, s{sA}", f"s_lshl_b32 s{u+2}, s{u+2}, 3",
         f"v_lshl_add_u32 v{t+1}, v{VH}, 9, v{t}", f"v_add_u32 v{t+1}, s{u+2}, v{t+1}"]
    for k in range(8):
        c += [f"v_xor_b32 v{t+2}, 64, v{t+1}"]
        for g in range(2):
            c += [f"ds_read_b64_tr_b16 {vr(RL+8*k+4*g,2)}, v{t+1+g}", f"ds_read_b64_tr_b16 {vr(RL+8*k+4*g+2,2)}, v{t+1+g} offset:1024"]
        c += [f"v_add_u32 v{t+1}, s{u}, v{t+1}"]
    c += [f"s_mul_i32 s{u+2}, s{u+5}, s{sA}", f"s_lshl_b32 s{u+2}, s{u+2}, 1", f"s_add_u32 s{u+2}, s{u+2}, s{u+6}",
          f"v_mad_u32_u24 v{t+1}, v{VH}, s{u+1}, v{t}", f"v_add_u32 v{t+1}, s{u+2}, v{t+1}"]
    for k in (8, 9):
        c += [f"v_add_u32 v{t+2}, s{u+4}, v{t+1}", f"v_xor_b32 v{t+3}, 64, v{t+1}", f"v_xor_b32 v{t+4}, 64, v{t+2}"]
        c += [f"ds_read_b64_tr_b16 {vr(RL+8*k+2*i,2)}, v{t+1+i}" for i in range(4)]
        c += [f"v_add_u32 v{t+1}, s{u+5}, v{t+1}"]
    return c
def relayout_store():
    u = sT; d0, d1, ks, lim = sR, sCT, sXOFF, sST
    c = [f"s_mul_i32 s{u+2}, s{sTASK}, 6554", f"s_lshr_b32 s{u+2}, s{u+2}, 16",
         f"s_mul_i32 s{u}, s{u+2}, 10", f"s_sub_u32 s{u}, s{sTASK}, s{u}", f"s_lshl_b32 s{u+6}, s{u}, 1",
         f"s_cmp_lt_u32 s{u+2}, 3", f"s_cselect_b32 s{u+5}, 108, 40", f"s_cselect_b32 s{u+4}, 0, {hx(WS_WOF - WS_W2F)}", f"s_cselect_b32 s{u+2}, s{u+2}, 0",
         f"s_mul_i32 s{u+2}, s{u+2}, {40*5120}", f"s_mul_i32 s{u+5}, s{u+5}, 5120", f"s_sub_u32 s{lim}, s{u+5}, s{u+2}",
         f"s_add_u32 s{u+4}, s{u+4}, s{u+2}", f"s_add_u32 s{u+4}, s{u+4}, {hx(WS_W2F)}"]
    for g, d in ((0, d0), (1, d1)):
        c += [f"s_add_u32 s{u}, s{u+6}, {g}", f"s_mul_i32 s{u+1}, s{u}, 52429", f"s_lshr_b32 s{u+1}, s{u+1}, 18",
              f"s_mul_i32 s{u+2}, s{u+1}, 5", f"s_sub_u32 s{u}, s{u}, s{u+2}", f"s_lshl_b32 s{u}, s{u}, 10",
              f"s_mul_i32 s{u+1}, s{u+1}, s{u+5}", f"s_add_u32 s{d}, s{u}, s{u+1}", f"s_add_u32 s{d}, s{d}, s{u+4}"]
    c += [f"s_mul_i32 s{ks}, s{sA}, {8*5120}"]
    for k in range(10):
        if k == 8: c += [f"s_mul_i32 s{ks}, s{sA}, {2*5120}", f"s_add_u32 s{ks}, s{ks}, {32*5120}"]
        c += [f"s_cmp_lt_u32 s{ks}, s{lim}", f"s_cbranch_scc0 LB_rs{k}", f"s_add_u32 s{u}, s{ks}, s{d0}", f"s_add_u32 s{u+1}, s{ks}, s{d1}",
              f"buffer_store_dwordx4 {vr(RL+8*k,4)}, v{VL16}, {sr(SWS,4)}, s{u} offen{SC}",
              f"buffer_store_dwordx4 {vr(RL+8*k+4,4)}, v{VL16}, {sr(SWS,4)}, s{u+1} offen{SC}", f"LB_rs{k}:", f"s_add_u32 s{ks}, s{ks}, 5120"]
    return c + fr_addr() + ["s_waitcnt vmcnt(0)"] + flag_store(f"s{sT}", TB)

def prologue():
    t = TB + 8; j = sT + 3
    c = ["s_cmp_ge_u32 s2, 256", "s_cbranch_scc1 L_end",
         f"s_load_dwordx2 {sr(SX,2)}, s[0:1], 0", f"s_load_dwordx2 {sr(sWQ,2)}, s[0:1], 8", f"s_load_dwordx2 {sr(sW1,2)}, s[0:1], 32",
         f"s_load_dwordx2 {sr(SWS,2)}, s[0:1], 80", f"s_load_dwordx2 {sr(SB1,2)}, s[0:1], 40", f"s_load_dwordx2 {sr(sWO,2)}, s[0:1], 16",
         f"s_load_dwordx2 {sr(sW2,2)}, s[0:1], 48", f"s_load_dwordx2 {sr(SB2,2)}, s[0:1], 56", f"s_load_dwordx2 {sr(SOUT,2)}, s[0:1], 64",
         f"v_lshrrev_b32 v1, 6, v0", f"v_and_b32 v0, 63, v0", f"v_readfirstlane_b32 s{sW}, v1",
         f"v_lshlrev_b32 v{VL16}, 4, v0", f"v_lshrrev_b32 v{VH}, 5, v0", f"v_and_b32 v{VTOK}, 31, v0",
         f"s_and_b32 s{sA}, s{sW}, 3", f"s_lshr_b32 s{j}, s2, 3", f"s_and_b32 s{sT}, s2, 7",
         f"s_and_b32 s{sRB}, s2, 3", f"s_lshl_b32 s{sRB}, s{sRB}, 2", f"s_and_b32 s{sCG}, s{j}, 3", f"s_add_u32 s{sRB}, s{sRB}, s{sCG}",
         f"s_lshr_b32 s{sT+1}, s{j}, 2", f"s_lshl_b32 s{sCB}, s{sT+1}, 1", f"s_lshr_b32 s{sT+2}, s{sT}, 2", f"s_add_u32 s{sCB}, s{sCB}, s{sT+2}",
         f"s_lshl_b32 s{sRTILE}, s{sT}, 3", f"s_add_u32 s{sRTILE}, s{sRTILE}, s{sT+1}",
         f"s_lshl_b32 s{sHEAD}, s{sT}, 2", f"s_lshr_b32 s{sT+2}, s{j}, 3", f"s_add_u32 s{sHEAD}, s{sHEAD}, s{sT+2}", f"s_and_b32 s{sQB}, s{j}, 7",
         f"s_mul_i32 s{sTASK}, s{sT}, 5", f"s_sub_u32 s{sT+1}, s{j}, 20", f"s_add_u32 s{sTASK}, s{sTASK}, s{sT+1}",
         f"s_cmp_lt_u32 s{sT+1}, 5", f"s_cselect_b32 s{sTASK}, s{sTASK}, 99",
         f"s_lshl_b32 s{sHU}, s{sCB}, 1", f"s_add_u32 s{sT}, s{sCB}, 9", f"s_cmp_lt_u32 s{sCB}, 9", f"s_cselect_b32 s{sHU}, s{sHU}, s{sT}",
         f"s_cselect_b32 s{sNR}, 4, 3", f"s_cmp_eq_u32 s{sCB}, 15", f"s_cselect_b32 s{sHU}, 26, s{sHU}",
         f"s_lshl_b32 s{sT}, s{sRB}, 2", f"s_add_u32 s{sT}, s{sT}, s{sA}", f"s_mul_i32 s{sXOFF}, s{sT}, {32*1280}",
         f"s_lshl_b32 s{sM4}, s{sA}, 12", f"s_add_u32 s{sM4}, s{sM4}, {4*U}",
         f"v_lshrrev_b32 v{t}, 4, v0", f"v_xor_b32 v{t+1}, v{t}, v0", f"v_and_b32 v{t+1}, 15, v{t+1}", f"v_lshlrev_b32 v{t+1}, 4, v{t+1}",
         f"v_mul_u32_u24 v{t}, 1280, v{t}", f"v_add_u32 v{VX}, v{t}, v{t+1}"]
    for q in range(1, 4):
        c += [f"v_xor_b32 v{t+2}, {64*q}, v{t+1}", f"v_add_u32 v{t+2}, {4096*q}, v{t+2}", f"v_add_u32 v{VX+q}, v{t}, v{t+2}"]
    for d, size in ((SX, 2621440), (SWD, 0), (SWS, WS_SIZE), (SB1, 0), (SB2, 1280), (SOUT, 2621440)):
        c += [f"s_mov_b32 s{d+2}, {hx(size)}", f"s_mov_b32 s{d+3}, 0x00020000"]
    c += ["s_waitcnt lgkmcnt(0)", f"s_add_u32 s{sT+8}, s{SWS}, {hx(WS_EP)}", f"s_addc_u32 s{sT+9}, s{SWS+1}, 0", f"s_load_dword s{sN}, {sr(sT+8,2)}, 0"]
    return fix_hazards(c)
def touch(ptr, nbytes):
    n = -(-nbytes // 128 // 1024); t = VCA; d = sT + 6
    return [f"s_mov_b32 s{d}, s{ptr}", f"s_mov_b32 s{d+1}, s{ptr+1}", f"s_mov_b32 s{d+2}, {nbytes}", f"s_mov_b32 s{d+3}, 0x00020000",
            f"s_lshl_b32 s{sT}, s2, 2", f"s_add_u32 s{sT}, s{sT}, s{sA}", f"s_mul_i32 s{sT}, s{sT}, {n*128}",
            f"v_min_u32 v{t}, {16*(n-1)}, v{VL16}", f"v_lshl_add_u32 v{t}, v{t}, 3, s{sT}", f"buffer_load_dword v1, v{t}, {sr(d,4)}, 0 offen"]
def page_touch():
    c = [f"s_lshl_b32 s{sT}, s{sA}, 23", f"s_add_u32 s{sT+6}, s{SWS}, s{sT}", f"s_addc_u32 s{sT+7}, s{SWS+1}, 0"]
    for k in range(8):
        c += [f"s_load_dword s101, {sr(sT+6,2)}, 0", f"s_add_u32 s{sT+6}, s{sT+6}, 0x100000", f"s_addc_u32 s{sT+7}, s{sT+7}, 0"]
    c += [f"s_mul_i32 s{sT}, s{sA}, 0xa0000", f"s_add_u32 s{sT+6}, s{SOUT}, s{sT}", f"s_addc_u32 s{sT+7}, s{SOUT+1}, 0", f"s_load_dword s101, {sr(sT+6,2)}, 0"]
    return c
def code_prefetch():
    t = TB + 8
    return [f"s_getpc_b64 s[{sT+6}:{sT+7}]", "L_pc:", f"s_sub_u32 s{sT+6}, s{sT+6}, L_pc-L_first", f"s_subb_u32 s{sT+7}, s{sT+7}, 0",
            f"s_lshr_b32 s{sT}, s2, 3", f"s_lshl_b32 s{sT}, s{sT}, 2", f"s_add_u32 s{sT}, s{sT}, s{sA}", f"s_lshl_b32 s{sT}, s{sT}, 7",
            f"v_lshlrev_b32 v{t}, 14, v0", f"v_add_u32 v{t}, s{sT}, v{t}", f"v_min_u32 v{t}, L_last-L_first-4, v{t}",
            f"global_load_dword v1, v{t}, s[{sT+6}:{sT+7}]"]

S = {(0,0): 16, (1,0): 32, (0,1): 48, (1,1): 64}
O = [80, 96]; Q = [112, 118]; K = [124, 130]; V = [136, 144]; IDX = 152
AK0, AK1, AK2, AV, AVM, VVG = 153, 154, 155, 156, 157, 158
sIT, sDK, sDV = sT + 2, sT + 6, sT + 7
T = 2
PAT = opt("PAT", "CkeeDkweeAeeeBeeeeeeeee,CveeDveeAeeeBeeeeeeeee").split(",")
WOF = 124; RED = 16; OF = [64 + 4*i for i in range(10)]; GR = 104; PD = 116; XV = 244; IA = 250; IG = 252; VL2 = 254; SA = 4; PAD = 3

def qk(dst, kf, q):
    return (f"v_mfma_f32_32x32x16_bf16 {vr(dst,16)}, {vr(kf,4)}, {vr(Q[q],4)}, 0",
            f"v_mfma_f32_32x32x8_bf16 {vr(dst,16)}, {vr(kf+4,2)}, {vr(Q[q]+4,2)}, {vr(dst,16)}")
def pv(q, vf, s):
    return (f"v_smfmac_f32_32x32x32_bf16 {vr(O[q],16)}, {vr(vf,4)}, {vr(s,8)}, v{IDX}",
            f"v_smfmac_f32_32x32x32_bf16 {vr(O[q],16)}, {vr(vf+4,4)}, {vr(s+8,8)}, v{IDX}")
def kread(kt):
    kt &= 15
    f = K[kt & 1]
    return [f"ds_read2st64_b64 {vr(f,4)}, v{AK1 if kt & 1 else AK0} offset0:{5*(kt>>1)} offset1:{5*(kt>>1)+1}",
            f"ds_read_b32 v{f+4}, v{AK2} offset:{(kt>>1)*2560 + (kt&1)*256}"]
def vread(kt):
    f = V[kt & 1]; a = AV
    kt &= 15
    return [f"ds_read_b128 {vr(f,4)}, v{a} offset:{kt*1344}", f"ds_read_b128 {vr(f+4,4)}, v{a} offset:{kt*1344+672}"]
def loop_body(last=False, pat=PAT):
    c = []
    extra = []
    if last:
        cur = []
        for x in [y.replace(f"s{sT+1}", f"s{sT+9}").replace(f"s{sT}", f"s{sT+8}") for y in wo_loads(0, 2)] + item_loads():
            cur.append(x)
            if as_ins(x).kind == 'vmem' or len(cur) == 4: extra.append(cur); cur = []
    for i in range(32):
        kt, q = divmod(i, 2); ktp, qp = divmod(i - 1, 2)
        sc = S[(q, kt & 1)]
        A, B = qk(S[(q, (kt + 1) & 1)], K[(kt + 1) & 1], q)
        C, D = pv(qp, V[ktp & 1], S[(qp, ktp & 1)])
        kf = kread(kt + 2); vf = vread(kt + 1)
        e = f = 0; seen = ""
        for ch in pat[q]:
            if ch in 'AB':
                if not (last and kt == 15): c.append(A if ch == 'A' else B)
                if ch == 'B' and extra: c += extra.pop(0)
            elif ch == 'C': c.append(C)
            elif ch == 'D': c.append(D)
            elif ch == 'e': c.append(f"v_exp_f32 v{sc+e}, v{sc+e}"); e += 1
            elif ch == 'k':
                if kt == 14 and len(kf) == 2:
                    if not last: c += [f"v_add_u32 v{r}, s{sDK}, v{r}" for r in (AK0, AK1, AK2)] + ["s_waitcnt lgkmcnt(2)"]
                    c += ["s_barrier"]
                if kt == 4 and len(kf) == 2 and not last:
                    c += ["s_waitcnt vmcnt(0)", flag_store2(f"s{sT+10}", 160)[3]]
                x = kf.pop(0)
                if not (last and kt >= 14): c.append(x); f += 1
            elif ch == 'v':
                if q == 0: assert ("C" if len(vf) == 2 else "D") in seen
                if kt == 15 and len(vf) == 2 and not last: c += [f"v_mad_i32_i24 v{AV}, v{AVM}, s{sDV}, v{AV}"]
                x = vf.pop(0)
                if not (last and kt == 15): c.append(x); f += 1
            elif ch == 'w': c.append(f"s_waitcnt lgkmcnt({f})")
            seen += ch
        assert e == 16
    assert not extra
    return c
def shift_split(q, m):
    t = T + 6
    return [f"v_sub_f32 v{m}, 0, v{m}",
            f"v_cvt_pk_bf16_f32 v{t}, v{m}, v{m}", f"v_and_b32 v{t}, 0xffff0000, v{t}", f"v_sub_f32 v{t}, v{m}, v{t}",
            f"v_cvt_pk_bf16_f32 v{t+1}, v{m}, v{t}", f"v_and_b32 v{t+2}, 0xffff0000, v{t+1}", f"v_sub_f32 v{t}, v{t}, v{t+2}",
            f"v_cvt_pk_bf16_f32 v{t}, v{t}, 0",
            f"v_cmp_eq_u32 vcc, 0, v{VH}", f"v_cndmask_b32 v{Q[q]+5}, v{t}, v{t+1}, vcc"]
def max16(d, s, acc=False):
    c = [f"v_max3_f32 v{d}, v{s}, v{s+1}, v{d if acc else s}"]
    for j in range(2, 16, 2): c.append(f"v_max3_f32 v{d}, v{s+j}, v{s+j+1}, v{d}")
    return c
def xhalf_max(d):
    return [f"v_mov_b32 v{d+1}, v{d}", f"v_permlane32_swap_b32 v{d}, v{d+1}", f"v_max_f32 v{d}, v{d}, v{d+1}"]

def attn():
    c = [f"v_lshrrev_b32 v{T}, 4, v{VTOK}", f"v_lshlrev_b32 v{T}, 3, v{T}", f"v_and_b32 v{T+1}, 15, v{VTOK}",
         f"v_lshl_add_u32 v{T+2}, v{T+1}, 4, v{T}",
         f"v_lshrrev_b32 v{T+3}, 1, v{T+2}", f"v_xor_b32 v{T+3}, v{T+3}, v{T+2}", f"v_and_b32 v{T+3}, 64, v{T+3}",
         f"v_mul_u32_u24 v{T+3}, 3, v{T+3}", f"v_xor_b32 v{AK0}, v{T+3}, v{T+2}",
         f"v_add_u32 v{AK0}, {KPOS[0]}, v{AK0}", f"v_lshl_add_u32 v{AK2}, v{VH}, 2, v{AK0}", f"v_add_u32 v{AK2}, 2048, v{AK2}",
         f"v_lshl_add_u32 v{AK0}, v{VH}, 10, v{AK0}", f"v_add_u32 v{AK1}, 256, v{AK0}",
         f"s_mul_i32 s{sT}, s{sA}, 2560", f"s_add_u32 s{sT}, s{sT}, {L_Q}", f"v_add_u32 v{T+2}, s{sT}, v{T+2}",
         f"v_lshl_add_u32 v{T+3}, v{VH}, 2, v{T+2}", f"v_lshl_add_u32 v{T+2}, v{VH}, 10, v{T+2}",
         f"v_min_u32 v{AV}, 20, v{VTOK}", f"v_lshlrev_b32 v{AV}, 4, v{AV}", f"v_mul_u32_u24 v{T}, 336, v{VH}", f"v_add_u32 v{VVG}, v{AV}, v{T}",
         f"v_mov_b32 v{T}, 0x011fffff", f"v_lshrrev_b32 v{T}, v{VTOK}, v{T}", f"v_and_b32 v{AVM}, 1, v{T}",
         f"s_mov_b32 s{sT}, {hx(VPOS[0] - 0x30000)}", f"v_add_u32 v{AV}, 0x30000, v{VVG}", f"v_mad_i32_i24 v{AV}, v{AVM}, s{sT}, v{AV}",
         f"v_mov_b32 v{IDX}, 0xdddddddd", f"v_mov_b32 v{K[0]+5}, 0x3f803f80", f"v_mov_b32 v{K[1]+5}, 0x3f803f80",
         f"v_mov_b32 v{Q[0]+5}, 0", f"v_mov_b32 v{Q[1]+5}, 0"]
    c += [f"v_mov_b32 v{r}, 0" for r in range(V[1], V[1]+8)]
    c += [f"v_mfma_f32_32x32x8_bf16 {vr(r,16)}, {vr(V[1],2)}, {vr(V[1],2)}, 0" for r in (O[0], O[1], S[(1,1)])]
    c += ["s_setprio 2"] + stamp(5) + tr("att", 0)
    c += kread(0)
    for q in range(2):
        c += [f"ds_read_b64 {vr(Q[q],2)}, v{T+2} offset:{256*q}", f"ds_read_b64 {vr(Q[q]+2,2)}, v{T+2} offset:{256*q+512}",
              f"ds_read_b32 v{Q[q]+4}, v{T+3} offset:{256*q+2048}"]
    c += kread(1) + vread(0)
    for q in range(2): c += list(qk(S[(q,0)], K[0], q))
    for q in range(2): c += max16(T + 2*q, S[(q,0)]) + xhalf_max(T + 2*q) + shift_split(q, T + 2*q)
    for q in range(2): c += list(qk(S[(q,0)], K[0], q))
    c += f2_addr() + [f"s_mov_b32 s{sT+10}, s{sT}"] + flag_store2(f"s{sT+10}", 160)[:3]
    c += [f"s_mov_b32 s{sIT}, 0", f"s_mov_b32 s{sDK}, {KCH}", f"s_mov_b32 s{sDV}, {hx(VPOS[1] - VPOS[0])}", "s_waitcnt lgkmcnt(0)"]
    c = fin(c)
    body = loop_body()
    upd = [f"s_add_u32 s{sIT}, s{sIT}, 1", f"s_cmp_eq_u32 s{sIT}, 1", f"s_cselect_b32 s{sDK}, {hx(-4*KCH)}, 0", f"s_cselect_b32 s{sDV}, 0, {VPOS[3] - 2*VPOS[2]}",
           f"s_add_u32 s{sDK}, s{sDK}, {KCH}", f"s_add_u32 s{sDV}, s{sDV}, {VPOS[2]}",
           f"s_cmp_lt_u32 s{sIT}, 3", "s_cbranch_scc1 LA_loop"]
    fin_it = loop_body(True)
    two = [as_ins(x) for x in body + upd + body + upd + fin_it]
    assert len(fix_hazards(fix_waits(two), c[-14:])) == len(two), "attention loop needs extra waits/pads"
    c += tr("att", 1) + [".p2align 6", "LA_loop:"] + body + upd + fin_it + stamp(6) + tr("att", 2)
    C, D = pv(1, V[1], S[(1,1)])
    e = [C, D,
         f"s_lshl_b32 s{sT}, s{sQB}, 3", f"s_lshl_b32 s{sT+1}, s{sA}, 1", f"s_add_u32 s{sT}, s{sT}, s{sT+1}",
         f"s_mul_i32 s{sT+10}, s{sT}, 40960", f"s_add_u32 s{sT+10}, s{sT+10}, {hx(WS_O)}",
         f"s_lshl_b32 s{sT+11}, s{sHEAD}, 10", f"s_add_u32 s{sT+11}, s{sT+11}, s{sT+10}",
         f"s_lshl_b32 s{sT}, s{sHEAD}, 8", f"s_add_u32 s{sT+10}, s{sT+10}, s{sT}", f"s_add_u32 s{sT+10}, s{sT+10}, 32768",
         ] + f3_addr(sT + 9) + [
         "LA_fin:", f"v_cmp_eq_u32 vcc, 0, v{VH}",
         f"v_bfe_u32 v{T+2}, v{VL16}, 8, 1", f"v_mul_u32_u24 v{T+2}, {40960 - 256}, v{T+2}", f"v_add_u32 v{T+2}, v{T+2}, v{VL16}", f"v_lshl_add_u32 v{T+2}, v{VH}, 30, v{T+2}"]
    for q in range(2):
        e += [f"v_cndmask_b32 v{T+q}, v{O[q]+8}, v{O[q]+12}, vcc", f"v_rcp_f32 v{T+4}, v{T+q}"]
        e += [f"v_mul_f32 v{16+12*q+j}, v{T+4}, v{O[q]+j}" for j in range(12)]
        P = [48+4*q, 49+4*q, 50+4*q, 51+4*q, 56+2*q, 57+2*q]
        e += [f"v_cvt_pk_bf16_f32 v{P[j]}, v{16+12*q+2*j}, v{16+12*q+2*j+1}" for j in range(6)]
        e += [f"v_and_b32 v{16+12*q+j}, 0x7f807f80, v{P[j]}" for j in range(6)]
        e += [f"v_pk_max_u16 v{16+12*q}, v{16+12*q}, v{16+12*q+j}" for j in range(1, 6)]
    e += ["v_permlane16_swap_b32 v56, v58", "v_permlane16_swap_b32 v57, v59", f"v_pk_max_u16 v16, v16, v28", f"v_add_u32 v16, 0x00800080, v16", f"v_and_b32 v16, 0x80008000, v16",
          f"v_min_f32 v{T+3}, v{T}, v{T+1}", f"v_add_f32 v{T}, v{T}, v{T+1}", f"v_cmp_eq_u32 s[{sT+6}:{sT+7}], 0, v16",
          f"v_cmp_gt_f32 vcc, 0x7f000000, v{T}", f"s_and_b64 s[{sT+4}:{sT+5}], vcc, s[{sT+6}:{sT+7}]", f"v_cmp_lt_f32 vcc, 0x35800000, v{T+3}",
          f"s_and_b64 vcc, vcc, s[{sT+4}:{sT+5}]", f"s_cmp_eq_u64 vcc, exec", f"s_cselect_b32 s{sT+3}, 5, s{sT+2}" if not opt("FORCESLOW") else f"s_mov_b32 s{sT+3}, s{sT+2}", f"s_cmp_eq_u32 s{sT+3}, 3",
          "s_cbranch_scc1 LA_slow"]
    e += [f"buffer_store_dwordx4 v[48:51], v{VL16}, {sr(SWS,4)}, s{sT+11} offen{SC}", f"s_add_u32 s{sT}, s{sT+11}, 40960",
          f"buffer_store_dwordx4 v[52:55], v{VL16}, {sr(SWS,4)}, s{sT} offen{SC}",
          f"buffer_store_dwordx4 v[56:59], v{T+2}, {sr(SWS,4)}, s{sT+10} offen{SC}"]
    e += [f"buffer_store_dword v160, v162, {sr(SWS,4)}, s{sT+9} offen{SC}"]
    e += stamp(7) + ["s_setprio 0"] + p3_setup() + g_items() + ["s_barrier"]
    c += fin(e, pre=fin_it[-12:]) + p3_gemm(0, 2, "L_p3a") + ["s_branch L_p3j"]
    return c + slow_path()

def f3_addr(d):
    return [f"s_lshl_b32 s{d}, s{sQB}, 2", f"s_add_u32 s{d}, s{d}, s{sA}", f"s_lshl_b32 s{d}, s{d}, 5", f"s_add_u32 s{d}, s{d}, s{sHEAD}",
            f"s_lshl_b32 s{d}, s{d}, 7", f"s_add_u32 s{d}, s{d}, {hx(WS_F3)}"]
def f2_addr():
    return [f"s_lshl_b32 s{sT}, s{sRB}, 2", f"s_add_u32 s{sT}, s{sT}, s{sA}", f"s_lshl_b32 s{sT}, s{sT}, 4", f"s_add_u32 s{sT}, s{sT}, s{sCB}",
            f"s_lshl_b32 s{sT}, s{sT}, 6", f"s_and_b32 s{sT+1}, s{sW}, 4", f"s_add_u32 s{sT}, s{sT}, s{sT+1}", f"s_lshl_b32 s{sT}, s{sT}, 1", f"s_add_u32 s{sT}, s{sT}, {hx(WS_F2)}"]
def fr_addr():
    return [f"s_lshl_b32 s{sT}, s{sTASK}, 5", f"s_add_u32 s{sT}, s{sT}, s{sA}", f"s_lshl_b32 s{sT}, s{sT}, 2", f"s_add_u32 s{sT}, s{sT}, {hx(WS_FR)}"]

def slow_path():
    kb, vb, i = sT + 4, sT + 5, sT + 6
    kf = K[0]; vf = V[0]
    def kload():
        return [f"s_lshr_b32 s{sT}, s{i}, 1", f"s_mul_i32 s{sT}, s{sT}, 2560", f"s_and_b32 s{sT+1}, s{i}, 1", f"s_lshl_b32 s{sT+1}, s{sT+1}, 8",
                f"s_add_u32 s{sT}, s{sT}, s{sT+1}", f"s_add_u32 s{sT}, s{sT}, s{kb}",
                f"buffer_load_dwordx2 {vr(kf,2)}, v{AK0}, {sr(SWS,4)}, s{sT} offen{SC}",
                f"buffer_load_dwordx2 {vr(kf+2,2)}, v{AK0}, {sr(SWS,4)}, s{sT} offen offset:512{SC}",
                f"buffer_load_dword v{kf+4}, v{AK2}, {sr(SWS,4)}, s{sT} offen{SC}"]
    c = ["LA_slow:",
         f"s_mul_i32 s{kb}, s{sHEAD}, {HS_QK}", f"s_add_u32 s{kb}, s{kb}, {hx(WS_K)}",
         f"s_mul_i32 s{vb}, s{sHEAD}, {HS_V}", f"s_add_u32 s{vb}, s{vb}, {hx(WS_V)}",
         f"v_subrev_u32 v{AK0}, {KPOS[3]}, v{AK0}", f"v_subrev_u32 v{AK2}, {KPOS[3]}, v{AK2}",
         f"v_mov_b32 v{Q[0]+5}, 0", f"v_mov_b32 v{Q[1]+5}, 0",
         f"v_mov_b32 v{T}, 0xff800000", f"v_mov_b32 v{T+2}, 0xff800000", f"s_mov_b32 s{i}, 0"]
    l1 = ["LA_s1:"] + kload()
    for q in range(2): l1 += list(qk(S[(q,0)], kf, q))
    for q in range(2): l1 += max16(T + 2*q, S[(q,0)], acc=True)
    l1 += [f"s_add_u32 s{i}, s{i}, 1", f"s_cmp_lt_u32 s{i}, 64", "s_cbranch_scc1 LA_s1"]
    mid = []
    for q in range(2): mid += xhalf_max(T + 2*q) + shift_split(q, T + 2*q)
    mid += [f"v_mov_b32 v{r}, 0" for r in range(O[0], O[0]+32)] + [f"s_mov_b32 s{i}, 0"]
    l2 = ["LA_s2:"] + kload()
    l2 += [f"s_mul_i32 s{sT}, s{i}, 1344", f"s_add_u32 s{sT}, s{sT}, s{vb}",
           f"buffer_load_dwordx4 {vr(vf,4)}, v{VVG}, {sr(SWS,4)}, s{sT} offen{SC}",
           f"buffer_load_dwordx4 {vr(vf+4,4)}, v{VVG}, {sr(SWS,4)}, s{sT} offen offset:672{SC}"]
    for q in range(2): l2 += list(qk(S[(q,0)], kf, q))
    for q in range(2):
        l2 += [f"v_exp_f32 v{S[(q,0)]+j}, v{S[(q,0)]+j}" for j in range(16)]
        l2 += list(pv(q, vf, S[(q,0)]))
    l2 += [f"s_add_u32 s{i}, s{i}, 1", f"s_cmp_lt_u32 s{i}, 64", "s_cbranch_scc1 LA_s2",
           f"s_mov_b32 s{sT+2}, 5", "s_nop 15", "s_branch LA_fin"]
    return fin(c + l1 + mid + l2)

GA = 16; FB = 96; NBUF = opt("NBUF", 5)
def gload(buf, sa, sb):
    f = FB + 24 * buf
    c = [f"buffer_load_dwordx4 {vr(f,4)}, v{VL16}, {sr(SWS,4)}, s{sa} offen{SC}"]
    for j in range(4): c += [f"buffer_load_dwordx4 {vr(f+4+4*j,4)}, v{VL16}, {sr(SWS,4)}, s{sb} offen offset:{1024*j}{SC}"]
    c += [f"buffer_load_dwordx4 {vr(f+20,4)}, v{VL2}, {sr(SWS,4)}, s{sb} offen{SC}",
          f"s_add_u32 s{sa}, s{sa}, 1024", f"s_add_u32 s{sb}, s{sb}, 5120"]
    return c
def gemm(nk, sa, sb, hooks):
    c = []
    for k in range(NBUF - 1): c += gload(k, sa, sb)
    for k in range(nk):
        c += hooks.get(k, [])
        f = FB + 24 * (k % NBUF)
        mm = [f"v_mfma_f32_32x32x16_bf16 {vr(GA+16*j,16)}, {vr(f+4+4*j,4)}, {vr(f,4)}, {vr(GA+16*j,16)}" for j in range(5)]
        ld = gload((k + NBUF - 1) % NBUF, sa, sb) if k + NBUF - 1 < nk else []
        for j in range(5):
            c += [mm[j]]
            if ld: c += [ld[j]] if j < 4 else ld[4:]
    return c
def slab_addr():
    a = SA
    return [f"v_and_b32 v{a+1}, 7, v{VTOK}", f"v_xor_b32 v{a+1}, v{a+1}, v{VH}", f"v_mul_u32_u24 v{a}, 640, v{VTOK}", f"v_lshl_add_u32 v{a}, v{a+1}, 4, v{a}",
            f"s_mul_i32 s{sT}, s{sA}, {KCH}", f"s_add_u32 s{sT}, s{sT}, {LK}", f"s_cmp_eq_u32 s{sA}, 1", f"s_cselect_b32 s{sT}, {LK}, s{sT}",
            f"s_cmp_eq_u32 s{sA}, 0", f"s_cselect_b32 s{sT}, 0, s{sT}", f"v_add_u32 v{a}, s{sT}, v{a}"] + [f"v_xor_b32 v{a+q}, {32*q}, v{a}" for q in range(1, 4)]
def slab_tile(acc, j): return [f"ds_write_b128 v{SA+q}, {vr(acc+4*q,4)} offset:{128*j}" for q in range(4)]
def wo_loads(c0, n):
    W0 = WOF + 40 * (3 - n)
    c = [f"s_mul_i32 s{sT}, s{sCG}, 40", f"s_add_u32 s{sT}, s{sT}, s{sA}", f"s_mul_i32 s{sT}, s{sT}, 5120",
         f"s_add_u32 s{sT}, s{sT}, {hx(WS_WOF + 1024*c0)}", f"s_mul_i32 s{sT+1}, s{sA}, 5120"]
    for k in range(10):
        c += [f"buffer_load_dwordx4 {vr(W0+40*j+4*k,4)}, v{VL16}, {sr(SWS,4)}, s{sT} offen offset:{1024*j}{SC}" for j in range(n)]
        if k < 9: c += [f"s_add_u32 s{sT}, s{sT}, {20480 if k < 8 else 5120}"]
        if k == 7: c += [f"s_add_u32 s{sT}, s{sT}, s{sT+1}"]
    return c
def item_loads():
    t = XV
    c = [f"v_lshrrev_b32 v{t}, 8, v{VL16}", f"v_lshl_add_u32 v{t}, s{sW}, 2, v{t}", f"v_bfe_u32 v{t+1}, v{VL16}, 4, 4",
         f"v_and_b32 v{t+2}, 7, v{t}", f"v_xor_b32 v{t+2}, v{t+2}, v{t+1}", f"v_mul_u32_u24 v{IA}, 640, v{t}", f"v_lshl_add_u32 v{IG}, v{t+1}, 2, v{IA}",
         f"v_lshl_add_u32 v{IA}, v{t+2}, 4, v{IA}", f"v_add_u32 v{IA+1}, {SLB[2]}, v{IA}",
         f"s_mul_i32 s{sT+1}, s{sRTILE}, {32*1280}", f"s_mul_i32 s{sT}, s{sCG}, 320", f"s_add_u32 s{sT+1}, s{sT+1}, s{sT}",
         f"v_lshl_add_u32 v{IG}, v{IG}, 1, s{sT+1}", f"v_lshrrev_b32 v{t+1}, 3, v{t+1}", f"v_lshl_add_u32 v{IG+1}, v{t+1}, 30, v{IG}"]
    return c + [f"buffer_load_dwordx2 {vr(XV+2*p,2)}, v{IG + (p == 2)}, {sr(SX,4)}, 0 offen offset:{128*p}" for p in range(3)]
def reduce4():
    c = []
    for p in range(3):
        c += [f"ds_read_b128 {vr(RED+16*p+4*s,4)}, v{IA + (s >> 1)} offset:{SLB[s] - SLB[s & 2] + 256*p}" for s in range(4)]
    for p in range(3):
        b = RED + 16 * p
        c += [f"v_add_f32 v{b+i}, v{b+i}, v{b+4+i}" for i in range(4)] + [f"v_add_f32 v{b+8+i}, v{b+8+i}, v{b+12+i}" for i in range(4)]
        c += [f"v_add_f32 v{b+i}, v{b+i}, v{b+8+i}" for i in range(4)]
    return c
def g_items():
    r = reduce4()
    for p in range(3):
        b = RED + 16 * p; g = GR + 4 * p
        r += [f"v_mul_f32 v{b+4+i}, {fl(-LOG2E)}, v{b+i}" for i in range(4)]
        r += [f"v_exp_f32 v{b+4+i}, v{b+4+i}" for i in range(4)]
        r += [f"v_add_f32 v{b+4+i}, 1.0, v{b+4+i}" for i in range(4)]
        r += [f"v_rcp_f32 v{b+4+i}, v{b+4+i}" for i in range(4)]
        r += [f"v_mul_f32 v{g+i}, v{b+i}, v{b+4+i}" for i in range(4)]
    return r
def p3_setup(slab=True):
    return [f"s_mul_i32 s{sT+4}, s{sRTILE}, 40", f"s_add_u32 s{sT+4}, s{sT+4}, s{sA}", f"s_add_u32 s{sT+5}, s{sT+4}, s{sA}",
            f"s_lshl_b32 s{sT+4}, s{sT+4}, 10", f"s_add_u32 s{sT+4}, s{sT+4}, {hx(WS_O)}", f"s_lshl_b32 s{sT+5}, s{sT+5}, 10", f"s_add_u32 s{sT+5}, s{sT+5}, {hx(WS_O + 32768)}",
            f"v_and_b32 v{PAD}, 0x2f0, v{VL16}", f"v_bfe_u32 v{PD}, v{VL16}, 8, 1", f"v_lshl_add_u32 v{PAD}, v{PD}, 3, v{PAD}",
            f"s_mov_b32 s{sT+6}, {SPIN}"] + (slab_addr() if slab else [])
def unpack(d, s):
    return [f"v_lshlrev_b32 v{d}, 16, v{s}", f"v_and_b32 v{d+1}, 0xffff0000, v{s}",
            f"v_lshlrev_b32 v{d+2}, 16, v{s+1}", f"v_and_b32 v{d+3}, 0xffff0000, v{s+1}"]
def bias2():
    t = FB
    c = [f"v_add_u32 v{t}, s{sA}, v{VH}", f"v_lshlrev_b32 v{t}, 20, v{t}", f"v_lshl_add_u32 v{t}, v{VTOK}, 1, v{t}", f"s_mul_i32 s{sT}, s{sCG}, 320",
         f"v_mov_b32 v{t+2}, 0x3f80", f"v_mov_b32 v{t+3}, 0"]
    c += [f"buffer_load_ushort v{t+4+2*j}, v{t}, {sr(SB2,4)}, s{sT} offen offset:{64*j}" for j in range(5)]
    c += [f"v_mov_b32 v{t+5+2*j}, 0" for j in range(5)]
    return c + [f"v_mfma_f32_32x32x8_bf16 {vr(GA+16*j,16)}, {vr(t+4+2*j,2)}, {vr(t+2,2)}, 0" for j in range(5)]
def b_phase2():
    sa, sb = sT + 11, sT + 7
    t = 2
    g = [f"v_add_u32 v{VL2}, 4096, v{VL16}",
         f"v_and_b32 v{t}, 3, v{VTOK}", f"v_min_u32 v{t}, 2, v{t}", f"v_bfe_u32 v{t+1}, v{VTOK}, 2, 2", f"v_mad_u32_u24 v{t}, v{t+1}, 10, v{t}",
         f"s_mul_i32 s{sT}, s{sCG}, 5", f"s_lshr_b32 s{sT}, s{sT}, 1", f"v_add_lshl_u32 v{t}, v{t}, s{sT}, 7", f"s_mov_b32 s{sT+3}, {hx(WS_FR)}",
         f"v_add_u32 v9, {hx(WS_FR - WS_F2)}, v{t}"]
    g += [f"v_lshlrev_b32 v{t}, 3, v{VL16}", f"v_and_b32 v{t}, 0x780, v{t}", f"s_lshl_b32 s{sT+3}, s{sRTILE}, 11", f"v_add_u32 v{t}, s{sT+3}, v{t}",
         f"v_cmp_eq_u32 vcc, 0, v{VH}", f"v_cndmask_b32 v{t}, v9, v{t}, vcc", f"s_mov_b32 s{sT+3}, {hx(WS_F2)}",
         f"s_lshl_b32 s{sT}, s2, 2", f"s_add_u32 s{sT}, s{sT}, s{sA}", f"s_cmp_eq_u32 s{sT}, 0", "s_cbranch_scc0 LB_nep"]
    ep = [f"v_lshlrev_b32 v10, 3, v{VL16}"]
    for q in range(4):
        ep += [f"s_mov_b32 s{sT}, {hx(WS_F1 + 8192*q)}", poll_load(11, 10, f"s{sT}"), "s_waitcnt vmcnt(0)"] + poll_check(f"LB_pe{q}", 11, 10, f"s{sT}")
    g += opaque(ep + [f"s_mov_b32 s{sT}, {hx(WS_EP)}"] + flag_store(f"s{sT}", t=10)) + ["LB_nep:"] + item_loads() + bias2() + ["s_waitcnt vmcnt(0)", poll_load(4, t, f"s{sT+3}", 4)] + tr("att", 2) + ["s_barrier"] + tr("att", 3)
    g += poll_check("LB_p2", 4, t, f"s{sT+3}", 4) + stamp(6) + slab_addr()
    g += [f"s_mul_i32 s{sa}, s{sRTILE}, 108", f"s_mul_i32 s{sT}, s{sA}, 27", f"s_add_u32 s{sa}, s{sa}, s{sT}", f"s_lshl_b32 s{sa}, s{sa}, 10",
          f"s_add_u32 s{sa}, s{sa}, {hx(WS_H)}",
          f"s_mul_i32 s{sb}, s{sCG}, 108", f"s_add_u32 s{sb}, s{sb}, s{sT}", f"s_mul_i32 s{sb}, s{sb}, 5120", f"s_add_u32 s{sb}, s{sb}, {hx(WS_W2F)}"]
    v3 = vchunk(VPOS[3]) + [mark("v3")]
    h2, h3 = [int(x) for x in opt("GH", "8,21").split(",")]
    g += gemm(27, sa, sb, {h2: tr("att", 4) + ["s_barrier"] + tr("att", 5) + v3, h3: [waitfor("v3")] + tr("att", 6) + ["s_barrier"] + tr("att", 7)})
    g += wo_loads(2, 3)
    for j in range(5): g += slab_tile(GA + 16*j, j)
    g += ["s_waitcnt lgkmcnt(0)"] + stamp(7) + tr("att", 8) + ["s_barrier"] + tr("att", 9) + p3_setup(False) + g_items() + [f"s_cmp_eq_u32 s{sA}, 0", "s_cbranch_scc0 LB_np3"]
    g += opaque(flat([f"v_lshlrev_b32 v2, 7, v{VTOK}", f"s_lshr_b32 s{sT+3}, s{sRTILE}, 1", f"s_lshl_b32 s{sT+3}, s{sT+3}, 12", f"s_add_u32 s{sT+3}, s{sT+3}, {hx(WS_F3)}",
          poll_load(PD, 2, f"s{sT+3}"), "s_waitcnt vmcnt(0)"] + poll_check("LB_p3", PD, 2, f"s{sT+3}"))) + ["LB_np3:", "s_barrier"]
    return fin(g)

def o_load(k):
    if k < 8: return [f"s_add_u32 s{sT}, s{sT+4}, {4096*k}", f"buffer_load_dwordx4 {vr(OF[k],4)}, v{VL16}, {sr(SWS,4)}, s{sT} offen{SC}"]
    return [f"buffer_load_dwordx2 {vr(OF[k]+2*t,2)}, v{PAD}, {sr(SWS,4)}, s{sT+5} offen offset:{1024*(k-8) + 256*t}{SC}" for t in range(2)]
def p3_gemm(c0, n, lab):
    W0 = WOF + 40 * (3 - n)
    mm = lambda j, k: f"v_mfma_f32_32x32x16_bf16 {vr(RED+16*j,16)}, {vr(W0+40*j+4*k,4)}, {vr(OF[k],4)}, {'0' if k == 0 else vr(RED+16*j,16)}"
    c = stamp(8) + [f"{lab}:"] + flat([o_load(k) for k in range(10)])
    for k in range(10):
        c += [mm(0, k), f"v_max3_u32 v{PD}, v{OF[k]}, v{OF[k]+1}, {'0' if k == 0 else f'v{PD}'}", f"v_max3_u32 v{PD}, v{OF[k]+2}, v{OF[k]+3}, v{PD}"]
    c += [mm(1, 0), f"v_cmp_eq_u32 vcc, -1, v{PD}", f"s_sub_u32 s{sT+6}, s{sT+6}, 1", "s_cselect_b64 vcc, 0, vcc", "s_cmp_lg_u64 vcc, 0", f"s_cbranch_scc1 {lab}"]
    for j in range(1, n):
        for k in range(10):
            if (j, k) != (1, 0): c += [mm(j, k)]
            if 5 <= k < 9: c += [slab_tile(RED + 16*(j-1), c0 + j - 1)[k - 5]]
    c += slab_tile(RED + 16*(n-1), c0 + n - 1)
    return fin(c + ["s_waitcnt lgkmcnt(0)"])

def phase3():
    r = p3_gemm(2, 3, "L_p3b") + ["L_p3j:"]
    z = ["s_barrier"] + reduce4()
    for p in range(3):
        b = RED + 16 * p
        z += unpack(b + 4, XV + 2*p)
        z += [f"v_fma_f32 v{b+i}, v{b+i}, v{GR+4*p+i}, v{b+4+i}" for i in range(4)]
        z += [f"v_cvt_pk_bf16_f32 v{b+12}, v{b}, v{b+1}", f"v_cvt_pk_bf16_f32 v{b+13}, v{b+2}, v{b+3}",
              f"buffer_store_dwordx2 {vr(b+12,2)}, v{IG + (p == 2)}, {sr(SOUT,4)}, 0 offen offset:{128*p}"]
    return r + fin(z)

def kernel(name):
    isv = [f"s_sub_u32 s{sT}, s{sCB}, 10", f"s_cmp_lt_u32 s{sT}, 5"]
    def helpers(R, nxt):
        c = [f"s_cmp_eq_u32 s{sCB}, 15", f"s_cbranch_scc1 LH{R}h"] + isv + [f"s_cbranch_scc0 LH{R}q"]
        c += fin(helper(R, 'V'), pre=C_PRE) + [f"s_branch {nxt}", f"LH{R}h:"] + fin(helper(R, 'H'), pre=C_PRE) + [f"s_branch {nxt}", f"LH{R}q:"]
        return c + fin(helper(R, 'QK'), pre=C_PRE)
    er, ev = ext('N')
    c = ["L_first:"] + stamp(0) + stamp(10, True) + tr("r0", 11) + prologue()
    c += [f"s_cmp_lt_u32 s{sW}, 4", "s_cbranch_scc1 LA"]
    c += ["s_setprio 3"] + b_round0() + stamp(3) + [f"s_mov_b32 s{sR}, 1"] + isv + ["s_cbranch_scc0 LC"]
    c += c_body('V') + ["s_branch LB_2"]
    c += ["LC:"] + c_body('N') + [f"s_cmp_eq_u32 s{sR}, 2", "s_cbranch_scc1 LA_3", f"s_cmp_eq_u32 s{sR}, 3", "s_cbranch_scc1 LB_t4"]
    c += ["LB_2:", f"s_mov_b32 s{sR}, 2"] + helpers(2, "LB_3")
    c += ["LB_3:", f"s_mov_b32 s{sR}, 3", f"s_cmp_eq_u32 s{sNR}, 4", "s_cbranch_scc1 LC"]
    c += fin(stamp(4) + wdma(4) + [mark("w4")] + f1_addr(True) + kv_base(0) + poll_check("LB_p1", PF, PA, f"s{sT+3}", 4) + first_kv()
             + f1_addr(False) + [waitfor("w4"), "s_barrier", f"s_cmp_ge_u32 s{sTASK}, 40", "s_cbranch_scc1 LB_r1"] + opaque(relayout_read())
             + ["LB_r1:", "s_waitcnt vmcnt(0) lgkmcnt(0)", "s_barrier"] + stamp(5) + f2_addr() + flag_store2(f"s{sT}", TB)
             + [f"s_cmp_ge_u32 s{sTASK}, 40", "s_cbranch_scc1 LB_r2"] + opaque(relayout_store()) + ["LB_r2:"]
             + poll_check("LB_p5", PF, PA, f"s{sT+3}", 4) + rest_kv() + ["s_branch LB_g"])
    c += ["LB_t4:"] + fin(stamp(4) + stamp(5) + er + f1_addr(False) + kv_base(1) + [f"s_lshl_b32 s{sCT}, s{sHU}, 1", f"s_add_u32 s{sCT}, s{sCT}, 2"] + ev + epi_h(0) + epi_h(1) + [mark("h"), "s_setprio 0"]
             + poll_check("LB_p4", PF, PA, f"s{sT+3}", 4) + rest_kv()[:54] + f2_addr() + [waitfor("h")] + flag_store2(f"s{sT}", TB) + rest_kv()[54:], pre=C_PRE)
    c += ["LB_g:", "s_setprio 0"] + tr("att", 1) + b_phase2() + phase3()
    c += ["s_waitcnt vmcnt(0)"] * bool(STAMP) + stamp(9) + stamp(11, True) + stamp_flush(SWS, sW) + ["L_end:", "s_endpgm"]
    c += fix_hazards(["LA:"] + (touch(SX, 2621440) + touch(sWQ, 640*3840) if opt("PF0", 1) else []) + code_prefetch() + (page_touch() if opt("PFT", 0) else []) + lane_setup('A') + aim(1) + stamp(1) + ["s_waitcnt lgkmcnt(0)", f"s_add_u32 s{sN}, s{sN}, 1", "s_setprio 1"]
                     + isv + ["s_cbranch_scc0 LA_n"] + ones_rows())
    c += a_round0('V') + ["s_branch LA_1", "LA_n:"] + a_round0('N')
    c += ["LA_1:", f"s_mov_b32 s{sR}, 1"] + stamp(3) + helpers(1, "LA_2") + ["LA_2:"] + xs("r1") + [f"s_mov_b32 s{sR}, 2", "s_branch LC"]
    c += ["LA_3:"] + xs("r2") + [f"s_mov_b32 s{sR}, 3", f"s_lshl_b32 s{sCT}, s{sHU}, 1", f"s_cmp_eq_u32 s{sNR}, 4", "s_cbranch_scc1 LA_h3"]
    c += fin(stamp(4) + er + ev + epi_h(0) + ["s_barrier"] + epi_h(1) + ["s_barrier", "s_branch LA_att"], pre=C_PRE)
    c += ["LA_h3:"] + fin(helper(3, 'H') + stamp(4), pre=C_PRE) + ["LA_att:"] + attn() + ["L_last:"]
    return kernel_head(name) + render(c)

if __name__ == "__main__":
    import sys
    name = "recurrent_scan__mha_block__mixer_channel_mlp__prompt_kernel"
    HEAD = open("recurrent_scan__mha_block__mixer_channel_mlp__prompt.s.ref").read().split("; Override")[0]
    s = HEAD + "; @launch grid=(256,1,1) block=(512,1,1) lds=163840\n" + '.amdgcn_target "amdgcn-amd-amdhsa--gfx950"\n'
    s += kernel(name) + kernel_desc(name, 256, 102)
    open(sys.argv[1], "w").write(s)
```

```python
from common import *

sW, sA, sN, sRB, sCB = 3, 4, 5, 6, 7
SX, SWD, SWS, SB1, SB2, SOUT = 8, 12, 16, 20, 28, 32
sWQ, sCSB, sDST = 24, 26, 27
sW1, sW2, sWO = 36, 38, 40
sWOFF, sST, sR, sNR, sCT, sHU, sQKROW, sVOFF, sHOFF, sXOFF, sM4, sTASK = range(42, 54)
sHEAD, sQB, sRTILE, sCG = 54, 55, 56, 57
sT = 58
sSG = 96
U = 16384
MISC = 9 * U
XBUF = [3*U, 7*U, 0, 3*U, 7*U]; WSL0 = [5, 6, 2, 5, 6]
L_PART = MISC; L_RS = MISC + 2048; L_CNT = MISC + 3072; L_ST = MISC + 4096; L_Q = MISC + 4096 + 0
VCH = 21504; KCH = 20480
LK = 43520; KPOS = [LK + 2*KCH, LK + 3*KCH, LK, LK + KCH]; VPOS = [LK + 4*KCH, 0, VCH, LK + 4*KCH]
SLB = [0, LK, LK + 2*KCH, LK + 3*KCH]
WS_F2 = 0x1c00000
WS_FR = 0x1c40000
WS_F3 = 0x1c80000
WS_F1 = 0x1cc0000
WS_EP = 0x1cf0000
SC = " sc1"
SPIN = 100000

class Tag(Ins):
    def __init__(self, name, kind):
        Ins.__init__(self, ""); self.name = name; self.tk = kind
def mark(name): return Tag(name, 'mark')
def waitfor(name, extra="", older=0):
    t = Tag(name, 'wait'); t.extra = extra; t.older = older; return t
def resolve(code):
    out = []; n = 0; at = {}
    for x in code:
        x = as_ins(x)
        if isinstance(x, Tag):
            if x.tk == 'mark': at[x.name] = n
            else:
                k = n - at[x.name] if x.name in at else n + x.older
                k = min(k, 63)
                out.append(Ins(f"s_waitcnt vmcnt({k}){x.extra}"))
            continue
        if x.kind == 'vmem' and not x.opaque: n += 1
        out.append(x)
    return out
def flat(c):
    o = []
    for y in c: o += flat(y) if isinstance(y, (list, tuple)) else [y]
    return o
def cost(x):
    t = 0
    for y in flat([x]):
        y = as_ins(y)
        t += {'valu': 13 if (getattr(y, 'trans', False) or 'permlane' in y.mn) else 7, 'salu': 5, 'ds': 8, 'vmem': 14, 'mfma': 30, 'wait': 5}.get(y.kind, 0)
        if y.kind == 'nop': t += 4 * y.n
    return t
DSP = opt("DSP", 90); LSP = opt("LSP", 20)
def sched(main, dmas=(), side=(), dsp=None):
    main = list(main); side = list(side); dsp = dsp or DSP
    d = []; cur = []
    for x in dmas:
        cur.append(x)
        if isinstance(x, Tag): d[-1] += cur; cur = []
        elif not isinstance(x, list) and as_ins(x).kind == 'vmem': d.append(cur); cur = []
    if cur: d[-1] += cur
    out = []; t = 0; nd = 0; nl = 0
    while main or d or side:
        if side and t >= nl: x = side.pop(0); nl = t + LSP
        elif d and (t >= nd or not (main or side)): x = d.pop(0); nd = t + dsp
        elif main: x = main.pop(0)
        else: x = f"s_nop {min(15, max(0, (nl - t + 3) // 4 - 1))}"
        out.append(x); t += cost(x)
    return out
def fin(c, pend_lg=(), pre=()):
    return fix_hazards(fix_waits(resolve(flat(c)), pend_lg=pend_lg), pre)
def pk(op, d, *src): return f"v_pk_{op}_f32 {vr(d,2)}, " + ", ".join(s if isinstance(s, str) else vr(s,2) for s in src)

X = 96; ACC = [64, 80]; WF = 32
VT = [2, 3]; VT4 = [4, 5]; EXTX = 6; RSA = 8; RS2 = 9; GC = 10; CSI = 11; VCA = 12
VL16, VH, VTOK = 13, 14, 15
CSA = 16; CSD = [20, 24]; VW = 28
TB = 32; CF = 48
VBIAS = [0, 1]
LA = 6

def c_read(n, r0=False):
    g, k = n & 1, (n % 80) >> 1; f = WF + 4 * (n % 8)
    s, l = divmod(k, 8)
    if r0: a, o = (VT[g], (WSL0[s] - 5) * U) if WSL0[s] >= 5 else (EXTX + g, 0)
    else: a, o = (VT4[g], 0) if s == 4 else (VT[g], s * U)
    o += l * 2048
    return [f"ds_read_b64_tr_b16 {vr(f,2)}, v{a} offset:{o}", f"ds_read_b64_tr_b16 {vr(f+2,2)}, v{a} offset:{o+512}"]
def c_mfma(n, orient):
    g, k = n & 1, n >> 1; f = WF + 4 * (n % 8); x = X + 4 * k
    a, b = (vr(f,4), vr(x,4)) if orient == 'N' else (vr(x,4), vr(f,4))
    i = Ins(f"v_mfma_f32_32x32x16_bf16 {vr(ACC[g],16)}, {a}, {b}, {'0' if k == 0 else vr(ACC[g],16)}")
    if n % 2 == 0: i.r = i.r | vset(WF + 4 * ((n + 1) % 8), 4)
    return i
def c_first(): return flat([c_read(n) for n in range(LA)])
def c_end(n): return ["s_waitcnt lgkmcnt(0)", "s_setprio 3"] + tr("body", 4) + ["s_barrier"] + tr("body", 5) if n == 76 else []
def c_body(orient):
    c = tr("body", 0) + c_first() + ["s_setprio 1"]
    for n in range(80):
        if n == 40: c += ["s_waitcnt vmcnt(0)"] + tr("body", 2) + ["s_barrier"] + tr("body", 3)
        c += c_end(n) + [c_mfma(n, orient)]
        if n + LA < 80: c += c_read(n + LA)
    return fin(c + tr("body", 6))
C_PRE = [c_mfma(78, 'N'), c_mfma(79, 'N')]

AD = 20; AONE = RSA; VXA = RS2
def xreads(s, t):
    xr = [[f"v_add_u32 v{t}, {XBUF[s]}, v{VXA if t == VCA else TB+4}", f"ds_read_b128 {vr(X+32*s,4)}, v{t}"]]
    for i in range(1, 8): xr.append([f"v_xor_b32 v{t}, {32*(i ^ (i-1))}, v{t}", f"ds_read_b128 {vr(X+32*s+4*i,4)}, v{t}"])
    return xr
def a_round0(orient):
    R = lambda n: c_read(n, True)
    xr = xreads(0, VCA)
    c = tr("st", 7) + tr("r0", 0) + ["s_barrier"] + tr("st", 8) + tr("r0", 1) + stamp(2) + xr[0] + R(0) + R(1) + xr[1:3] + R(2) + R(3) + xr[3:]
    for n in range(80):
        s, l = divmod(n, 16)
        if l == (4 if s == 0 else 0):
            for i in range(32):
                x = X + 32 * s + i
                c += [f"v_dot2c_f32_bf16 v{AD + (i & 3)}, v{x}, v{AONE}", f"v_dot2c_f32_bf16 v{AD + 4 + (i & 3)}, v{x}, v{x}"]
        if n == 76: c += ["s_waitcnt lgkmcnt(0)", "s_setprio 3", "s_barrier"]
        c += [c_mfma(n, orient)]
        if l == 0: c += R(n + 4) + R(n + 5)
        if l < 10: c += R(n + 6)
        if s < 4:
            if l == 11:
                xr = xreads(s + 1, VCA)
                c += ["s_waitcnt lgkmcnt(0)"] + tr("r0", 2*s+2) + ["s_barrier"] + tr("r0", 2*s+3)
            if l >= 12: c += R(n + 4) + xr[2*(l-12)] + xr[2*(l-12)+1]
        if n == opt("PFN", 65) and opt("PF1", 1): c += touch(sW1, 640*3456) + touch(sW2, 1728*1280) + touch(sWO, 640*1280)
        if n == 70:
            c += [f"v_add_f32 v{AD}, v{AD}, v{AD+1}", f"v_add_f32 v{AD+2}, v{AD+2}, v{AD+3}", f"v_add_f32 v{AD+4}, v{AD+4}, v{AD+5}", f"v_add_f32 v{AD+6}, v{AD+6}, v{AD+7}"]
        if n == 64: c += ["s_waitcnt vmcnt(0)", f"v_mov_b32 v{GC}, {fl(GC2)}"]
        if n == 71: c += [f"v_add_f32 v{EXTX}, v{AD}, v{AD+2}", f"v_add_f32 v{EXTX+1}, v{AD+4}, v{AD+6}"]
        if 72 <= n < 76: c += [f"v_mov_b32 v{CSD[0]+2*(n-72)}, 0", f"v_mov_b32 v{CSD[0]+2*(n-72)+1}, 0"]
    return fin(c + tr("r0", 10))

def wdma(st, unit=None):
    if unit is not None: c = [f"s_add_u32 m0, s{sM4}, {hx((unit-4)*U)}"]
    elif st == 4: c = [f"s_mov_b32 m0, s{sM4}"]
    else: c = [f"s_add_u32 m0, s{sDST}, {st*U}"]
    c += [f"s_mul_i32 s{sT}, s{sST}, s{sSG+st}", f"s_add_u32 s{sT}, s{sT}, s{sWOFF}"]
    c += [f"buffer_load_dwordx4 v{VW+e}, {sr(SWD,4)}, s{sT} offen offset:{1024*e} lds" for e in range(4)]
    return c
VX = TB
def xdma(stage):
    c = [f"s_lshl_b32 s{sT}, s{sA}, 13", f"s_add_u32 m0, s{sT}, {XBUF[stage]}", f"s_lshl_b32 s{sT}, s{sSG+stage}, 8", f"s_add_u32 s{sT}, s{sT}, s{sXOFF}"]
    c += [f"buffer_load_dwordx4 v{VX+q}, {sr(SX,4)}, s{sT} offen offset:{1024*q} lds" for q in range(4)]
    c += [f"s_add_u32 m0, m0, 4096", f"s_add_u32 s{sT}, s{sT}, 20480"]
    c += [f"buffer_load_dwordx4 v{VX+q}, {sr(SX,4)}, s{sT} offen offset:{1024*q} lds" for q in range(4)]
    return c
def set_w():
    a, b = sT + 5, sT + 6
    return [f"s_lshl_b32 s{sST}, s{a}, 7", f"s_mul_i32 s{sWOFF}, s{sA}, s{a}", f"s_lshl_b32 s{sWOFF}, s{sWOFF}, 5", f"s_add_u32 s{sWOFF}, s{sWOFF}, s{b}",
            f"v_lshrrev_b32 v{VW+1}, 7, v{VL16}", f"v_mul_u32_u24 v{VW}, s{a}, v{VW+1}",
            f"v_lshrrev_b32 v{VW+1}, 2, v{VL16}", f"v_xor_b32 v{VW+1}, v{VW+1}, v{VL16}",
            f"v_and_b32 v{VW+1}, 0x40, v{VW+1}", f"v_and_b32 v{VW+2}, 0x30, v{VL16}", f"v_add3_u32 v{VW}, v{VW}, v{VW+1}, v{VW+2}",
            f"s_lshl_b32 s{a}, s{a}, 3", f"s_sub_u32 s{a}, s{a}, 1024",
            f"v_add_u32 v{VW+1}, s{a}, v{VW}", f"v_add_u32 v{VW+2}, s{a}, v{VW+1}", f"v_add_u32 v{VW+3}, s{a}, v{VW+2}"]
def aim(R):
    a, b = sT + 5, sT + 6
    if R < 2:
        return [f"s_lshl_b32 s{b}, s{sCB}, 8", f"s_cmp_eq_u32 s{sCB}, 15", f"s_cselect_b32 s{b}, {24*128}, s{b}",
                f"s_cselect_b32 s{SWD}, s{sW1}, s{sWQ}", f"s_cselect_b32 s{SWD+1}, s{sW1+1}, s{sWQ+1}",
                f"s_cselect_b32 s{a}, 0, 384", f"s_add_u32 s{a}, s{a}, 3456", f"s_mul_i32 s{SWD+2}, s{a}, 640"] + [f"s_add_u32 s{b}, s{b}, 128"] * R + set_w()
    c = [f"s_mov_b32 s{SWD}, s{sW1}", f"s_mov_b32 s{SWD+1}, s{sW1+1}", f"s_mov_b32 s{SWD+2}, {640*3456}", f"s_movk_i32 s{a}, 3456",
         f"s_lshl_b32 s{b}, s{sHU}, 7"] + [f"s_add_u32 s{b}, s{b}, 128"] * (R - 2)
    return c + set_w()
def aim_next3(lab):
    a, b = sT + 5, sT + 6
    c = [f"s_cmp_eq_u32 s{sNR}, 3", f"s_cbranch_scc1 {lab}_r", f"s_add_u32 s{sWOFF}, s{sWOFF}, 128", f"s_branch {lab}_d", f"{lab}_r:",
         f"s_mul_i32 s{a}, s{sTASK}, 6554", f"s_lshr_b32 s{a}, s{a}, 16", f"s_mul_i32 s{b}, s{a}, 10", f"s_sub_u32 s{b}, s{sTASK}, s{b}", f"s_lshl_b32 s{b}, s{b}, 7",
         f"s_cmp_lt_u32 s{a}, 3", f"s_cselect_b32 s{SWD}, s{sW2}, s{sWO}", f"s_cselect_b32 s{SWD+1}, s{sW2+1}, s{sWO+1}",
         f"s_cselect_b32 s{SWD+2}, {1088*1280}, 0", f"s_cselect_b32 s{a}, s{a}, 0", f"s_add_u32 s{SWD+2}, s{SWD+2}, {640*1280}",
         f"s_mul_i32 s{a}, s{a}, {640*1280}", f"s_add_u32 s{b}, s{b}, s{a}",
         f"s_cmp_lt_u32 s{sTASK}, 40", f"s_cselect_b32 s{SWD+2}, s{SWD+2}, 0", f"s_movk_i32 s{a}, 1280"] + [f"s_mov_b32 s{sSG+k}, {k}" for k in range(5)] + set_w() + [f"{lab}_d:"]
    return opaque(c)

def cs_stage(off_sgpr, off):
    c = []
    for g in range(2):
        rd = [f"ds_read_b64_tr_b16 {vr(CF+8*g+2*j,2)}, v{VCA} offset:{off + (j>>1)*2048 + (j&1)*512}" for j in range(4)]
        c += [[f"v_add_u32 v{VCA}, s{off_sgpr}, v{VT4[g]}", rd[0]]] + rd[1:]
    return c
def csm(): return [[f"v_smfmac_f32_16x16x64_bf16 {vr(CSD[g],4)}, {vr(CSA,4)}, {vr(CF+8*g,8)}, v{CSI}" for g in range(2)]]
GAP = [[], [], [], []]
def bias_ld(R):
    t = VCA
    c = [f"v_lshlrev_b32 v{t}, 1, v{VTOK}", f"v_xor_b32 v{VBIAS[0]}, 1, v{VH}", f"v_add_u32 v{VBIAS[0]}, s{sA}, v{VBIAS[0]}", f"v_lshl_add_u32 v{t}, v{VBIAS[0]}, 20, v{t}"]
    if R < 2: c += [f"s_cmp_eq_u32 s{sCB}, 15", f"s_cselect_b32 s{SB1+2}, 3456, 0", f"s_movk_i32 s{sT}, {(24+R)*128}"]
    else: c += [f"s_movk_i32 s{SB1+2}, 3456", f"s_lshl_b32 s{sT}, s{sHU}, 7"] + [f"s_add_u32 s{sT}, s{sT}, 128"] * (R - 2)
    return c + [f"buffer_load_short_d16_hi v{VBIAS[g]}, v{t}, {sr(SB1,4)}, s{sT} offen offset:{64*g}" for g in range(2)]
def partw(R):
    c = [f"s_lshl_b32 s{sT}, s{sA}, 2", f"s_add_u32 s{sT}, s{sT}, {L_PART}", f"v_add_u32 v{VCA}, s{sT}, v{VL16}"]
    for g in range(2):
        c += [f"v_add_f32 v{CSD[g]}, v{CSD[g]}, v{CSD[g]+1}", f"v_add_f32 v{CSD[g]}, v{CSD[g]}, v{VBIAS[g]}"]
    c += [f"ds_write2st64_b32 v{VCA}, v{CSD[0]}, v{CSD[1]} offset0:0 offset1:4"]
    for g in range(2): c += [f"v_mov_b32 v{CSD[g]}, 0", f"v_mov_b32 v{CSD[g]+1}, 0"]
    return c
def ext(orient):
    c = [f"v_add_u32 v{VCA}, {L_PART}, v{VL16}"] + [f"ds_read_b128 {vr(TB+4*g,4)}, v{VCA} offset:{1024*g}" for g in range(2)]
    v = []
    for g in range(2):
        t = TB + 4 * g
        v += [f"v_add_f32 v{t}, v{t}, v{t+1}", f"v_add_f32 v{t+2}, v{t+2}, v{t+3}", f"v_add_f32 v{t}, v{t}, v{t+2}",
              f"v_cvt_pk_bf16_f32 v{t+3}, v{t}, 0", f"v_lshlrev_b32 v{t+1}, 16, v{t+3}", f"v_sub_f32 v{t+1}, v{t}, v{t+1}",
              f"v_cvt_pk_bf16_f32 v{t+2}, v{t}, v{t+1}"]
    for g in range(2):
        t = TB + 4 * g
        a, b = (vr(t+2,2), vr(EXTX,2)) if orient == 'N' else (vr(EXTX,2), vr(t+2,2))
        v += [f"v_mfma_f32_32x32x8_bf16 {vr(ACC[g],16)}, {a}, {b}, {vr(ACC[g],16)}"]
    return c, v

def epi_qk(g):
    c = []; q = TB; b = TB + 1
    if g == 0:
        c += [f"v_bfe_u32 v{q}, v{VL16}, 8, 1", f"v_lshl_add_u32 v{q}, v{q}, 1, v{VH}", f"v_lshl_add_u32 v{q}, s{sCT}, 3, v{q}",
              f"v_and_b32 v{b}, 0xf0, v{VL16}", f"v_lshl_add_u32 v{b}, v{q}, 9, v{b}", f"v_mul_u32_u24 v{q}, 13108, v{q}"]
    for p in range(2):
        a = ACC[g] + 8 * p; o = TB + 8 + 4 * p; t = TB + 2 + p
        c += [f"v_lshrrev_b32 v{t}, 16, v{q}", f"v_mul_u32_u24 v{t}, {HS_QK - 2560}, v{t}", f"v_add_u32 v{t}, v{t}, v{b}"]
        if 2*g + p < 3: c += [f"v_add_u32 v{q}, {4*13108}, v{q}"]
        if 2*g + p == 1: c += [f"v_add_u32 v{b}, 4096, v{b}"]
        c += [f"v_mul_f32 v{a+i}, v{RSA}, v{a+i}" for i in range(8)]
        c += [f"v_cvt_pk_bf16_f32 v{o+i}, v{a+2*i}, v{a+2*i+1}" for i in (0, 2, 1, 3)]
        c += [f"v_permlane16_swap_b32 v{o}, v{o+2}", f"v_permlane16_swap_b32 v{o+1}, v{o+3}",
              f"buffer_store_dwordx4 {vr(o,4)}, v{t}, {sr(SWS,4)}, s{sQKROW} offen offset:{2048*p}{SC}"]
    return c
def v_addr(ad, a2, first_col):
    return [f"v_mul_u32_u24 v{ad}, 3277, v{a2}", f"v_lshrrev_b32 v{ad}, 16, v{ad}",
            f"v_mul_u32_u24 v{ad}, {HS_V - 320}, v{ad}", f"v_lshl_add_u32 v{ad}, v{a2}, 4, v{ad}",
            f"v_mul_u32_u24 v{a2}, 336, v{VH}", f"v_add_u32 v{ad}, v{ad}, v{a2}"]
def epi_v(g):
    e = ACC[g]; ad = TB + 12; a2 = TB + 13; ra = TB + 14; r = TB; p = TB + 8
    c = [[f"s_lshl_b32 s{sT+4}, s{sA}, 7", f"s_add_u32 s{sT+4}, s{sT+4}, {L_RS}", f"v_lshl_add_u32 v{ra}, v{VH}, 4, s{sT+4}"]]
    for j in range(2):
        c += [f"ds_read_b128 {vr(r+4*q,4)}, v{ra} offset:{64*j+32*q}" for q in range(2)]
        if j == 0:
            c += [[f"s_lshl_b32 s{sT+4}, s{sCT}, 5", f"s_sub_u32 s{sT+4}, s{sT+4}, {1280 - 32*g}", f"v_add_u32 v{a2}, s{sT+4}, v{VTOK}"]] + v_addr(ad, a2, 0)
        c += [f"v_mul_f32 v{e+8*j+i}, v{r+i}, v{e+8*j+i}" for i in range(8)]
        c += [f"v_cvt_pk_bf16_f32 v{p+i}, v{e+8*j+2*i}, v{e+8*j+2*i+1}" for i in range(4)]
        c += [f"buffer_store_dwordx4 {vr(p,4)}, v{ad}, {sr(SWS,4)}, s{sVOFF} offen offset:{672*j}{SC}"]
    return c
def epi_h(g):
    c = []
    for hf in range(2):
        a = ACC[g] + 8 * hf; t = TB; p = TB + 8 + 4 * hf
        R8 = range(8)
        c += [f"v_mul_f32 v{a+i}, v{RS2}, v{a+i}" for i in R8]
        c += [f"v_mul_f32 v{t+i}, v{a+i}, v{a+i}" for i in R8]
        c += [f"v_fmaak_f32 v{t+i}, v{t+i}, v{GC}, {fl(GC1)}" for i in R8]
        c += [f"v_mul_f32 v{t+i}, v{t+i}, v{a+i}" for i in R8]
        c += [f"v_exp_f32 v{t+i}, v{t+i}" for i in R8]
        c += [f"v_add_f32 v{t+i}, 1.0, v{t+i}" for i in R8]
        c += [f"v_rcp_f32 v{t+i}, v{t+i}" for i in R8]
        c += [f"v_mul_f32 v{a+i}, v{a+i}, v{t+i}" for i in R8]
        c += [f"v_cvt_pk_bf16_f32 v{p+i}, v{a+2*i}, v{a+2*i+1}" for i in range(4)]
        c += [[f"s_lshl_b32 s{sT+4}, s{sCT}, 11", f"s_add_u32 s{sT+4}, s{sT+4}, s{sHOFF}",
               f"buffer_store_dwordx4 {vr(p,4)}, v{VL16}, {sr(SWS,4)}, s{sT+4} offen offset:{2048*g + 1024*hf}{SC}"]]
    return c
EPI = {'QK': epi_qk, 'V': epi_v, 'H': epi_h}

def rbf(d, s): return [f"v_cvt_pk_bf16_f32 v{d}, v{s}, v{s}", f"v_and_b32 v{d}, 0xffff0000, v{d}"]
def stats(vt):
    m, v, d, u = EXTX, EXTX + 1, TB + 8, TB + 9
    D = TB + 12; t = TB + 8
    c = [
          f"v_permlane32_swap_b32 v{m}, v{v}", f"v_add_f32 v{m}, v{m}, v{v}", f"v_mul_f32 v{m}, {fl(1/640)}, v{m}", f"v_mov_b32 v{v}, v{m}",
          f"v_permlane32_swap_b32 v{m}, v{v}",
          f"v_fma_f32 v{v}, -v{m}, v{m}, v{v}", f"v_max_f32 v{v}, 0, v{v}"]
    c += rbf(d, v) + [f"v_add_f32 v{d}, {fl(1e-5)}, v{d}"] + rbf(d, d) + [f"v_sqrt_f32 v{d}, v{d}"] + rbf(d, d)
    c += [f"v_rcp_f32 v{u}, v{d}",
          [f"s_lshl_b32 s{sT+4}, s{sA}, 7", f"s_add_u32 s{sT+4}, s{sT+4}, {L_RS}", f"v_lshl_add_u32 v{D}, v{VTOK}, 2, s{sT+4}", f"ds_write_b32 v{D}, v{u}"] if vt else [],
          [f"s_cmp_lt_u32 s{sCB}, 5", f"s_cselect_b32 s{sT+4}, {fl(QSCALE)}, 1.0", f"v_mul_f32 v{RSA}, s{sT+4}, v{u}"],
          f"v_mul_f32 v{v}, v{v}, v{u}", f"v_mul_f32 v{v}, v{v}, v{u}"]
    c += rbf(v, v) + [f"v_add_f32 v{v}, {fl(1e-5)}, v{v}"] + rbf(v, v) + [f"v_sqrt_f32 v{v}, v{v}"] + rbf(v, v)
    c += [f"v_mul_f32 v{d}, v{d}, v{v}", f"v_rcp_f32 v{RS2}, v{d}", f"v_sub_f32 v{u}, 0, v{m}",
          [f"v_cmp_eq_u32 vcc, 0, v{VH}", f"v_cndmask_b32 v{u}, v{d}, v{u}, vcc"],
          f"v_cvt_pk_bf16_f32 v{EXTX}, v{u}, v{u}", f"v_and_b32 v{d}, 0xffff0000, v{EXTX}",
          f"v_sub_f32 v{u}, v{u}, v{d}", f"v_cvt_pk_bf16_f32 v{EXTX+1}, v{u}, 0"]
    return c
def st_addr(t): return [f"s_lshl_b32 s{sT+4}, s{sA}, 10", f"s_add_u32 s{sT+4}, s{sT+4}, {L_ST}", f"v_add_u32 v{t}, s{sT+4}, v{VL16}"]

def poll_load(t, voff, soff, n=1): return f"buffer_load_dword{'x4' if n == 4 else ''} {vr(t,n)}, v{voff}, {sr(SWS,4)}, {soff} offen{SC}"
def poll_check(lab, t, voff, soff, n=1):
    c = [f"s_mov_b32 s{sT+2}, {SPIN}", f"{lab}:"]
    if n == 4:
        c += [f"v_xor_b32 v{t+i}, s{sN}, v{t+i}" for i in range(4)]
        c += [f"v_or3_b32 v{t}, v{t}, v{t+1}, v{t+2}", f"v_or_b32 v{t}, v{t}, v{t+3}", f"v_cmp_ne_u32 vcc, 0, v{t}"]
    else: c += [f"v_cmp_ne_u32 vcc, s{sN}, v{t}"]
    c += ["s_nop 0", "s_cmp_eq_u64 vcc, 0", f"s_cbranch_scc1 {lab}_x"]
    c += opaque([f"s_sleep {opt('SLEEP', 1)}", poll_load(t, voff, soff, n), f"s_sub_u32 s{sT+2}, s{sT+2}, 1", "s_waitcnt vmcnt(0)", f"s_cbranch_scc0 {lab}"])
    return c + [f"{lab}_x:"]
sK, sV, sPC = sT + 9, sT + 10, sT + 8
def kvdma(n, so, lds_base):
    c = []
    for j in range(n):
        c += [f"s_add_u32 m0, s{sPC}, {lds_base + 4096*j}",
              f"buffer_load_dwordx4 v{VL16}, {sr(SWS,4)}, s{so} offen{SC} lds", f"s_add_u32 s{so}, s{so}, 4096"]
    return c
def vchunk(pos):
    return kvdma(5, sV, pos) + [f"s_cmp_eq_u32 s{sA}, 0", f"s_cselect_b32 s{sT+1}, s{sV}, {hx(WS_SIZE)}", f"s_cselect_b32 s{sT}, {hx(pos + 20480 - MISC - 15360)}, 0",
            f"s_add_u32 m0, s{sT}, {MISC + 15360}", f"buffer_load_dwordx4 v{VL16}, {sr(SWS,4)}, s{sT+1} offen{SC} lds", f"s_add_u32 s{sV}, s{sV}, 1024"]
PF, PA = 96, 100
def f1_addr(first):
    t = PA + 1
    c = [f"v_lshrrev_b32 v{t}, {6 if first else 8}, v{VL16}"] + ([f"v_min_u32 v{t}, 5, v{t}"] if first else [])
    c += [f"v_and_b32 v{t+1}, 1, v{t}", f"v_mul_u32_u24 v{t+1}, 19, v{t+1}", f"v_lshrrev_b32 v{t}, 1, v{t}",
          f"v_mul_u32_u24 v{PA}, 640, v{t}", f"s_mul_i32 s{sT+3}, s{sHEAD}, 20", f"s_add_u32 s{sT+3}, s{sT+3}, 640", f"v_add3_u32 v{PA}, v{PA}, v{t+1}, s{sT+3}",
          f"v_lshrrev_b32 v{PA}, 7, v{PA}"]
    if first:
        c += [f"v_bfe_u32 v{t+1}, v{VL16}, 4, 2", f"v_lshl_add_u32 v{PA}, v{PA}, 4, v{t+1}",
              f"v_and_b32 v{t+2}, {hx(~2)}, v{PA}", f"s_lshl_b32 s{sT+3}, s{sQB}, 1", f"s_sub_u32 s{sT+3}, s{sT+3}, 240", f"v_add_u32 v{t+2}, s{sT+3}, v{t+2}",
              f"v_cmp_eq_u32 vcc, 2, v{t}", f"v_cndmask_b32 v{PA}, v{PA}, v{t+2}, vcc"]
    else:
        c += [f"v_bfe_u32 v{t+1}, v{VL16}, 4, 4", f"v_lshl_add_u32 v{PA}, v{PA}, 4, v{t+1}"]
    return c + [f"v_lshlrev_b32 v{PA}, 7, v{PA}", f"s_mov_b32 s{sT+3}, {hx(WS_F1)}", poll_load(PF, PA, f"s{sT+3}", 4)]
def kv_base(skip):
    return [f"s_lshl_b32 s{sPC}, s{sA}, 10",
            f"s_mul_i32 s{sK}, s{sHEAD}, {HS_QK}", f"s_add_u32 s{sK}, s{sK}, s{sPC}",
            f"s_mul_i32 s{sT+7}, s{sQB}, 10240", f"s_add_u32 s{sT+7}, s{sT+7}, s{sK}", f"s_add_u32 s{sK}, s{sK}, {hx(WS_K + skip*KCH)}",
            f"s_mul_i32 s{sV}, s{sHEAD}, {HS_V}", f"s_add_u32 s{sV}, s{sV}, {hx(WS_V + skip*VCH)}", f"s_add_u32 s{sV}, s{sV}, s{sPC}"]
def first_kv(): return kvdma(3, sT + 7, L_Q) + kvdma(5, sK, KPOS[0]) + vchunk(VPOS[0]) + [mark("kv0")]
def rest_kv(): return kvdma(5, sK, KPOS[1]) + vchunk(VPOS[1]) + kvdma(10, sK, KPOS[2]) + vchunk(VPOS[2])
def flag_store2(soff, t):
    return [f"v_lshlrev_b32 v{t+2}, 21, v{VL16}", f"v_mov_b32 v{t}, s{sN}", f"v_mov_b32 v{t+1}, s{sN}", f"buffer_store_dwordx2 {vr(t,2)}, v{t+2}, {sr(SWS,4)}, {soff} offen{SC}"]
def flag_store(soff, t):
    return [f"v_lshlrev_b32 v{t}, 21, v{VL16}", f"v_mov_b32 v{t+1}, s{sN}", f"buffer_store_dword v{t+1}, v{t}, {sr(SWS,4)}, {soff} offen{SC}"]
def f1_signal():
    return [[f"s_lshl_b32 s{sT+4}, s{sCB}, 4", f"s_add_u32 s{sT+4}, s{sT+4}, s{sRB}", f"s_lshl_b32 s{sT+4}, s{sT+4}, 5", f"s_add_u32 s{sT+4}, s{sT+4}, s{sA}",
             f"s_lshl_b32 s{sT+4}, s{sT+4}, 2", f"s_add_u32 s{sT+4}, s{sT+4}, {hx(WS_F1)}"] + flag_store(f"s{sT+4}", CSD[0] + 2)
            + [f"v_mov_b32 v{CSD[0]+2}, 0", f"v_mov_b32 v{CSD[0]+3}, 0"]]
def xs(name): return stamp(1) if opt("XS", "") == name else []
def take(lst, budget):
    t = 0
    for i, x in enumerate(lst):
        t += cost(x)
        if t > budget: return lst[:i], lst[i:]
    return lst, []
def helper(R, etype):
    er, ev = ext('V' if etype == 'V' else 'N')
    epi = EPI[etype](0) + EPI[etype](1)
    c = tr("body", 0) + er
    if R == 2: c += st_addr(TB + 8) + [f"ds_read_b128 {vr(EXTX,4)}, v{TB+8}"]
    if R == 3: c += [f"s_add_u32 s{sWOFF}, s{sWOFF}, 128"]
    main = (stats(etype == 'V') if R == 1 else []) + ev + epi
    late = cs_stage(sM4, 0)
    late = [[late[0][0], f"v_subrev_u32 v{VCA}, {4*U}, v{VCA}", late[0][1]]] + late[1:4] + [[late[4][0], f"v_subrev_u32 v{VCA}, {4*U}, v{VCA}", late[4][1]]] + late[5:]
    st = [cs_stage(sCSB, s * U) for s in range(4)] + [late]
    ma, mb = csm()[0]
    cs1 = st[0] + [ma] + st[1][:4] + [mb] + st[1][4:] + [ma] + st[2][:4] + [mb] + st[2][4:] + [ma]
    cs2 = st[3][:4] + [mb] + st[3][4:] + [ma] + st[4][:4] + [mb] + st[4][4:] + [ma]
    y1 = tr("body", 2) + [waitfor("m1")] + tr("body", 3) + ["s_barrier"]
    if R < 3:
        nxt = aim(2) if R == 1 else aim_next3("LH2" + etype)
        d = [nxt] + wdma(0) + wdma(1) + wdma(2) + [mark("m2")] + wdma(3)
        c += wdma(4) + [mark("m1")] + bias_ld(R)
        if R == 1:
            m1, m2 = take(main, 520)
            c += sched(m1, d[:23], cs1[:14], dsp=70) + y1 + sched(m2, d[23:], cs1[14:] + cs2 + GAP + [mb], dsp=70)
            c += st_addr(VCA) + [f"ds_write_b128 v{VCA}, {vr(EXTX,4)}"]
        else:
            m1, m2 = take(main, 760) if etype == 'H' else (main, [])
            c += sched(m1 + [mark("st")], side=cs1[:9]) + sched([], d[:8], dsp=40) + y1
            c += sched([], d[8:15], cs1[9:19], dsp=50) + tr("body", 8) + [waitfor("st")] + xs("f1") + tr("body", 9) + f1_signal()
            c += sched(m2, d[15:], cs1[19:] + cs2 + GAP + [mb], dsp=50)
        c += partw(R)
        c += tr("body", 4) + [waitfor("m2", " lgkmcnt(0)")] + tr("body", 5)
        if R == 1 and etype == 'QK': c += [f"s_cmp_lt_u32 s{sCB}, 5", "s_cbranch_scc1 LA_nmk"] + opaque(o_marks()) + ["LA_nmk:"]
        c += ["s_barrier"]
    else:
        f1 = f1_addr(True)
        c += wdma(4) + [mark("m1")] + bias_ld(R)
        m0, m1 = take(main, opt("K0", 200)); m1, m2 = take(m1, opt("K1", 400)); m2, m3 = take(m2, opt("K2", 900))
        c += sched(m0 + [f1], side=cs1[:9]) + tr("body", 7) + sched(m1 + [kv_base(0)], side=cs1[9:])
        c += tr("body", 8) + poll_check("LH3p", PF, PA, f"s{sT+3}", 4) + xs("poll") + tr("body", 9) + y1
        c += sched(m2, first_kv(), cs2 + GAP + [mb], dsp=30) + partw(R)
        c += tr("body", 4) + [waitfor("kv0", " lgkmcnt(0)")] + tr("body", 5) + ["s_barrier"] + xs("T") + m3 + tr("body", 6)
    return c

def lane_setup(grp):
    t = TB + 8
    c = [f"v_bfe_u32 v{t}, v0, 2, 2", f"v_lshl_add_u32 v{t+1}, v{VH}, 3, v{t}", f"v_lshlrev_b32 v{t+1}, 7, v{t+1}",
         f"v_lshrrev_b32 v{t}, 1, v{t}", f"v_lshl_add_u32 v{t+1}, v{t}, 6, v{t+1}",
         f"v_bfe_u32 v{t}, v0, 4, 1", f"v_lshl_add_u32 v{t+1}, v{t}, 5, v{t+1}",
         f"v_and_b32 v{t}, 3, v0", f"v_lshl_add_u32 v{VT[0]}, v{t}, 3, v{t+1}", f"v_xor_b32 v{VT[1]}, 64, v{VT[0]}",
         f"v_add_u32 v{VT4[0]}, {4*U}, v{VT[0]}", f"v_add_u32 v{VT4[1]}, {4*U}, v{VT[1]}"]
    xa = VXA if grp == 'A' else TB + 4
    c += [f"v_and_b32 v{t}, 15, v0", f"v_xor_b32 v{t}, v{t}, v{VH}", f"v_lshlrev_b32 v{t}, 4, v{t}",
          f"v_lshl_add_u32 v{t}, v{VTOK}, 8, v{t}", f"s_lshl_b32 s{sT}, s{sA}, 13", f"v_add_u32 v{xa}, s{sT}, v{t}"]
    if grp == 'A':
        c += [f"v_add_u32 v{EXTX+g}, {2*U}, v{VT[g]}" for g in range(2)] + [f"v_add_u32 v{VT[g]}, {5*U}, v{VT[g]}" for g in range(2)]
        c += [f"s_sub_u32 s{sCSB}, s{sM4}, {8*U}", f"s_add_u32 s{sDST}, s{sM4}, {U}", f"v_mov_b32 v{AONE}, 0x3f803f80"]
    else:
        c += [f"s_sub_u32 s{sCSB}, s{sM4}, {3*U}", f"s_sub_u32 s{sDST}, s{sM4}, {4*U}"]
    c += [f"v_mov_b32 v{t+1}, 0x3f803f80", f"v_and_b32 v{t}, 14, v0",
          f"v_cmp_eq_u32 vcc, 0, v{t}", f"v_cndmask_b32 v{CSA}, 0, v{t+1}, vcc", f"v_mov_b32 v{CSA+1}, v{CSA}",
          f"v_cmp_eq_u32 vcc, 4, v{t}", f"v_cndmask_b32 v{CSA+2}, 0, v{t+1}, vcc", f"v_mov_b32 v{CSA+3}, v{CSA+2}",
          f"v_and_b32 v{t}, 1, v0", f"v_mul_u32_u24 v{t}, 0xaaaa, v{t}", f"v_add_u32 v{CSI}, 0x4444, v{t}"]
    c += [f"v_mov_b32 v{r}, 0" for r in range(CSD[0], CSD[0]+8)]
    c += [f"s_lshl_b32 s{sT}, s{sRB}, 2", f"s_add_u32 s{sT}, s{sT}, s{sA}",
          f"s_lshr_b32 s{sT+1}, s{sT}, 1", f"s_mul_i32 s{sQKROW}, s{sT+1}, 2560", f"s_and_b32 s{sT+1}, s{sT}, 1",
          f"s_lshl_b32 s{sT+1}, s{sT+1}, 8", f"s_add_u32 s{sQKROW}, s{sQKROW}, s{sT+1}",
          f"s_mul_i32 s{sVOFF}, s{sT}, 1344", f"s_add_u32 s{sVOFF}, s{sVOFF}, {hx(WS_V)}",
          f"s_mul_i32 s{sHOFF}, s{sT}, {108*1024}", f"s_add_u32 s{sHOFF}, s{sHOFF}, {hx(WS_H)}",
          f"s_lshl_b32 s{sCT}, s{sCB}, 2", f"s_cmp_eq_u32 s{sCB}, 15", f"s_cselect_b32 s{sCT}, 48, s{sCT}"]
    if grp == 'B': c += [f"s_add_u32 s{sCT}, s{sCT}, 2"]
    return c
def ones_rows():
    t = TB + 8
    return [f"s_lshl_b32 s{sT}, s{sCB}, 7", f"s_sub_u32 s{sT}, s{sT}, {1280 - 19}", f"s_mul_i32 s{sT+1}, s{sT}, 3277", f"s_lshr_b32 s{sT+1}, s{sT+1}, 16",
            f"v_lshrrev_b32 v{t}, 2, v0", f"v_add_u32 v{t}, s{sT+1}, v{t}",
            f"v_mul_u32_u24 v{t+1}, 20, v{t}", f"s_add_u32 s{sT}, s{sT}, {128 - 19}", f"v_cmp_gt_u32 vcc, s{sT}, v{t+1}",
            f"v_mul_u32_u24 v{t}, {HS_V}, v{t}", f"v_and_b32 v{t+1}, 3, v0", f"v_mul_u32_u24 v{t+1}, 336, v{t+1}", f"v_add_u32 v{t}, v{t}, v{t+1}",
            f"v_mov_b32 v{t+1}, {hx(OOB)}", f"v_cndmask_b32 v{t}, v{t+1}, v{t}, vcc"] + [f"v_mov_b32 v{t+4+i}, 0x3f803f80" for i in range(4)] + [
            f"buffer_store_dwordx4 {vr(t+4,4)}, v{t}, {sr(SWS,4)}, s{sVOFF} offen offset:320{SC}"]

def o_marks():
    t = TB + 8
    c = [f"s_lshl_b32 s{sT}, s{sCB}, 7", f"s_sub_u32 s{sT}, s{sT}, {640 - 19}", f"s_mul_i32 s{sT+1}, s{sT}, 3277", f"s_lshr_b32 s{sT+1}, s{sT+1}, 16",
         f"s_add_u32 s{sT}, s{sT}, 128", f"s_mul_i32 s{sT}, s{sT}, 3277", f"s_lshr_b32 s{sT}, s{sT}, 16",
         f"s_lshl_b32 s{sT+2}, s{sRB}, 2", f"s_add_u32 s{sT+2}, s{sT+2}, s{sA}", f"s_mul_i32 s{sT+2}, s{sT+2}, 40960", f"s_add_u32 s{sT+2}, s{sT+2}, {hx(WS_O)}",
         f"v_lshrrev_b32 v{t}, 8, v{VL16}", f"v_lshl_add_u32 v{t}, v{t}, 28, v{VL16}"] + [f"v_mov_b32 v{t+4+i}, -1" for i in range(4)]
    c += ["LA_mk:", f"s_lshl_b32 s{sT+3}, s{sT+1}, 10", f"s_add_u32 s{sT+3}, s{sT+3}, s{sT+2}",
          f"buffer_store_dwordx4 {vr(t+4,4)}, v{VL16}, {sr(SWS,4)}, s{sT+3} offen{SC}",
          f"s_lshl_b32 s{sT+3}, s{sT+1}, 8", f"s_add_u32 s{sT+3}, s{sT+3}, s{sT+2}", f"s_add_u32 s{sT+3}, s{sT+3}, 32768",
          f"buffer_store_dwordx4 {vr(t+4,4)}, v{t}, {sr(SWS,4)}, s{sT+3} offen{SC}",
          f"s_add_u32 s{sT+1}, s{sT+1}, 1", f"s_cmp_lt_u32 s{sT+1}, s{sT}", "s_cbranch_scc1 LA_mk"]
    return c

def b_round0():
    c = (tr("st", 1) + xdma(0) + tr("st", 2) + PRE_W + aim(0) + wdma(0, WSL0[0]) if not opt("WFIRST") else tr("st", 1) + PRE_W + aim(0) + tr("st", 2) + wdma(0, WSL0[0]) + xdma(0)) + [mark("d0")] + tr("st", 3) + prologue2() + lane_setup('B') + tr("st", 4)
    c += ["s_setprio 3"] + bias_ld(0)
    c += xdma(1) + wdma(1, WSL0[1]) + [mark("d1")] + stamp(1) + tr("st", 5) + ["s_waitcnt lgkmcnt(0)", f"s_add_u32 s{sN}, s{sN}, 1"] + tr("st", 6)
    for s in range(5):
        c += tr("r0", 2*s) + [waitfor(f"d{s}", " lgkmcnt(0)")] + tr("r0", 2*s+1) + (tr("st", 7) if s == 0 else []) + ["s_barrier"]
        if s == 0: c += stamp(2) + tr("st", 8)
        c += [f"s_add_u32 s{sT+1}, s{sM4}, {hx((WSL0[s]-8)*U)}"]
        side = xreads(s, TB + 5) + cs_stage(sT + 1, 0)
        if s < 3: d = xdma(s + 2) + wdma(s + 2, WSL0[s + 2]) + [mark(f"d{s+2}")]
        if s == 3: d = [f"s_add_u32 s{sWOFF}, s{sWOFF}, 128"] + wdma(0) + [mark("m1")] + wdma(1) + wdma(2) + [mark("m2")]
        if s == 4: d = wdma(3)
        c += sched([], d, side, dsp=24) + csm()
    c += [f"v_mov_b32 v{GC}, {fl(GC2)}"] + aim(2) + partw(0) + [waitfor("m2", " lgkmcnt(0)"), "s_barrier"]
    return fin(c + tr("r0", 10))

RL = 112
def relayout_read():
    t = TB; u = sT
    c = [f"v_and_b32 v{t}, 0x1ff, v{VT[0]}", f"s_cmp_lt_u32 s{sTASK}, 30",
         f"s_cselect_b32 s{u}, 16, 20", f"s_cselect_b32 s{u+1}, 4, 40", f"s_cselect_b32 s{u+4}, 8, 20", f"s_cselect_b32 s{u+5}, 16, 80", f"s_cselect_b32 s{u+6}, 512, 16",
         f"s_lshl_b32 s{u}, s{u}, 7", f"s_lshl_b32 s{u+1}, s{u+1}, 7", f"s_lshl_b32 s{u+4}, s{u+4}, 7", f"s_lshl_b32 s{u+5}, s{u+5}, 7", f"s_lshl_b32 s{u+6}, s{u+6}, 7",
         f"s_mul_i32 s{u+2}, s{u}, s{sA}", f"s_lshl_b32 s{u+2}, s{u+2}, 3",
         f"v_lshl_add_u32 v{t+1}, v{VH}, 9, v{t}", f"v_add_u32 v{t+1}, s{u+2}, v{t+1}"]
    for k in range(8):
        c += [f"v_xor_b32 v{t+2}, 64, v{t+1}"]
        for g in range(2):
            c += [f"ds_read_b64_tr_b16 {vr(RL+8*k+4*g,2)}, v{t+1+g}", f"ds_read_b64_tr_b16 {vr(RL+8*k+4*g+2,2)}, v{t+1+g} offset:1024"]
        c += [f"v_add_u32 v{t+1}, s{u}, v{t+1}"]
    c += [f"s_mul_i32 s{u+2}, s{u+5}, s{sA}", f"s_lshl_b32 s{u+2}, s{u+2}, 1", f"s_add_u32 s{u+2}, s{u+2}, s{u+6}",
          f"v_mad_u32_u24 v{t+1}, v{VH}, s{u+1}, v{t}", f"v_add_u32 v{t+1}, s{u+2}, v{t+1}"]
    for k in (8, 9):
        c += [f"v_add_u32 v{t+2}, s{u+4}, v{t+1}", f"v_xor_b32 v{t+3}, 64, v{t+1}", f"v_xor_b32 v{t+4}, 64, v{t+2}"]
        c += [f"ds_read_b64_tr_b16 {vr(RL+8*k+2*i,2)}, v{t+1+i}" for i in range(4)]
        c += [f"v_add_u32 v{t+1}, s{u+5}, v{t+1}"]
    return c
def relayout_store():
    u = sT; d0, d1, ks, lim = sR, sCT, sXOFF, sST
    c = [f"s_mul_i32 s{u+2}, s{sTASK}, 6554", f"s_lshr_b32 s{u+2}, s{u+2}, 16",
         f"s_mul_i32 s{u}, s{u+2}, 10", f"s_sub_u32 s{u}, s{sTASK}, s{u}", f"s_lshl_b32 s{u+6}, s{u}, 1",
         f"s_cmp_lt_u32 s{u+2}, 3", f"s_cselect_b32 s{u+5}, 108, 40", f"s_cselect_b32 s{u+4}, 0, {hx(WS_WOF - WS_W2F)}", f"s_cselect_b32 s{u+2}, s{u+2}, 0",
         f"s_mul_i32 s{u+2}, s{u+2}, {40*5120}", f"s_mul_i32 s{u+5}, s{u+5}, 5120", f"s_sub_u32 s{lim}, s{u+5}, s{u+2}",
         f"s_add_u32 s{u+4}, s{u+4}, s{u+2}", f"s_add_u32 s{u+4}, s{u+4}, {hx(WS_W2F)}"]
    for g, d in ((0, d0), (1, d1)):
        c += [f"s_add_u32 s{u}, s{u+6}, {g}", f"s_mul_i32 s{u+1}, s{u}, 52429", f"s_lshr_b32 s{u+1}, s{u+1}, 18",
              f"s_mul_i32 s{u+2}, s{u+1}, 5", f"s_sub_u32 s{u}, s{u}, s{u+2}", f"s_lshl_b32 s{u}, s{u}, 10",
              f"s_mul_i32 s{u+1}, s{u+1}, s{u+5}", f"s_add_u32 s{d}, s{u}, s{u+1}", f"s_add_u32 s{d}, s{d}, s{u+4}"]
    c += [f"s_mul_i32 s{ks}, s{sA}, {8*5120}"]
    for k in range(10):
        if k == 8: c += [f"s_mul_i32 s{ks}, s{sA}, {2*5120}", f"s_add_u32 s{ks}, s{ks}, {32*5120}"]
        c += [f"s_cmp_lt_u32 s{ks}, s{lim}", f"s_cbranch_scc0 LB_rs{k}", f"s_add_u32 s{u}, s{ks}, s{d0}", f"s_add_u32 s{u+1}, s{ks}, s{d1}",
              f"buffer_store_dwordx4 {vr(RL+8*k,4)}, v{VL16}, {sr(SWS,4)}, s{u} offen{SC}",
              f"buffer_store_dwordx4 {vr(RL+8*k+4,4)}, v{VL16}, {sr(SWS,4)}, s{u+1} offen{SC}", f"LB_rs{k}:", f"s_add_u32 s{ks}, s{ks}, 5120"]
    return c + fr_addr() + ["s_waitcnt vmcnt(0)"] + flag_store(f"s{sT}", TB)

def prologue():
    t = TB + 8; j = sT + 3
    c = [f"s_load_dwordx2 {sr(SX,2)}, s[0:1], 0", f"s_load_dwordx2 {sr(sWQ,2)}, s[0:1], 8", f"s_load_dwordx2 {sr(sW1,2)}, s[0:1], 32",
         "s_cmp_ge_u32 s2, 256", "s_cbranch_scc1 L_end"] + code_prefetch() + [
         f"v_lshrrev_b32 v1, 6, v0", f"v_and_b32 v0, 63, v0", f"v_readfirstlane_b32 s{sW}, v1",
         f"s_and_b32 s{sRB}, s2, 3", f"s_bfe_u32 s{sCG}, s2, 0x20003", f"s_lshl2_add_u32 s{sRB}, s{sRB}, s{sCG}",
         f"s_lshr_b32 s{sT+1}, s2, 5", f"s_bfe_u32 s{sT+2}, s2, 0x10002", f"s_lshl1_add_u32 s{sCB}, s{sT+1}, s{sT+2}",
         f"s_and_b32 s{sA}, s{sW}, 3", f"s_lshl2_add_u32 s{sT}, s{sRB}, s{sA}", f"s_mul_i32 s{sXOFF}, s{sT}, {32*1280}",
         ] + {0: [f"s_mov_b32 s{sSG}, 0"], 1: [f"s_add_u32 s{sSG}, s{sRB}, s{sCB}"], 2: [f"s_and_b32 s{sSG}, s2, 7"],
              3: [f"s_add_u32 s{sSG}, s{sCG}, s{sT+1}", f"s_and_b32 s{sSG}, s{sSG}, 1", f"s_and_b32 s{sT}, s2, 7", f"s_lshl1_add_u32 s{sSG}, s{sSG}, s{sT}"],
              4: [f"s_add_u32 s{sSG}, s{sCG}, s{sT+1}", f"s_and_b32 s{sSG}, s{sSG}, 1", f"s_and_b32 s{sT}, s2, 7", f"s_add_u32 s{sSG}, s{sSG}, s{sT}"],
              5: [f"s_add_u32 s{sSG}, s{sCG}, s{sT+1}", f"s_and_b32 s{sSG}, s{sSG}, 1", f"s_lshl_b32 s{sSG}, s{sSG}, 1"]}[opt("ROT", 4)] + [
         f"s_mul_i32 s{sT}, s{sSG}, 52", f"s_lshr_b32 s{sT}, s{sT}, 8", f"s_mul_i32 s{sT}, s{sT}, 5",
         f"s_sub_u32 s{sSG}, s{sSG}, s{sT}"] + [
         f"s_mov_b32 s{SX+2}, 2621440", f"s_mov_b32 s{SX+3}, 0x00020000",
         f"s_cmp_lt_u32 s{sW}, 4", "s_cbranch_scc1 LA",
         f"v_lshrrev_b32 v{t}, 4, v0", f"v_xor_b32 v{t+1}, v{t}, v0", f"v_and_b32 v{t+1}, 15, v{t+1}", f"v_lshlrev_b32 v{t+1}, 4, v{t+1}",
         f"v_mul_u32_u24 v{t}, 1280, v{t}", f"v_add_u32 v{VX}, v{t}, v{t+1}"]
    for q in range(1, 4):
        c += [f"v_xor_b32 v{VX+q}, {64*q + 4096*q}, v{VX}"]
    c += tr("st", 0) + ["s_waitcnt lgkmcnt(0)"]
    return fix_hazards(c)
def prologue2():
    j = sT + 3
    c = [f"s_load_dwordx2 {sr(SWS,2)}, s[0:1], 80", f"s_load_dwordx2 {sr(SB1,2)}, s[0:1], 40", f"s_load_dwordx2 {sr(sWO,2)}, s[0:1], 16",
         f"s_load_dwordx2 {sr(sW2,2)}, s[0:1], 48", f"s_load_dwordx2 {sr(SB2,2)}, s[0:1], 56", f"s_load_dwordx2 {sr(SOUT,2)}, s[0:1], 64",
         f"v_lshrrev_b32 v{VH}, 5, v0", f"v_and_b32 v{VTOK}, 31, v0", f"s_lshr_b32 s{j}, s2, 3", f"s_and_b32 s{sT}, s2, 7",
         f"s_lshr_b32 s{sT+1}, s2, 5", f"s_lshl3_add_u32 s{sRTILE}, s{sT}, s{sT+1}",
         f"s_lshr_b32 s{sT+2}, s2, 6", f"s_lshl2_add_u32 s{sHEAD}, s{sT}, s{sT+2}", f"s_and_b32 s{sQB}, s{j}, 7",
         f"s_mul_i32 s{sTASK}, s{sT}, 5", f"s_sub_u32 s{sT+1}, s{j}, 20", f"s_add_u32 s{sTASK}, s{sTASK}, s{sT+1}",
         f"s_cmp_lt_u32 s{sT+1}, 5", f"s_cselect_b32 s{sTASK}, s{sTASK}, 99",
         f"s_lshl_b32 s{sHU}, s{sCB}, 1", f"s_add_u32 s{sT}, s{sCB}, 9", f"s_cmp_lt_u32 s{sCB}, 9", f"s_cselect_b32 s{sHU}, s{sHU}, s{sT}",
         f"s_cselect_b32 s{sNR}, 4, 3", f"s_cmp_eq_u32 s{sCB}, 15", f"s_cselect_b32 s{sHU}, 26, s{sHU}"]
    for k in range(1, 5): c += [f"s_add_u32 s{sSG+k}, s{sSG+k-1}, 1", f"s_cmp_eq_u32 s{sSG+k}, 5", f"s_cselect_b32 s{sSG+k}, 0, s{sSG+k}"]
    for d, size in ((SWS, WS_SIZE), (SB1, 0), (SB2, 1280), (SOUT, 2621440)):
        c += [f"s_mov_b32 s{d+2}, {hx(size)}", f"s_mov_b32 s{d+3}, 0x00020000"]
    ep = Ins("s_nop 0"); ep.text = f"s_load_dword s{sN}, {sr(sT+10,2)}, 0"
    c = [(lambda i: (setattr(i, 'kind', 'salu') if i.kind == 'smem' else None, i)[1])(as_ins(x)) for x in c]
    return c + ["s_waitcnt lgkmcnt(0)", f"s_add_u32 s{sT+10}, s{SWS}, {hx(WS_EP)}", f"s_addc_u32 s{sT+11}, s{SWS+1}, 0", ep]
PRE_W = [f"v_lshlrev_b32 v{VL16}, 4, v0", f"s_lshl_b32 s{sM4}, s{sA}, 12", f"s_add_u32 s{sM4}, s{sM4}, {4*U}", f"s_mov_b32 s{SWD+3}, 0x00020000"]
def touch(ptr, nbytes):
    n = -(-nbytes // 128 // 1024); t = VCA; d = sT + 6
    return [f"s_mov_b32 s{d}, s{ptr}", f"s_mov_b32 s{d+1}, s{ptr+1}", f"s_mov_b32 s{d+2}, {nbytes}", f"s_mov_b32 s{d+3}, 0x00020000",
            f"s_lshl_b32 s{sT}, s2, 2", f"s_add_u32 s{sT}, s{sT}, s{sA}", f"s_mul_i32 s{sT}, s{sT}, {n*128}",
            f"v_min_u32 v{t}, {16*(n-1)}, v{VL16}", f"v_lshl_add_u32 v{t}, v{t}, 3, s{sT}", f"buffer_load_dword v1, v{t}, {sr(d,4)}, 0 offen"]
def page_touch():
    c = [f"s_lshl_b32 s{sT}, s{sA}, 23", f"s_add_u32 s{sT+6}, s{SWS}, s{sT}", f"s_addc_u32 s{sT+7}, s{SWS+1}, 0"]
    for k in range(8):
        c += [f"s_load_dword s101, {sr(sT+6,2)}, 0", f"s_add_u32 s{sT+6}, s{sT+6}, 0x100000", f"s_addc_u32 s{sT+7}, s{sT+7}, 0"]
    c += [f"s_mul_i32 s{sT}, s{sA}, 0xa0000", f"s_add_u32 s{sT+6}, s{SOUT}, s{sT}", f"s_addc_u32 s{sT+7}, s{SOUT+1}, 0", f"s_load_dword s101, {sr(sT+6,2)}, 0"]
    return c
def code_prefetch():
    return [f"s_getpc_b64 s[{sT+6}:{sT+7}]", "L_pc:", f"s_lshr_b32 s{sT}, s2, 3", f"v_and_b32 v2, 0x1e0, v0", f"v_add_lshl_u32 v2, v2, s{sT}, 7",
            f"v_min_u32 v2, L_last-L_pc-4, v2", f"global_load_dword v{GC}, v2, s[{sT+6}:{sT+7}]"]

S = {(0,0): 16, (1,0): 32, (0,1): 48, (1,1): 64}
O = [80, 96]; Q = [112, 118]; K = [124, 130]; V = [136, 144]; IDX = 152
AK0, AK1, AK2, AV, AVM, VVG = 153, 154, 155, 156, 157, 158
sIT, sDK, sDV = sT + 2, sT + 6, sT + 7
T = 2
PAT = opt("PAT", "CkeeDkweeAeeeBeeeeeeeee,CveeDveeAeeeBeeeeeeeee").split(",")
WOF = 124; RED = 16; OF = [64 + 4*i for i in range(10)]; GR = 104; PD = 116; XV = 244; IA = 250; IG = 252; VL2 = 254; SA = 4; PAD = 3

def qk(dst, kf, q):
    return (f"v_mfma_f32_32x32x16_bf16 {vr(dst,16)}, {vr(kf,4)}, {vr(Q[q],4)}, 0",
            f"v_mfma_f32_32x32x8_bf16 {vr(dst,16)}, {vr(kf+4,2)}, {vr(Q[q]+4,2)}, {vr(dst,16)}")
def pv(q, vf, s):
    return (f"v_smfmac_f32_32x32x32_bf16 {vr(O[q],16)}, {vr(vf,4)}, {vr(s,8)}, v{IDX}",
            f"v_smfmac_f32_32x32x32_bf16 {vr(O[q],16)}, {vr(vf+4,4)}, {vr(s+8,8)}, v{IDX}")
def kread(kt):
    kt &= 15
    f = K[kt & 1]
    return [f"ds_read2st64_b64 {vr(f,4)}, v{AK1 if kt & 1 else AK0} offset0:{5*(kt>>1)} offset1:{5*(kt>>1)+1}",
            f"ds_read_b32 v{f+4}, v{AK2} offset:{(kt>>1)*2560 + (kt&1)*256}"]
def vread(kt):
    f = V[kt & 1]; a = AV
    kt &= 15
    return [f"ds_read_b128 {vr(f,4)}, v{a} offset:{kt*1344}", f"ds_read_b128 {vr(f+4,4)}, v{a} offset:{kt*1344+672}"]
def loop_body(last=False, pat=PAT):
    c = []
    extra = []
    if last:
        cur = []
        for x in [y.replace(f"s{sT+1}", f"s{sT+9}").replace(f"s{sT}", f"s{sT+8}") for y in wo_loads(0, 2)] + item_loads():
            cur.append(x)
            if as_ins(x).kind == 'vmem' or len(cur) == 4: extra.append(cur); cur = []
    for i in range(32):
        kt, q = divmod(i, 2); ktp, qp = divmod(i - 1, 2)
        sc = S[(q, kt & 1)]
        A, B = qk(S[(q, (kt + 1) & 1)], K[(kt + 1) & 1], q)
        C, D = pv(qp, V[ktp & 1], S[(qp, ktp & 1)])
        kf = kread(kt + 2); vf = vread(kt + 1)
        e = f = 0; seen = ""
        for ch in pat[q]:
            if ch in 'AB':
                if not (last and kt == 15): c.append(A if ch == 'A' else B)
                if ch == 'B' and extra: c += extra.pop(0)
            elif ch == 'C': c.append(C)
            elif ch == 'D': c.append(D)
            elif ch == 'e': c.append(f"v_exp_f32 v{sc+e}, v{sc+e}"); e += 1
            elif ch == 'k':
                if kt == 14 and len(kf) == 2:
                    if not last: c += [f"v_add_u32 v{r}, s{sDK}, v{r}" for r in (AK0, AK1, AK2)] + ["s_waitcnt lgkmcnt(2)"]
                    c += ["s_barrier"]
                if kt == 4 and len(kf) == 2 and not last:
                    c += ["s_waitcnt vmcnt(0)", flag_store2(f"s{sT+10}", 160)[3]]
                x = kf.pop(0)
                if not (last and kt >= 14): c.append(x); f += 1
            elif ch == 'v':
                if q == 0: assert ("C" if len(vf) == 2 else "D") in seen
                if kt == 15 and len(vf) == 2 and not last: c += [f"v_mad_i32_i24 v{AV}, v{AVM}, s{sDV}, v{AV}"]
                x = vf.pop(0)
                if not (last and kt == 15): c.append(x); f += 1
            elif ch == 'w': c.append(f"s_waitcnt lgkmcnt({f})")
            seen += ch
        assert e == 16
    assert not extra
    return c
def shift_split(q, m):
    t = T + 6
    return [f"v_sub_f32 v{m}, 0, v{m}",
            f"v_cvt_pk_bf16_f32 v{t}, v{m}, v{m}", f"v_and_b32 v{t}, 0xffff0000, v{t}", f"v_sub_f32 v{t}, v{m}, v{t}",
            f"v_cvt_pk_bf16_f32 v{t+1}, v{m}, v{t}", f"v_and_b32 v{t+2}, 0xffff0000, v{t+1}", f"v_sub_f32 v{t}, v{t}, v{t+2}",
            f"v_cvt_pk_bf16_f32 v{t}, v{t}, 0",
            f"v_cmp_eq_u32 vcc, 0, v{VH}", f"v_cndmask_b32 v{Q[q]+5}, v{t}, v{t+1}, vcc"]
def max16(d, s, acc=False):
    c = [f"v_max3_f32 v{d}, v{s}, v{s+1}, v{d if acc else s}"]
    for j in range(2, 16, 2): c.append(f"v_max3_f32 v{d}, v{s+j}, v{s+j+1}, v{d}")
    return c
def xhalf_max(d):
    return [f"v_mov_b32 v{d+1}, v{d}", f"v_permlane32_swap_b32 v{d}, v{d+1}", f"v_max_f32 v{d}, v{d}, v{d+1}"]

def attn():
    c = [f"v_lshrrev_b32 v{T}, 4, v{VTOK}", f"v_lshlrev_b32 v{T}, 3, v{T}", f"v_and_b32 v{T+1}, 15, v{VTOK}",
         f"v_lshl_add_u32 v{T+2}, v{T+1}, 4, v{T}",
         f"v_lshrrev_b32 v{T+3}, 1, v{T+2}", f"v_xor_b32 v{T+3}, v{T+3}, v{T+2}", f"v_and_b32 v{T+3}, 64, v{T+3}",
         f"v_mul_u32_u24 v{T+3}, 3, v{T+3}", f"v_xor_b32 v{AK0}, v{T+3}, v{T+2}",
         f"v_add_u32 v{AK0}, {KPOS[0]}, v{AK0}", f"v_lshl_add_u32 v{AK2}, v{VH}, 2, v{AK0}", f"v_add_u32 v{AK2}, 2048, v{AK2}",
         f"v_lshl_add_u32 v{AK0}, v{VH}, 10, v{AK0}", f"v_add_u32 v{AK1}, 256, v{AK0}",
         f"s_mul_i32 s{sT}, s{sA}, 2560", f"s_add_u32 s{sT}, s{sT}, {L_Q}", f"v_add_u32 v{T+2}, s{sT}, v{T+2}",
         f"v_lshl_add_u32 v{T+3}, v{VH}, 2, v{T+2}", f"v_lshl_add_u32 v{T+2}, v{VH}, 10, v{T+2}",
         f"v_min_u32 v{AV}, 20, v{VTOK}", f"v_lshlrev_b32 v{AV}, 4, v{AV}", f"v_mul_u32_u24 v{T}, 336, v{VH}", f"v_add_u32 v{VVG}, v{AV}, v{T}",
         f"v_mov_b32 v{T}, 0x011fffff", f"v_lshrrev_b32 v{T}, v{VTOK}, v{T}", f"v_and_b32 v{AVM}, 1, v{T}",
         f"s_mov_b32 s{sT}, {hx(VPOS[0] - 0x30000)}", f"v_add_u32 v{AV}, 0x30000, v{VVG}", f"v_mad_i32_i24 v{AV}, v{AVM}, s{sT}, v{AV}",
         f"v_mov_b32 v{IDX}, 0xdddddddd", f"v_mov_b32 v{K[0]+5}, 0x3f803f80", f"v_mov_b32 v{K[1]+5}, 0x3f803f80",
         f"v_mov_b32 v{Q[0]+5}, 0", f"v_mov_b32 v{Q[1]+5}, 0"]
    c += [f"v_mov_b32 v{r}, 0" for r in range(V[1], V[1]+8)]
    c += [f"v_mfma_f32_32x32x8_bf16 {vr(r,16)}, {vr(V[1],2)}, {vr(V[1],2)}, 0" for r in (O[0], O[1], S[(1,1)])]
    c += ["s_setprio 2"] + stamp(5) + tr("att", 0)
    c += kread(0)
    for q in range(2):
        c += [f"ds_read_b64 {vr(Q[q],2)}, v{T+2} offset:{256*q}", f"ds_read_b64 {vr(Q[q]+2,2)}, v{T+2} offset:{256*q+512}",
              f"ds_read_b32 v{Q[q]+4}, v{T+3} offset:{256*q+2048}"]
    c += kread(1) + vread(0)
    for q in range(2): c += list(qk(S[(q,0)], K[0], q))
    for q in range(2): c += max16(T + 2*q, S[(q,0)]) + xhalf_max(T + 2*q) + shift_split(q, T + 2*q)
    for q in range(2): c += list(qk(S[(q,0)], K[0], q))
    c += f2_addr() + [f"s_mov_b32 s{sT+10}, s{sT}"] + flag_store2(f"s{sT+10}", 160)[:3]
    c += [f"s_mov_b32 s{sIT}, 0", f"s_mov_b32 s{sDK}, {KCH}", f"s_mov_b32 s{sDV}, {hx(VPOS[1] - VPOS[0])}", "s_waitcnt lgkmcnt(0)"]
    c = fin(c)
    body = loop_body()
    upd = [f"s_add_u32 s{sIT}, s{sIT}, 1", f"s_cmp_eq_u32 s{sIT}, 1", f"s_cselect_b32 s{sDK}, {hx(-4*KCH)}, 0", f"s_cselect_b32 s{sDV}, 0, {VPOS[3] - 2*VPOS[2]}",
           f"s_add_u32 s{sDK}, s{sDK}, {KCH}", f"s_add_u32 s{sDV}, s{sDV}, {VPOS[2]}",
           f"s_cmp_lt_u32 s{sIT}, 3", "s_cbranch_scc1 LA_loop"]
    fin_it = loop_body(True)
    two = [as_ins(x) for x in body + upd + body + upd + fin_it]
    assert len(fix_hazards(fix_waits(two), c[-14:])) == len(two), "attention loop needs extra waits/pads"
    c += tr("att", 1) + [".p2align 6", "LA_loop:"] + body + upd + fin_it + stamp(6) + tr("att", 2)
    C, D = pv(1, V[1], S[(1,1)])
    e = [C, D,
         f"s_lshl_b32 s{sT}, s{sQB}, 3", f"s_lshl_b32 s{sT+1}, s{sA}, 1", f"s_add_u32 s{sT}, s{sT}, s{sT+1}",
         f"s_mul_i32 s{sT+10}, s{sT}, 40960", f"s_add_u32 s{sT+10}, s{sT+10}, {hx(WS_O)}",
         f"s_lshl_b32 s{sT+11}, s{sHEAD}, 10", f"s_add_u32 s{sT+11}, s{sT+11}, s{sT+10}",
         f"s_lshl_b32 s{sT}, s{sHEAD}, 8", f"s_add_u32 s{sT+10}, s{sT+10}, s{sT}", f"s_add_u32 s{sT+10}, s{sT+10}, 32768",
         ] + f3_addr(sT + 9) + [
         "LA_fin:", f"v_cmp_eq_u32 vcc, 0, v{VH}",
         f"v_bfe_u32 v{T+2}, v{VL16}, 8, 1", f"v_mul_u32_u24 v{T+2}, {40960 - 256}, v{T+2}", f"v_add_u32 v{T+2}, v{T+2}, v{VL16}", f"v_lshl_add_u32 v{T+2}, v{VH}, 30, v{T+2}"]
    for q in range(2):
        e += [f"v_cndmask_b32 v{T+q}, v{O[q]+8}, v{O[q]+12}, vcc", f"v_rcp_f32 v{T+4}, v{T+q}"]
        e += [f"v_mul_f32 v{16+12*q+j}, v{T+4}, v{O[q]+j}" for j in range(12)]
        P = [48+4*q, 49+4*q, 50+4*q, 51+4*q, 56+2*q, 57+2*q]
        e += [f"v_cvt_pk_bf16_f32 v{P[j]}, v{16+12*q+2*j}, v{16+12*q+2*j+1}" for j in range(6)]
        e += [f"v_and_b32 v{16+12*q+j}, 0x7f807f80, v{P[j]}" for j in range(6)]
        e += [f"v_pk_max_u16 v{16+12*q}, v{16+12*q}, v{16+12*q+j}" for j in range(1, 6)]
    e += ["v_permlane16_swap_b32 v56, v58", "v_permlane16_swap_b32 v57, v59", f"v_pk_max_u16 v16, v16, v28", f"v_add_u32 v16, 0x00800080, v16", f"v_and_b32 v16, 0x80008000, v16",
          f"v_min_f32 v{T+3}, v{T}, v{T+1}", f"v_add_f32 v{T}, v{T}, v{T+1}", f"v_cmp_eq_u32 s[{sT+6}:{sT+7}], 0, v16",
          f"v_cmp_gt_f32 vcc, 0x7f000000, v{T}", f"s_and_b64 s[{sT+4}:{sT+5}], vcc, s[{sT+6}:{sT+7}]", f"v_cmp_lt_f32 vcc, 0x35800000, v{T+3}",
          f"s_and_b64 vcc, vcc, s[{sT+4}:{sT+5}]", f"s_cmp_eq_u64 vcc, exec", f"s_cselect_b32 s{sT+3}, 5, s{sT+2}" if not opt("FORCESLOW") else f"s_mov_b32 s{sT+3}, s{sT+2}", f"s_cmp_eq_u32 s{sT+3}, 3",
          "s_cbranch_scc1 LA_slow"]
    e += [f"buffer_store_dwordx4 v[48:51], v{VL16}, {sr(SWS,4)}, s{sT+11} offen{SC}", f"s_add_u32 s{sT}, s{sT+11}, 40960",
          f"buffer_store_dwordx4 v[52:55], v{VL16}, {sr(SWS,4)}, s{sT} offen{SC}",
          f"buffer_store_dwordx4 v[56:59], v{T+2}, {sr(SWS,4)}, s{sT+10} offen{SC}"]
    e += [f"buffer_store_dword v160, v162, {sr(SWS,4)}, s{sT+9} offen{SC}"]
    e += stamp(7) + ["s_setprio 0"] + p3_setup() + g_items() + ["s_barrier"]
    c += fin(e, pre=fin_it[-12:]) + p3_gemm(0, 2, "L_p3a") + ["s_branch L_p3j"]
    return c + slow_path()

def f3_addr(d):
    return [f"s_lshl_b32 s{d}, s{sQB}, 2", f"s_add_u32 s{d}, s{d}, s{sA}", f"s_lshl_b32 s{d}, s{d}, 5", f"s_add_u32 s{d}, s{d}, s{sHEAD}",
            f"s_lshl_b32 s{d}, s{d}, 7", f"s_add_u32 s{d}, s{d}, {hx(WS_F3)}"]
def f2_addr():
    return [f"s_lshl_b32 s{sT}, s{sRB}, 2", f"s_add_u32 s{sT}, s{sT}, s{sA}", f"s_lshl_b32 s{sT}, s{sT}, 4", f"s_add_u32 s{sT}, s{sT}, s{sCB}",
            f"s_lshl_b32 s{sT}, s{sT}, 6", f"s_and_b32 s{sT+1}, s{sW}, 4", f"s_add_u32 s{sT}, s{sT}, s{sT+1}", f"s_lshl_b32 s{sT}, s{sT}, 1", f"s_add_u32 s{sT}, s{sT}, {hx(WS_F2)}"]
def fr_addr():
    return [f"s_lshl_b32 s{sT}, s{sTASK}, 5", f"s_add_u32 s{sT}, s{sT}, s{sA}", f"s_lshl_b32 s{sT}, s{sT}, 2", f"s_add_u32 s{sT}, s{sT}, {hx(WS_FR)}"]

def slow_path():
    kb, vb, i = sT + 4, sT + 5, sT + 6
    kf = K[0]; vf = V[0]
    def kload():
        return [f"s_lshr_b32 s{sT}, s{i}, 1", f"s_mul_i32 s{sT}, s{sT}, 2560", f"s_and_b32 s{sT+1}, s{i}, 1", f"s_lshl_b32 s{sT+1}, s{sT+1}, 8",
                f"s_add_u32 s{sT}, s{sT}, s{sT+1}", f"s_add_u32 s{sT}, s{sT}, s{kb}",
                f"buffer_load_dwordx2 {vr(kf,2)}, v{AK0}, {sr(SWS,4)}, s{sT} offen{SC}",
                f"buffer_load_dwordx2 {vr(kf+2,2)}, v{AK0}, {sr(SWS,4)}, s{sT} offen offset:512{SC}",
                f"buffer_load_dword v{kf+4}, v{AK2}, {sr(SWS,4)}, s{sT} offen{SC}"]
    c = ["LA_slow:",
         f"s_mul_i32 s{kb}, s{sHEAD}, {HS_QK}", f"s_add_u32 s{kb}, s{kb}, {hx(WS_K)}",
         f"s_mul_i32 s{vb}, s{sHEAD}, {HS_V}", f"s_add_u32 s{vb}, s{vb}, {hx(WS_V)}",
         f"v_subrev_u32 v{AK0}, {KPOS[3]}, v{AK0}", f"v_subrev_u32 v{AK2}, {KPOS[3]}, v{AK2}",
         f"v_mov_b32 v{Q[0]+5}, 0", f"v_mov_b32 v{Q[1]+5}, 0",
         f"v_mov_b32 v{T}, 0xff800000", f"v_mov_b32 v{T+2}, 0xff800000", f"s_mov_b32 s{i}, 0"]
    l1 = ["LA_s1:"] + kload()
    for q in range(2): l1 += list(qk(S[(q,0)], kf, q))
    for q in range(2): l1 += max16(T + 2*q, S[(q,0)], acc=True)
    l1 += [f"s_add_u32 s{i}, s{i}, 1", f"s_cmp_lt_u32 s{i}, 64", "s_cbranch_scc1 LA_s1"]
    mid = []
    for q in range(2): mid += xhalf_max(T + 2*q) + shift_split(q, T + 2*q)
    mid += [f"v_mov_b32 v{r}, 0" for r in range(O[0], O[0]+32)] + [f"s_mov_b32 s{i}, 0"]
    l2 = ["LA_s2:"] + kload()
    l2 += [f"s_mul_i32 s{sT}, s{i}, 1344", f"s_add_u32 s{sT}, s{sT}, s{vb}",
           f"buffer_load_dwordx4 {vr(vf,4)}, v{VVG}, {sr(SWS,4)}, s{sT} offen{SC}",
           f"buffer_load_dwordx4 {vr(vf+4,4)}, v{VVG}, {sr(SWS,4)}, s{sT} offen offset:672{SC}"]
    for q in range(2): l2 += list(qk(S[(q,0)], kf, q))
    for q in range(2):
        l2 += [f"v_exp_f32 v{S[(q,0)]+j}, v{S[(q,0)]+j}" for j in range(16)]
        l2 += list(pv(q, vf, S[(q,0)]))
    l2 += [f"s_add_u32 s{i}, s{i}, 1", f"s_cmp_lt_u32 s{i}, 64", "s_cbranch_scc1 LA_s2",
           f"s_mov_b32 s{sT+2}, 5", "s_nop 15", "s_branch LA_fin"]
    return fin(c + l1 + mid + l2)

GA = 16; FB = 96; NBUF = opt("NBUF", 5)
def gload(buf, sa, sb):
    f = FB + 24 * buf
    c = [f"buffer_load_dwordx4 {vr(f,4)}, v{VL16}, {sr(SWS,4)}, s{sa} offen{SC}"]
    for j in range(4): c += [f"buffer_load_dwordx4 {vr(f+4+4*j,4)}, v{VL16}, {sr(SWS,4)}, s{sb} offen offset:{1024*j}{SC}"]
    c += [f"buffer_load_dwordx4 {vr(f+20,4)}, v{VL2}, {sr(SWS,4)}, s{sb} offen{SC}",
          f"s_add_u32 s{sa}, s{sa}, 1024", f"s_add_u32 s{sb}, s{sb}, 5120"]
    return c
def gemm(nk, sa, sb, hooks):
    c = []
    for k in range(NBUF - 1): c += gload(k, sa, sb)
    for k in range(nk):
        c += hooks.get(k, [])
        f = FB + 24 * (k % NBUF)
        mm = [f"v_mfma_f32_32x32x16_bf16 {vr(GA+16*j,16)}, {vr(f+4+4*j,4)}, {vr(f,4)}, {vr(GA+16*j,16)}" for j in range(5)]
        ld = gload((k + NBUF - 1) % NBUF, sa, sb) if k + NBUF - 1 < nk else []
        for j in range(5):
            c += [mm[j]]
            if ld: c += [ld[j]] if j < 4 else ld[4:]
    return c
def slab_addr():
    a = SA
    return [f"v_and_b32 v{a+1}, 7, v{VTOK}", f"v_xor_b32 v{a+1}, v{a+1}, v{VH}", f"v_mul_u32_u24 v{a}, 640, v{VTOK}", f"v_lshl_add_u32 v{a}, v{a+1}, 4, v{a}",
            f"s_mul_i32 s{sT}, s{sA}, {KCH}", f"s_add_u32 s{sT}, s{sT}, {LK}", f"s_cmp_eq_u32 s{sA}, 1", f"s_cselect_b32 s{sT}, {LK}, s{sT}",
            f"s_cmp_eq_u32 s{sA}, 0", f"s_cselect_b32 s{sT}, 0, s{sT}", f"v_add_u32 v{a}, s{sT}, v{a}"] + [f"v_xor_b32 v{a+q}, {32*q}, v{a}" for q in range(1, 4)]
def slab_tile(acc, j): return [f"ds_write_b128 v{SA+q}, {vr(acc+4*q,4)} offset:{128*j}" for q in range(4)]
def wo_loads(c0, n):
    W0 = WOF + 40 * (3 - n)
    c = [f"s_mul_i32 s{sT}, s{sCG}, 40", f"s_add_u32 s{sT}, s{sT}, s{sA}", f"s_mul_i32 s{sT}, s{sT}, 5120",
         f"s_add_u32 s{sT}, s{sT}, {hx(WS_WOF + 1024*c0)}", f"s_mul_i32 s{sT+1}, s{sA}, 5120"]
    for k in range(10):
        c += [f"buffer_load_dwordx4 {vr(W0+40*j+4*k,4)}, v{VL16}, {sr(SWS,4)}, s{sT} offen offset:{1024*j}{SC}" for j in range(n)]
        if k < 9: c += [f"s_add_u32 s{sT}, s{sT}, {20480 if k < 8 else 5120}"]
        if k == 7: c += [f"s_add_u32 s{sT}, s{sT}, s{sT+1}"]
    return c
def item_loads():
    t = XV
    c = [f"v_lshrrev_b32 v{t}, 8, v{VL16}", f"v_lshl_add_u32 v{t}, s{sW}, 2, v{t}", f"v_bfe_u32 v{t+1}, v{VL16}, 4, 4",
         f"v_and_b32 v{t+2}, 7, v{t}", f"v_xor_b32 v{t+2}, v{t+2}, v{t+1}", f"v_mul_u32_u24 v{IA}, 640, v{t}", f"v_lshl_add_u32 v{IG}, v{t+1}, 2, v{IA}",
         f"v_lshl_add_u32 v{IA}, v{t+2}, 4, v{IA}", f"v_add_u32 v{IA+1}, {SLB[2]}, v{IA}",
         f"s_mul_i32 s{sT+1}, s{sRTILE}, {32*1280}", f"s_mul_i32 s{sT}, s{sCG}, 320", f"s_add_u32 s{sT+1}, s{sT+1}, s{sT}",
         f"v_lshl_add_u32 v{IG}, v{IG}, 1, s{sT+1}", f"v_lshrrev_b32 v{t+1}, 3, v{t+1}", f"v_lshl_add_u32 v{IG+1}, v{t+1}, 30, v{IG}"]
    return c + [f"buffer_load_dwordx2 {vr(XV+2*p,2)}, v{IG + (p == 2)}, {sr(SX,4)}, 0 offen offset:{128*p}" for p in range(3)]
def reduce4():
    c = []
    for p in range(3):
        c += [f"ds_read_b128 {vr(RED+16*p+4*s,4)}, v{IA + (s >> 1)} offset:{SLB[s] - SLB[s & 2] + 256*p}" for s in range(4)]
    for p in range(3):
        b = RED + 16 * p
        c += [f"v_add_f32 v{b+i}, v{b+i}, v{b+4+i}" for i in range(4)] + [f"v_add_f32 v{b+8+i}, v{b+8+i}, v{b+12+i}" for i in range(4)]
        c += [f"v_add_f32 v{b+i}, v{b+i}, v{b+8+i}" for i in range(4)]
    return c
def g_items():
    r = reduce4()
    for p in range(3):
        b = RED + 16 * p; g = GR + 4 * p
        r += [f"v_mul_f32 v{b+4+i}, {fl(-LOG2E)}, v{b+i}" for i in range(4)]
        r += [f"v_exp_f32 v{b+4+i}, v{b+4+i}" for i in range(4)]
        r += [f"v_add_f32 v{b+4+i}, 1.0, v{b+4+i}" for i in range(4)]
        r += [f"v_rcp_f32 v{b+4+i}, v{b+4+i}" for i in range(4)]
        r += [f"v_mul_f32 v{g+i}, v{b+i}, v{b+4+i}" for i in range(4)]
    return r
def p3_setup(slab=True):
    return [f"s_mul_i32 s{sT+4}, s{sRTILE}, 40", f"s_add_u32 s{sT+4}, s{sT+4}, s{sA}", f"s_add_u32 s{sT+5}, s{sT+4}, s{sA}",
            f"s_lshl_b32 s{sT+4}, s{sT+4}, 10", f"s_add_u32 s{sT+4}, s{sT+4}, {hx(WS_O)}", f"s_lshl_b32 s{sT+5}, s{sT+5}, 10", f"s_add_u32 s{sT+5}, s{sT+5}, {hx(WS_O + 32768)}",
            f"v_and_b32 v{PAD}, 0x2f0, v{VL16}", f"v_bfe_u32 v{PD}, v{VL16}, 8, 1", f"v_lshl_add_u32 v{PAD}, v{PD}, 3, v{PAD}",
            f"s_mov_b32 s{sT+6}, {SPIN}"] + (slab_addr() if slab else [])
def unpack(d, s):
    return [f"v_lshlrev_b32 v{d}, 16, v{s}", f"v_and_b32 v{d+1}, 0xffff0000, v{s}",
            f"v_lshlrev_b32 v{d+2}, 16, v{s+1}", f"v_and_b32 v{d+3}, 0xffff0000, v{s+1}"]
def bias2():
    t = FB
    c = [f"v_add_u32 v{t}, s{sA}, v{VH}", f"v_lshlrev_b32 v{t}, 20, v{t}", f"v_lshl_add_u32 v{t}, v{VTOK}, 1, v{t}", f"s_mul_i32 s{sT}, s{sCG}, 320",
         f"v_mov_b32 v{t+2}, 0x3f80", f"v_mov_b32 v{t+3}, 0"]
    c += [f"buffer_load_ushort v{t+4+2*j}, v{t}, {sr(SB2,4)}, s{sT} offen offset:{64*j}" for j in range(5)]
    c += [f"v_mov_b32 v{t+5+2*j}, 0" for j in range(5)]
    return c + [f"v_mfma_f32_32x32x8_bf16 {vr(GA+16*j,16)}, {vr(t+4+2*j,2)}, {vr(t+2,2)}, 0" for j in range(5)]
def b_phase2():
    sa, sb = sT + 11, sT + 7
    t = 2
    g = [f"v_add_u32 v{VL2}, 4096, v{VL16}",
         f"v_and_b32 v{t}, 3, v{VTOK}", f"v_min_u32 v{t}, 2, v{t}", f"v_bfe_u32 v{t+1}, v{VTOK}, 2, 2", f"v_mad_u32_u24 v{t}, v{t+1}, 10, v{t}",
         f"s_mul_i32 s{sT}, s{sCG}, 5", f"s_lshr_b32 s{sT}, s{sT}, 1", f"v_add_lshl_u32 v{t}, v{t}, s{sT}, 7", f"s_mov_b32 s{sT+3}, {hx(WS_FR)}",
         f"v_add_u32 v9, {hx(WS_FR - WS_F2)}, v{t}"]
    g += [f"v_lshlrev_b32 v{t}, 3, v{VL16}", f"v_and_b32 v{t}, 0x780, v{t}", f"s_lshl_b32 s{sT+3}, s{sRTILE}, 11", f"v_add_u32 v{t}, s{sT+3}, v{t}",
         f"v_cmp_eq_u32 vcc, 0, v{VH}", f"v_cndmask_b32 v{t}, v9, v{t}, vcc", f"s_mov_b32 s{sT+3}, {hx(WS_F2)}",
         f"s_lshl_b32 s{sT}, s2, 2", f"s_add_u32 s{sT}, s{sT}, s{sA}", f"s_cmp_eq_u32 s{sT}, 0", "s_cbranch_scc0 LB_nep"]
    ep = [f"v_lshlrev_b32 v10, 3, v{VL16}"]
    for q in range(4):
        ep += [f"s_mov_b32 s{sT}, {hx(WS_F1 + 8192*q)}", poll_load(11, 10, f"s{sT}"), "s_waitcnt vmcnt(0)"] + poll_check(f"LB_pe{q}", 11, 10, f"s{sT}")
    g += opaque(ep + [f"s_mov_b32 s{sT}, {hx(WS_EP)}"] + flag_store(f"s{sT}", t=10)) + ["LB_nep:"] + item_loads() + bias2() + ["s_waitcnt vmcnt(0)", poll_load(4, t, f"s{sT+3}", 4)] + tr("att", 2) + ["s_barrier"] + tr("att", 3)
    g += poll_check("LB_p2", 4, t, f"s{sT+3}", 4) + stamp(6) + slab_addr()
    g += [f"s_mul_i32 s{sa}, s{sRTILE}, 108", f"s_mul_i32 s{sT}, s{sA}, 27", f"s_add_u32 s{sa}, s{sa}, s{sT}", f"s_lshl_b32 s{sa}, s{sa}, 10",
          f"s_add_u32 s{sa}, s{sa}, {hx(WS_H)}",
          f"s_mul_i32 s{sb}, s{sCG}, 108", f"s_add_u32 s{sb}, s{sb}, s{sT}", f"s_mul_i32 s{sb}, s{sb}, 5120", f"s_add_u32 s{sb}, s{sb}, {hx(WS_W2F)}"]
    v3 = vchunk(VPOS[3]) + [mark("v3")]
    h2, h3 = [int(x) for x in opt("GH", "8,21").split(",")]
    g += gemm(27, sa, sb, {h2: tr("att", 4) + ["s_barrier"] + tr("att", 5) + v3, h3: [waitfor("v3")] + tr("att", 6) + ["s_barrier"] + tr("att", 7)})
    g += wo_loads(2, 3)
    for j in range(5): g += slab_tile(GA + 16*j, j)
    g += ["s_waitcnt lgkmcnt(0)"] + stamp(7) + tr("att", 8) + ["s_barrier"] + tr("att", 9) + p3_setup(False) + g_items() + [f"s_cmp_eq_u32 s{sA}, 0", "s_cbranch_scc0 LB_np3"]
    g += opaque(flat([f"v_lshlrev_b32 v2, 7, v{VTOK}", f"s_lshr_b32 s{sT+3}, s{sRTILE}, 1", f"s_lshl_b32 s{sT+3}, s{sT+3}, 12", f"s_add_u32 s{sT+3}, s{sT+3}, {hx(WS_F3)}",
          poll_load(PD, 2, f"s{sT+3}"), "s_waitcnt vmcnt(0)"] + poll_check("LB_p3", PD, 2, f"s{sT+3}"))) + ["LB_np3:", "s_barrier"]
    return fin(g)

def o_load(k):
    if k < 8: return [f"s_add_u32 s{sT}, s{sT+4}, {4096*k}", f"buffer_load_dwordx4 {vr(OF[k],4)}, v{VL16}, {sr(SWS,4)}, s{sT} offen{SC}"]
    return [f"buffer_load_dwordx2 {vr(OF[k]+2*t,2)}, v{PAD}, {sr(SWS,4)}, s{sT+5} offen offset:{1024*(k-8) + 256*t}{SC}" for t in range(2)]
def p3_gemm(c0, n, lab):
    W0 = WOF + 40 * (3 - n)
    mm = lambda j, k: f"v_mfma_f32_32x32x16_bf16 {vr(RED+16*j,16)}, {vr(W0+40*j+4*k,4)}, {vr(OF[k],4)}, {'0' if k == 0 else vr(RED+16*j,16)}"
    c = stamp(8) + [f"{lab}:"] + flat([o_load(k) for k in range(10)])
    for k in range(10):
        c += [mm(0, k), f"v_max3_u32 v{PD}, v{OF[k]}, v{OF[k]+1}, {'0' if k == 0 else f'v{PD}'}", f"v_max3_u32 v{PD}, v{OF[k]+2}, v{OF[k]+3}, v{PD}"]
    c += [mm(1, 0), f"v_cmp_eq_u32 vcc, -1, v{PD}", f"s_sub_u32 s{sT+6}, s{sT+6}, 1", "s_cselect_b64 vcc, 0, vcc", "s_cmp_lg_u64 vcc, 0", f"s_cbranch_scc1 {lab}"]
    for j in range(1, n):
        for k in range(10):
            if (j, k) != (1, 0): c += [mm(j, k)]
            if 5 <= k < 9: c += [slab_tile(RED + 16*(j-1), c0 + j - 1)[k - 5]]
    c += slab_tile(RED + 16*(n-1), c0 + n - 1)
    return fin(c + ["s_waitcnt lgkmcnt(0)"])

def phase3():
    r = p3_gemm(2, 3, "L_p3b") + ["L_p3j:"]
    z = ["s_barrier"] + reduce4()
    for p in range(3):
        b = RED + 16 * p
        z += unpack(b + 4, XV + 2*p)
        z += [f"v_fma_f32 v{b+i}, v{b+i}, v{GR+4*p+i}, v{b+4+i}" for i in range(4)]
        z += [f"v_cvt_pk_bf16_f32 v{b+12}, v{b}, v{b+1}", f"v_cvt_pk_bf16_f32 v{b+13}, v{b+2}, v{b+3}",
              f"buffer_store_dwordx2 {vr(b+12,2)}, v{IG + (p == 2)}, {sr(SOUT,4)}, 0 offen offset:{128*p}" + opt("OST", "")]
    return r + fin(z)

def kernel(name):
    isv = [f"s_sub_u32 s{sT}, s{sCB}, 10", f"s_cmp_lt_u32 s{sT}, 5"]
    def helpers(R, nxt):
        c = [f"s_cmp_eq_u32 s{sCB}, 15", f"s_cbranch_scc1 LH{R}h"] + isv + [f"s_cbranch_scc0 LH{R}q"]
        c += fin(helper(R, 'V'), pre=C_PRE) + [f"s_branch {nxt}", f"LH{R}h:"] + fin(helper(R, 'H'), pre=C_PRE) + [f"s_branch {nxt}", f"LH{R}q:"]
        return c + fin(helper(R, 'QK'), pre=C_PRE)
    er, ev = ext('N')
    c = ["L_first:"] + stamp(0) + stamp(10, True) + tr("r0", 11) + tr("st", 11) + prologue()
    c += b_round0() + stamp(3) + [f"s_mov_b32 s{sR}, 1"] + isv + ["s_cbranch_scc0 LC"]
    c += c_body('V') + ["s_branch LB_2"]
    c += ["LC:"] + c_body('N') + [f"s_cmp_eq_u32 s{sR}, 2", "s_cbranch_scc1 LA_3", f"s_cmp_eq_u32 s{sR}, 3", "s_cbranch_scc1 LB_t4"]
    c += ["LB_2:", f"s_mov_b32 s{sR}, 2"] + helpers(2, "LB_3")
    c += ["LB_3:", f"s_mov_b32 s{sR}, 3", f"s_cmp_eq_u32 s{sNR}, 4", "s_cbranch_scc1 LC"]
    c += fin(stamp(4) + wdma(4) + [mark("w4")] + f1_addr(True) + kv_base(0) + poll_check("LB_p1", PF, PA, f"s{sT+3}", 4) + first_kv()
             + f1_addr(False) + [waitfor("w4"), "s_barrier", f"s_cmp_ge_u32 s{sTASK}, 40", "s_cbranch_scc1 LB_r1"] + opaque(relayout_read())
             + ["LB_r1:", "s_waitcnt vmcnt(0) lgkmcnt(0)", "s_barrier"] + stamp(5) + f2_addr() + flag_store2(f"s{sT}", TB)
             + [f"s_cmp_ge_u32 s{sTASK}, 40", "s_cbranch_scc1 LB_r2"] + opaque(relayout_store()) + ["LB_r2:"]
             + poll_check("LB_p5", PF, PA, f"s{sT+3}", 4) + rest_kv() + ["s_branch LB_g"])
    c += ["LB_t4:"] + fin(stamp(4) + stamp(5) + er + f1_addr(False) + kv_base(1) + [f"s_lshl_b32 s{sCT}, s{sHU}, 1", f"s_add_u32 s{sCT}, s{sCT}, 2"] + ev + epi_h(0) + epi_h(1) + [mark("h"), "s_setprio 0"]
             + poll_check("LB_p4", PF, PA, f"s{sT+3}", 4) + rest_kv()[:54] + f2_addr() + [waitfor("h")] + flag_store2(f"s{sT}", TB) + rest_kv()[54:], pre=C_PRE)
    c += ["LB_g:", "s_setprio 0"] + tr("att", 1) + b_phase2() + phase3()
    c += ["s_waitcnt vmcnt(0)"] * bool(STAMP) + stamp(9) + stamp(11, True) + stamp_flush(SWS, sW) + ["L_end:", "s_endpgm"]
    c += fix_hazards(["LA:"] + tr("st", 1) + PRE_W + prologue2() + (touch(SX, 2621440) + touch(sWQ, 640*3840) if opt("PF0", 0) else []) + tr("st", 2) + (page_touch() if opt("PFT", 0) else []) + lane_setup('A') + tr("st", 4) + aim(1) + tr("st", 5) + stamp(1) + ["s_waitcnt lgkmcnt(0)", f"s_add_u32 s{sN}, s{sN}, 1", "s_setprio 1"]
                     + isv + ["s_cbranch_scc0 LA_n"] + ones_rows())
    c += a_round0('V') + ["s_branch LA_1", "LA_n:"] + a_round0('N')
    c += ["LA_1:", f"s_mov_b32 s{sR}, 1"] + stamp(3) + helpers(1, "LA_2") + ["LA_2:"] + xs("r1") + [f"s_mov_b32 s{sR}, 2", "s_branch LC"]
    c += ["LA_3:"] + xs("r2") + [f"s_mov_b32 s{sR}, 3", f"s_lshl_b32 s{sCT}, s{sHU}, 1", f"s_cmp_eq_u32 s{sNR}, 4", "s_cbranch_scc1 LA_h3"]
    c += fin(stamp(4) + er + ev + epi_h(0) + ["s_barrier"] + epi_h(1) + ["s_barrier", "s_branch LA_att"], pre=C_PRE)
    c += ["LA_h3:"] + fin(helper(3, 'H') + stamp(4), pre=C_PRE) + ["LA_att:"] + attn() + ["L_last:"]
    return kernel_head(name) + render(c)

if __name__ == "__main__":
    import sys
    name = "recurrent_scan__mha_block__mixer_channel_mlp__prompt_kernel"
    HEAD = open("recurrent_scan__mha_block__mixer_channel_mlp__prompt.s.ref").read().split("; Override")[0]
    s = HEAD + "; @launch grid=(256,1,1) block=(512,1,1) lds=163840\n" + '.amdgcn_target "amdgcn-amd-amdhsa--gfx950"\n'
    s += kernel(name) + kernel_desc(name, 256, 102)
    open(sys.argv[1], "w").write(s)
```

```python
from common import *

sW, sA, sN, sRB, sCB = 3, 4, 5, 6, 7
SX, SWD, SWS, SB1, SB2, SOUT = 8, 12, 16, 20, 28, 32
sWQ, sCSB, sDST = 24, 26, 27
sW1, sW2, sWO = 36, 38, 40
sWOFF, sST, sR, sNR, sCT, sHU, sQKROW, sVOFF, sHOFF, sXOFF, sM4, sTASK = range(42, 54)
sHEAD, sQB, sRTILE, sCG = 54, 55, 56, 57
sT = 58
sSG = 96
U = 16384
MISC = 9 * U
XBUF = [3*U, 7*U, 0, 3*U, 7*U]; WSL0 = [5, 6, 2, 5, 6]
L_PART = MISC; L_RS = MISC + 2048; L_CNT = MISC + 3072; L_ST = MISC + 4096; L_Q = MISC + 4096 + 0
VCH = 21504; KCH = 20480
LK = 43520; KPOS = [LK + 2*KCH, LK + 3*KCH, LK, LK + KCH]; VPOS = [LK + 4*KCH, 0, VCH, LK + 4*KCH]
SLB = [0, LK, LK + 2*KCH, LK + 3*KCH]
WS_F2 = 0x1c00000
WS_FR = 0x1c40000
WS_F3 = 0x1c80000
WS_F1 = 0x1cc0000
WS_EP = 0x1cf0000
SC = " sc1"
SPIN = 100000

class Tag(Ins):
    def __init__(self, name, kind):
        Ins.__init__(self, ""); self.name = name; self.tk = kind
def mark(name): return Tag(name, 'mark')
def waitfor(name, extra="", older=0):
    t = Tag(name, 'wait'); t.extra = extra; t.older = older; return t
def resolve(code):
    out = []; n = 0; at = {}
    for x in code:
        x = as_ins(x)
        if isinstance(x, Tag):
            if x.tk == 'mark': at[x.name] = n
            else:
                k = n - at[x.name] if x.name in at else n + x.older
                k = min(k, 63)
                out.append(Ins(f"s_waitcnt vmcnt({k}){x.extra}"))
            continue
        if x.kind == 'vmem' and not x.opaque: n += 1
        out.append(x)
    return out
def flat(c):
    o = []
    for y in c: o += flat(y) if isinstance(y, (list, tuple)) else [y]
    return o
def cost(x):
    t = 0
    for y in flat([x]):
        y = as_ins(y)
        t += {'valu': 13 if (getattr(y, 'trans', False) or 'permlane' in y.mn) else 7, 'salu': 5, 'ds': 8, 'vmem': 14, 'mfma': 30, 'wait': 5}.get(y.kind, 0)
        if y.kind == 'nop': t += 4 * y.n
    return t
DSP = opt("DSP", 90); LSP = opt("LSP", 20)
def sched(main, dmas=(), side=(), dsp=None):
    main = list(main); side = list(side); dsp = dsp or DSP
    d = []; cur = []
    for x in dmas:
        cur.append(x)
        if isinstance(x, Tag): d[-1] += cur; cur = []
        elif not isinstance(x, list) and as_ins(x).kind == 'vmem': d.append(cur); cur = []
    if cur: d[-1] += cur
    out = []; t = 0; nd = 0; nl = 0
    while main or d or side:
        if side and t >= nl: x = side.pop(0); nl = t + LSP
        elif d and (t >= nd or not (main or side)): x = d.pop(0); nd = t + dsp
        elif main: x = main.pop(0)
        else: x = f"s_nop {min(15, max(0, (nl - t + 3) // 4 - 1))}"
        out.append(x); t += cost(x)
    return out
def fin(c, pend_lg=(), pre=()):
    return fix_hazards(fix_waits(resolve(flat(c)), pend_lg=pend_lg), pre)
def pk(op, d, *src): return f"v_pk_{op}_f32 {vr(d,2)}, " + ", ".join(s if isinstance(s, str) else vr(s,2) for s in src)

X = 96; ACC = [64, 80]; WF = 32
VT = [2, 3]; JUNK = 4; EXTX = 6; RSA = 8; RS2 = 9; GC = 10; CSI = 11; VCA = 12
VL16, VH, VTOK = 13, 14, 15
CSA = 16; CSD = [20, 24]; VW = 28
TB = 32; CF = 48
VBIAS = [0, 1]
LA = 6

def c_read(n, r0=False):
    P, g, e = n >> 2, (n >> 1) & 1, n & 1
    s, p = divmod(P, 4); f = WF + 4 * (n % 8)
    c = []
    if e == 0 and P:
        c += [f"v_xor_b32 v{VT[g]}, {hx((p ^ ((p - 1) & 3)) << 12)}, v{VT[g]}"]
        if p == 0 and r0 and s in (2, 3): c += [f"v_add_u32 v{VT[g]}, {hx(-3*U if s == 2 else 3*U)}, v{VT[g]}"]
        if p == 0 and not r0 and s == 4: c += [f"v_add_u32 v{VT[g]}, s{sCSB}, v{VT[g]}"]
    o = ((0, U, 0, 0, U)[s] if r0 else (s & 3) * U) + e * 2048
    return c + [f"ds_read_b64_tr_b16 {vr(f,2)}, v{VT[g]} offset:{o}", f"ds_read_b64_tr_b16 {vr(f+2,2)}, v{VT[g]} offset:{o+512}"]
def c_mfma(n, orient):
    g, k = (n >> 1) & 1, 2 * (n >> 2) + (n & 1); f = WF + 4 * (n % 8); x = X + 4 * k
    a, b = (vr(f,4), vr(x,4)) if orient == 'N' else (vr(x,4), vr(f,4))
    i = Ins(f"v_mfma_f32_32x32x16_bf16 {vr(ACC[g],16)}, {a}, {b}, {'0' if k == 0 else vr(ACC[g],16)}")
    if n % 2 == 0: i.r = i.r | vset(WF + 4 * ((n + 1) % 8), 4)
    return i
def c_extra(n, r0=False):
    c = []
    if n % 16 in (1, 3):
        g = (n >> 1) & 1
        c += [f"v_smfmac_f32_16x16x64_bf16 {vr(CSD[g],4)}, {vr(CSA,4)}, {vr(WF+8*g,8)}, v{CSI}"]
    pw = partw()
    if 69 <= n < 73: c += pw[3*(n-69): 3*(n-68)]
    if n in (74, 75):
        c += [f"v_xor_b32 v{VT[n&1]}, 0x3000, v{VT[n&1]}"] + ([] if r0 else [f"v_subrev_u32 v{VT[n&1]}, s{sCSB}, v{VT[n&1]}"])
    return c
def c_body(orient):
    c = tr("body", 0) + ["s_setprio 2"] + flat([c_read(n) for n in range(LA)])
    for n in range(80):
        if n == 40: c += ["s_waitcnt vmcnt(0)"] + tr("body", 2) + ["s_barrier"] + tr("body", 3)
        if n == 76: c += ["s_waitcnt lgkmcnt(0)", "s_setprio 3"] + tr("body", 4) + ["s_barrier"] + tr("body", 5)
        c += [c_mfma(n, orient)]
        if n + LA < 80: c += c_read(n + LA)
        x = c_extra(n)
        if n % 16 in (1, 3): x = ["s_waitcnt lgkmcnt(8)"] + x
        c += x
    ab = opt("AB", "")
    if "w" in ab: c = [x for x in c if not as_ins(x).text.startswith("ds_write")]
    if "m" in ab: c = [x for x in c if not as_ins(x).text.startswith("v_smfmac")]
    if "x" in ab: c = [x for x in c if not as_ins(x).text.startswith("v_xor")]
    return fin(c + tr("body", 6))
C_PRE = [c_mfma(77, 'N'), c_mfma(78, 'N'), c_mfma(79, 'N')]

AONE = RSA; VXA = RS2
def xreads(s, t):
    xr = [[f"v_add_u32 v{t}, {XBUF[s]}, v{VXA if t == VCA else TB+4}", f"ds_read_b128 {vr(X+32*s,4)}, v{t}"]]
    for i in range(1, 8): xr.append([f"v_xor_b32 v{t}, {32*(i ^ (i-1))}, v{t}", f"ds_read_b128 {vr(X+32*s+4*i,4)}, v{t}"])
    return xr
def a_round0(orient):
    R = lambda n: c_read(n, True)
    xr = xreads(0, VCA)
    c = tr("st", 7) + tr("r0", 0) + ["s_barrier"] + tr("st", 8) + tr("r0", 1) + stamp(2) + xr[0] + R(0) + xr[1] + R(1) + R(2) + R(3) + xr[2:]
    for n in range(80):
        s, l = divmod(n, 16)
        if l == (4 if s == 0 else 0):
            for i in range(32):
                x = X + 32 * s + i
                c += [f"v_dot2c_f32_bf16 v{EXTX}, v{x}, v{AONE}", f"v_dot2c_f32_bf16 v{EXTX+1}, v{x}, v{x}"]
        if n == 76: c += ["s_waitcnt lgkmcnt(0)", "s_setprio 3", "s_barrier"]
        if n == 64: c += ["s_waitcnt vmcnt(0)"]
        c += [c_mfma(n, orient)] + c_extra(n, True)
        if l == 0: c += R(n + 4) + R(n + 5)
        if l < 10: c += R(n + 6)
        if s < 4:
            if l == 11:
                xr = xreads(s + 1, VCA)
                c += ["s_waitcnt lgkmcnt(0)"] + tr("r0", 2*s+2) + ["s_barrier"] + tr("r0", 2*s+3)
            if l >= 12: c += R(n + 4) + xr[2*(l-12)] + xr[2*(l-12)+1]
        if n == opt("PFN", 65) and opt("PF1", 1): c += touch(sW1, 640*3456) + touch(sW2, 1728*1280) + touch(sWO, 640*1280)
    return fin(c + tr("r0", 10))

def wdma(st, unit=None):
    if unit is not None: c = [f"s_add_u32 m0, s{sM4}, {hx((unit-4)*U)}"]
    elif st == 4: c = [f"s_mov_b32 m0, s{sM4}"]
    else: c = [f"s_add_u32 m0, s{sDST}, {st*U}"]
    c += [f"s_mul_i32 s{sT}, s{sST}, s{sSG+st}", f"s_add_u32 s{sT}, s{sT}, s{sWOFF}"]
    c += [f"buffer_load_dwordx4 v{VW+e}, {sr(SWD,4)}, s{sT} offen offset:{1024*e} lds" for e in range(4)]
    return c
VX = TB
def xdma(stage):
    c = [f"s_lshl_b32 s{sT}, s{sA}, 13", f"s_add_u32 m0, s{sT}, {XBUF[stage]}", f"s_lshl_b32 s{sT}, s{sSG+stage}, 8", f"s_add_u32 s{sT}, s{sT}, s{sXOFF}"]
    c += [f"buffer_load_dwordx4 v{VX+q}, {sr(SX,4)}, s{sT} offen offset:{1024*q} lds" for q in range(4)]
    c += [f"s_add_u32 m0, m0, 4096", f"s_add_u32 s{sT}, s{sT}, 20480"]
    c += [f"buffer_load_dwordx4 v{VX+q}, {sr(SX,4)}, s{sT} offen offset:{1024*q} lds" for q in range(4)]
    return c
def set_w():
    a, b = sT + 5, sT + 6
    return [f"s_lshl_b32 s{sST}, s{a}, 7", f"s_mul_i32 s{sWOFF}, s{sA}, s{a}", f"s_lshl_b32 s{sWOFF}, s{sWOFF}, 5", f"s_add_u32 s{sWOFF}, s{sWOFF}, s{b}",
            f"v_lshrrev_b32 v{VW+1}, 7, v{VL16}", f"v_mul_u32_u24 v{VW}, s{a}, v{VW+1}",
            f"v_lshrrev_b32 v{VW+1}, 2, v{VL16}", f"v_xor_b32 v{VW+1}, v{VW+1}, v{VL16}",
            f"v_and_b32 v{VW+1}, 0x40, v{VW+1}", f"v_and_b32 v{VW+2}, 0x30, v{VL16}", f"v_add3_u32 v{VW}, v{VW}, v{VW+1}, v{VW+2}",
            f"s_lshl_b32 s{a}, s{a}, 3", f"s_sub_u32 s{a}, s{a}, 1024",
            f"v_add_u32 v{VW+1}, s{a}, v{VW}", f"v_add_u32 v{VW+2}, s{a}, v{VW+1}", f"v_add_u32 v{VW+3}, s{a}, v{VW+2}"]
def aim(R):
    a, b = sT + 5, sT + 6
    if R < 2:
        return [f"s_lshl_b32 s{b}, s{sCB}, 8", f"s_cmp_eq_u32 s{sCB}, 15", f"s_cselect_b32 s{b}, {24*128}, s{b}",
                f"s_cselect_b32 s{SWD}, s{sW1}, s{sWQ}", f"s_cselect_b32 s{SWD+1}, s{sW1+1}, s{sWQ+1}",
                f"s_cselect_b32 s{a}, 0, 384", f"s_add_u32 s{a}, s{a}, 3456", f"s_mul_i32 s{SWD+2}, s{a}, 640"] + [f"s_add_u32 s{b}, s{b}, 128"] * R + set_w()
    c = [f"s_mov_b32 s{SWD}, s{sW1}", f"s_mov_b32 s{SWD+1}, s{sW1+1}", f"s_mov_b32 s{SWD+2}, {640*3456}", f"s_movk_i32 s{a}, 3456",
         f"s_lshl_b32 s{b}, s{sHU}, 7"] + [f"s_add_u32 s{b}, s{b}, 128"] * (R - 2)
    return c + set_w()
def aim_next3(lab):
    a, b = sT + 5, sT + 6
    c = [f"s_cmp_eq_u32 s{sNR}, 3", f"s_cbranch_scc1 {lab}_r", f"s_add_u32 s{sWOFF}, s{sWOFF}, 128", f"s_branch {lab}_d", f"{lab}_r:",
         f"s_and_b32 s{a}, s2, 7", f"s_lshl_b32 s{b}, s{sTASK}, 7",
         f"s_cmp_lt_u32 s{a}, 6", f"s_cselect_b32 s{SWD}, s{sW2}, s{sWO}", f"s_cselect_b32 s{SWD+1}, s{sW2+1}, s{sWO+1}", f"s_cselect_b32 s{sT+4}, 0, 6",
         f"s_sub_u32 s{a}, s{a}, s{sT+4}", f"s_mul_i32 s{a}, s{a}, {320*1280}", f"s_add_u32 s{b}, s{b}, s{a}",
         f"s_add_u32 s{a}, s{a}, {320*1280}", f"s_min_u32 s{a}, s{a}, {1728*1280}",
         f"s_cmp_lt_u32 s{sTASK}, 10", f"s_cselect_b32 s{SWD+2}, s{a}, 0", f"s_movk_i32 s{a}, 1280"] + [f"s_mov_b32 s{sSG+k}, {k}" for k in range(5)] + set_w() + [f"{lab}_d:"]
    return opaque(c)

def bias_ld(R):
    t = VCA
    c = [f"v_lshlrev_b32 v{t}, 1, v{VTOK}", f"v_xor_b32 v{VBIAS[0]}, 1, v{VH}", f"v_add_u32 v{VBIAS[0]}, s{sA}, v{VBIAS[0]}", f"v_lshl_add_u32 v{t}, v{VBIAS[0]}, 20, v{t}"]
    if R < 2: c += [f"s_cmp_eq_u32 s{sCB}, 15", f"s_cselect_b32 s{SB1+2}, 3456, 0", f"s_movk_i32 s{sT}, {(24+R)*128}"]
    else: c += [f"s_movk_i32 s{SB1+2}, 3456", f"s_lshl_b32 s{sT}, s{sHU}, 7"] + [f"s_add_u32 s{sT}, s{sT}, 128"] * (R - 2)
    return c + [f"buffer_load_short_d16_hi v{VBIAS[g]}, v{t}, {sr(SB1,4)}, s{sT} offen offset:{64*g}" for g in range(2)]
def partw():
    c = [f"s_lshl2_add_u32 s{sT}, s{sA}, {L_PART}", f"v_add_u32 v{VCA}, s{sT}, v{VL16}"]
    for g in range(2):
        c += [f"v_add_f32 v{CSD[g]}, v{CSD[g]}, v{CSD[g]+1}", f"v_add_f32 v{CSD[g]}, v{CSD[g]}, v{VBIAS[g]}"]
    c += [f"ds_write2st64_b32 v{VCA}, v{CSD[0]}, v{CSD[1]} offset0:0 offset1:4"]
    for g in range(2): c += [f"v_mov_b32 v{CSD[g]}, 0", f"v_mov_b32 v{CSD[g]+1}, 0"]
    return c
def ext(orient, lo=False):
    c = [f"v_add_u32 v{VCA}, {L_PART}, v{VL16}"] + [f"ds_read_b128 {vr(TB+4*g,4)}, v{VCA} offset:{1024*g}" for g in range(2)]
    v = []
    for g in range(2):
        t = TB + 4 * g
        v += [f"v_add_f32 v{t}, v{t}, v{t+1}", f"v_add_f32 v{t+2}, v{t+2}, v{t+3}", f"v_add_f32 v{t}, v{t}, v{t+2}",
              f"v_cvt_pk_bf16_f32 v{t+3}, v{t}, 0", f"v_lshlrev_b32 v{t+1}, 16, v{t+3}", f"v_sub_f32 v{t+1}, v{t}, v{t+1}",
              f"v_cvt_pk_bf16_f32 v{t+2}, v{t}, v{t+1}"]
    m = []
    for g in range(2):
        t = TB + 4 * g
        a, b = (vr(t+2,2), vr(EXTX,2)) if orient == 'N' else (vr(EXTX,2), vr(t+2,2))
        m += [f"v_mfma_f32_32x32x8_bf16 {vr(ACC[g],16)}, {a}, {b}, {vr(ACC[g],16)}"]
    if lo: return c + [f"s_setprio {opt('HP', 0)}"], v + [["s_setprio 3"] + m + [f"s_setprio {opt('HP', 0)}"]]
    return c, v + m

def epi_qk(g):
    c = []; q = TB; b = TB + 1
    if g == 0:
        c += [f"v_bfe_u32 v{q}, v{VL16}, 8, 1", f"v_lshl_add_u32 v{q}, v{q}, 1, v{VH}", f"v_lshl_add_u32 v{q}, s{sCT}, 3, v{q}",
              f"v_and_b32 v{b}, 0xf0, v{VL16}", f"v_lshl_add_u32 v{b}, v{q}, 9, v{b}", f"v_mul_u32_u24 v{q}, 13108, v{q}"]
    for p in range(2):
        a = ACC[g] + 8 * p; o = TB + 8 + 4 * p; t = TB + 2 + p
        c += [f"v_lshrrev_b32 v{t}, 16, v{q}", f"v_mul_u32_u24 v{t}, {HS_QK - 2560}, v{t}", f"v_add_u32 v{t}, v{t}, v{b}"]
        if 2*g + p < 3: c += [f"v_add_u32 v{q}, {4*13108}, v{q}"]
        if 2*g + p == 1: c += [f"v_add_u32 v{b}, 4096, v{b}"]
        c += [f"v_mul_f32 v{a+i}, v{RSA}, v{a+i}" for i in range(8)]
        c += [f"v_cvt_pk_bf16_f32 v{o+i}, v{a+2*i}, v{a+2*i+1}" for i in (0, 2, 1, 3)]
        c += [f"v_permlane16_swap_b32 v{o}, v{o+2}", f"v_permlane16_swap_b32 v{o+1}, v{o+3}",
              f"buffer_store_dwordx4 {vr(o,4)}, v{t}, {sr(SWS,4)}, s{sQKROW} offen offset:{2048*p}{SC}"]
    return c
def v_addr(ad, a2, first_col):
    return [f"v_mul_u32_u24 v{ad}, 3277, v{a2}", f"v_lshrrev_b32 v{ad}, 16, v{ad}",
            f"v_mul_u32_u24 v{ad}, {HS_V - 320}, v{ad}", f"v_lshl_add_u32 v{ad}, v{a2}, 4, v{ad}",
            f"v_mul_u32_u24 v{a2}, 336, v{VH}", f"v_add_u32 v{ad}, v{ad}, v{a2}"]
def epi_v(g):
    e = ACC[g]; ad = TB + 12; a2 = TB + 13; ra = TB + 14; r = TB; p = TB + 8
    c = [[f"s_lshl_b32 s{sT+4}, s{sA}, 7", f"s_add_u32 s{sT+4}, s{sT+4}, {L_RS}", f"v_lshl_add_u32 v{ra}, v{VH}, 4, s{sT+4}"]]
    for j in range(2):
        c += [f"ds_read_b128 {vr(r+4*q,4)}, v{ra} offset:{64*j+32*q}" for q in range(2)]
        if j == 0:
            c += [[f"s_lshl_b32 s{sT+4}, s{sCT}, 5", f"s_sub_u32 s{sT+4}, s{sT+4}, {1280 - 32*g}", f"v_add_u32 v{a2}, s{sT+4}, v{VTOK}"]] + v_addr(ad, a2, 0)
        c += [f"v_mul_f32 v{e+8*j+i}, v{r+i}, v{e+8*j+i}" for i in range(8)]
        c += [f"v_cvt_pk_bf16_f32 v{p+i}, v{e+8*j+2*i}, v{e+8*j+2*i+1}" for i in range(4)]
        c += [f"buffer_store_dwordx4 {vr(p,4)}, v{ad}, {sr(SWS,4)}, s{sVOFF} offen offset:{672*j}{SC}"]
    return c
def epi_h(g):
    c = []
    for hf in range(2):
        a = ACC[g] + 8 * hf; t = TB; p = TB + 8 + 4 * hf
        R8 = range(8)
        c += [f"v_mul_f32 v{a+i}, v{RS2}, v{a+i}" for i in R8]
        c += [f"v_mul_f32 v{t+i}, v{a+i}, v{a+i}" for i in R8]
        c += [f"v_fmaak_f32 v{t+i}, v{t+i}, v{GC}, {fl(GC1)}" for i in R8]
        c += [f"v_mul_f32 v{t+i}, v{t+i}, v{a+i}" for i in R8]
        c += [f"v_exp_f32 v{t+i}, v{t+i}" for i in R8]
        c += [f"v_add_f32 v{t+i}, 1.0, v{t+i}" for i in R8]
        c += [f"v_rcp_f32 v{t+i}, v{t+i}" for i in R8]
        c += [f"v_mul_f32 v{a+i}, v{a+i}, v{t+i}" for i in R8]
        c += [f"v_cvt_pk_bf16_f32 v{p+i}, v{a+2*i}, v{a+2*i+1}" for i in range(4)]
        c += [[f"s_lshl_b32 s{sT+4}, s{sCT}, 11", f"s_add_u32 s{sT+4}, s{sT+4}, s{sHOFF}",
               f"buffer_store_dwordx4 {vr(p,4)}, v{VL16}, {sr(SWS,4)}, s{sT+4} offen offset:{2048*g + 1024*hf}{SC}"]]
    return c
EPI = {'QK': epi_qk, 'V': epi_v, 'H': epi_h}

def rbf(d, s): return [f"v_cvt_pk_bf16_f32 v{d}, v{s}, v{s}", f"v_and_b32 v{d}, 0xffff0000, v{d}"]
def stats(vt):
    m, v, d, u = EXTX, EXTX + 1, TB + 8, TB + 9
    D = TB + 12; t = TB + 8
    c = [
          f"v_permlane32_swap_b32 v{m}, v{v}", f"v_add_f32 v{m}, v{m}, v{v}", f"v_mul_f32 v{m}, {fl(1/640)}, v{m}", f"v_mov_b32 v{v}, v{m}",
          f"v_permlane32_swap_b32 v{m}, v{v}",
          f"v_fma_f32 v{v}, -v{m}, v{m}, v{v}", f"v_max_f32 v{v}, 0, v{v}"]
    c += rbf(d, v) + [f"v_add_f32 v{d}, {fl(1e-5)}, v{d}"] + rbf(d, d) + [f"v_sqrt_f32 v{d}, v{d}"] + rbf(d, d)
    c += [f"v_rcp_f32 v{u}, v{d}",
          [f"s_lshl_b32 s{sT+4}, s{sA}, 7", f"s_add_u32 s{sT+4}, s{sT+4}, {L_RS}", f"v_lshl_add_u32 v{D}, v{VTOK}, 2, s{sT+4}", f"ds_write_b32 v{D}, v{u}"] if vt else [],
          [f"s_cmp_lt_u32 s{sCB}, 5", f"s_cselect_b32 s{sT+4}, {fl(QSCALE)}, 1.0", f"v_mul_f32 v{RSA}, s{sT+4}, v{u}"],
          f"v_mul_f32 v{v}, v{v}, v{u}", f"v_mul_f32 v{v}, v{v}, v{u}"]
    c += rbf(v, v) + [f"v_add_f32 v{v}, {fl(1e-5)}, v{v}"] + rbf(v, v) + [f"v_sqrt_f32 v{v}, v{v}"] + rbf(v, v)
    c += [f"v_mul_f32 v{d}, v{d}, v{v}", f"v_rcp_f32 v{RS2}, v{d}", f"v_sub_f32 v{u}, 0, v{m}",
          [f"v_cmp_eq_u32 vcc, 0, v{VH}", f"v_cndmask_b32 v{u}, v{d}, v{u}, vcc"],
          f"v_cvt_pk_bf16_f32 v{EXTX}, v{u}, v{u}", f"v_and_b32 v{d}, 0xffff0000, v{EXTX}",
          f"v_sub_f32 v{u}, v{u}, v{d}", f"v_cvt_pk_bf16_f32 v{EXTX+1}, v{u}, 0"]
    return c
def st_addr(t): return [f"s_lshl_b32 s{sT+4}, s{sA}, 10", f"s_add_u32 s{sT+4}, s{sT+4}, {L_ST}", f"v_add_u32 v{t}, s{sT+4}, v{VL16}"]

def poll_load(t, voff, soff, n=1): return f"buffer_load_dword{'x4' if n == 4 else ''} {vr(t,n)}, v{voff}, {sr(SWS,4)}, {soff} offen{SC}"
def poll_check(lab, t, voff, soff, n=1, sl=None):
    c = [f"s_mov_b32 s{sT+2}, {SPIN}", f"{lab}:"]
    if n == 4:
        c += [f"v_xor_b32 v{t+i}, s{sN}, v{t+i}" for i in range(4)]
        c += [f"v_or3_b32 v{t}, v{t}, v{t+1}, v{t+2}", f"v_or_b32 v{t}, v{t}, v{t+3}", f"v_cmp_ne_u32 vcc, 0, v{t}"]
    else: c += [f"v_cmp_ne_u32 vcc, s{sN}, v{t}"]
    c += ["s_nop 0", "s_cmp_eq_u64 vcc, 0", f"s_cbranch_scc1 {lab}_x"]
    c += opaque([f"s_sleep {sl or opt('SLEEP', 1)}", poll_load(t, voff, soff, n), f"s_sub_u32 s{sT+2}, s{sT+2}, 1", "s_waitcnt vmcnt(0)", f"s_cbranch_scc0 {lab}"])
    return c + [f"{lab}_x:"]
sK, sV, sPC = sT + 9, sT + 10, sT + 8
def kvdma(n, so, lds_base, adv):
    c = []
    for j in range(n):
        if j % 4 == 0: c += [f"s_add_u32 m0, s{sPC if n == 5 else sT+6}, {lds_base + 1024*j}"]
        if j == 4: c += [f"s_add_u32 s{so}, s{so}, 4096"]
        c += [f"buffer_load_dwordx4 v{VL16}, {sr(SWS,4)}, s{so} offen offset:{1024*(j%4)}{SC} lds"]
    return c + ([f"s_add_u32 s{so}, s{so}, {adv - 4096}"] if adv else [])
def kchunk(pos): return kvdma(5, sK, pos, KCH)
def vchunk(pos):
    c = kvdma(5, sV, pos, VCH)
    return c[:-1] + [f"buffer_load_dwordx4 v{VL16}, {sr(SWS,4)}, s{sV} offen offset:1024{SC} lds"] + c[-1:]
PF, PA = 96, 100
def f1_addr(first):
    t = PA + 1
    c = [f"v_lshrrev_b32 v{t}, {6 if first else 8}, v{VL16}"] + ([f"v_min_u32 v{t}, 5, v{t}"] if first else [])
    c += [f"v_and_b32 v{t+1}, 1, v{t}", f"v_mul_u32_u24 v{t+1}, 19, v{t+1}", f"v_lshrrev_b32 v{t}, 1, v{t}",
          f"v_mul_u32_u24 v{PA}, 640, v{t}", f"s_mul_i32 s{sT+3}, s{sHEAD}, 20", f"s_add_u32 s{sT+3}, s{sT+3}, 640", f"v_add3_u32 v{PA}, v{PA}, v{t+1}, s{sT+3}",
          f"v_lshrrev_b32 v{PA}, 7, v{PA}"]
    if first:
        c += [f"v_bfe_u32 v{t+1}, v{VL16}, 4, 2", f"v_lshl_add_u32 v{PA}, v{PA}, 4, v{t+1}",
              f"v_and_b32 v{t+2}, {hx(~2)}, v{PA}", f"s_lshl_b32 s{sT+3}, s{sQB}, 1", f"s_sub_u32 s{sT+3}, s{sT+3}, 240", f"v_add_u32 v{t+2}, s{sT+3}, v{t+2}",
              f"v_cmp_eq_u32 vcc, 2, v{t}", f"v_cndmask_b32 v{PA}, v{PA}, v{t+2}, vcc"]
    else:
        c += [f"v_bfe_u32 v{t+1}, v{VL16}, 4, 4", f"v_lshl_add_u32 v{PA}, v{PA}, 4, v{t+1}"]
    return c + [f"v_lshlrev_b32 v{PA}, 7, v{PA}", f"s_mov_b32 s{sT+3}, {hx(WS_F1)}", poll_load(PF, PA, f"s{sT+3}", 4)]
def kv_base(skip):
    c = [f"s_mul_i32 s{sPC}, s{sA}, 5120", f"s_mul_i32 s{sK}, s{sHEAD}, {HS_QK}"]
    if not skip: c += [f"s_mul_i32 s{sT+6}, s{sA}, 3072", f"s_mul_i32 s{sT+7}, s{sQB}, 10240", f"s_add_u32 s{sT+7}, s{sT+7}, s{sK}", f"s_add_u32 s{sT+7}, s{sT+7}, s{sT+6}"]
    return c + [f"s_add_u32 s{sK}, s{sK}, s{sPC}", f"s_add_u32 s{sK}, s{sK}, {hx(WS_K + skip*KCH)}",
                f"s_mul_i32 s{sV}, s{sHEAD}, {HS_V}", f"s_add_u32 s{sV}, s{sV}, {hx(WS_V + skip*VCH)}", f"s_add_u32 s{sV}, s{sV}, s{sPC}"]
def first_kv(): return kvdma(3, sT + 7, L_Q, 0) + kchunk(KPOS[0]) + vchunk(VPOS[0]) + [mark("kv0")]
def rest_kv(): return kchunk(KPOS[1]) + vchunk(VPOS[1]), kchunk(KPOS[2]) + vchunk(VPOS[2]) + kchunk(KPOS[3])
def flag_store2(soff, t):
    return [f"v_lshlrev_b32 v{t+2}, 21, v{VL16}", f"v_mov_b32 v{t}, s{sN}", f"v_mov_b32 v{t+1}, s{sN}", f"buffer_store_dwordx2 {vr(t,2)}, v{t+2}, {sr(SWS,4)}, {soff} offen{SC}"]
def flag_store(soff, t):
    return [f"v_lshlrev_b32 v{t}, 21, v{VL16}", f"v_mov_b32 v{t+1}, s{sN}", f"buffer_store_dword v{t+1}, v{t}, {sr(SWS,4)}, {soff} offen{SC}"]
def f1_signal():
    return [[f"s_lshl_b32 s{sT+4}, s{sCB}, 4", f"s_add_u32 s{sT+4}, s{sT+4}, s{sRB}", f"s_lshl_b32 s{sT+4}, s{sT+4}, 5", f"s_add_u32 s{sT+4}, s{sT+4}, s{sA}",
             f"s_lshl_b32 s{sT+4}, s{sT+4}, 2", f"s_add_u32 s{sT+4}, s{sT+4}, {hx(WS_F1)}"] + flag_store(f"s{sT+4}", CF)]
def xs(name): return stamp(1) if opt("XS", "") == name else []
def take(lst, budget):
    t = 0
    for i, x in enumerate(lst):
        t += cost(x)
        if t > budget: return lst[:i], lst[i:]
    return lst, []
def helper(R, etype):
    er, ev = ext('V' if etype == 'V' else 'N', True)
    epi = EPI[etype](0) + EPI[etype](1)
    c = tr("body", 0) + er
    if R == 2: c += st_addr(TB + 8) + [f"ds_read_b128 {vr(EXTX,4)}, v{TB+8}"]
    if R == 3: c += [f"s_add_u32 s{sWOFF}, s{sWOFF}, 128"]
    c += wdma(4) + [mark("m1")]
    y1 = tr("body", 2) + [waitfor("m1", " lgkmcnt(0)")] + tr("body", 3) + ["s_barrier"]
    if R < 3:
        nxt = aim(2) if R == 1 else aim_next3("LH2" + etype)
        d = [nxt] + wdma(0) + wdma(1) + wdma(2) + [mark("m2")] + wdma(3)
        if R == 1:
            main = stats(etype == 'V') + [st_addr(VCA) + [f"ds_write_b128 v{VCA}, {vr(EXTX,4)}"]] + ev + epi + (o_marks(etype) if etype != 'H' else [])
            m1, m2 = take(main, opt("KA", 700))
            c += sched(m1, d[:23], dsp=70) + y1 + sched(m2, d[23:], dsp=70)
        else:
            m1, m2 = take(ev + epi, 760) if etype == 'H' else (ev + epi, [])
            c += m1 + [mark("st")] + d[:15] + y1 + d[15:23] + tr("body", 8) + [waitfor("st")] + xs("f1") + tr("body", 9) + f1_signal()
            c += sched(m2, d[23:], dsp=50)
        c += bias_ld(R + 1) + tr("body", 4) + [waitfor("m2", " lgkmcnt(0)")] + tr("body", 5) + ["s_barrier"]
    else:
        m0, m1 = take(ev + epi, opt("K0", 250)); m1, m2 = take(m1, opt("K1", 550)); m2, m3 = take(m2, opt("K2", 1000))
        c += m0 + f1_addr(True) + tr("body", 7) + m1 + kv_base(0)
        c += tr("body", 8) + poll_check("LH3p", PF, PA, f"s{sT+3}", 4) + xs("poll") + tr("body", 9) + y1
        c += sched(m2, first_kv(), dsp=30)
        c += tr("body", 4) + [waitfor("kv0")] + tr("body", 5) + ["s_barrier", "s_setprio 3"] + xs("T") + m3 + tr("body", 6)
    ab = opt("AB", "")
    if R < 3:
        c = flat(c)
        if "h" in ab: c = [x for x in c if not as_ins(x).text.startswith("ds_write")]
        if "s" in ab: c = [x for x in c if not as_ins(x).text.startswith("buffer_store_dwordx4")]
        if "e" in ab: c = [x for x in c if as_ins(x).kind != 'mfma']
        if "d" in ab: c = [x for x in c if not as_ins(x).text.endswith(" lds")]
    return c

def lane_setup(grp):
    t = TB + 8
    c = [f"v_bfe_u32 v{t}, v0, 2, 2", f"v_lshl_add_u32 v{t+1}, v{VH}, 3, v{t}", f"v_lshlrev_b32 v{t+1}, 7, v{t+1}",
         f"v_lshrrev_b32 v{t}, 1, v{t}", f"v_lshl_add_u32 v{t+1}, v{t}, 6, v{t+1}",
         f"v_bfe_u32 v{t}, v0, 4, 1", f"v_lshl_add_u32 v{t+1}, v{t}, 5, v{t+1}",
         f"v_and_b32 v{t}, 3, v0", f"v_lshl_add_u32 v{t}, v{t}, 3, v{t+1}"]
    if grp == 'A': c += [f"s_mov_b32 s{sCSB}, {hx(-U)}", f"s_add_u32 s{sDST}, s{sM4}, {U}", f"v_mov_b32 v{AONE}, 0x3f803f80", f"v_mov_b32 v{EXTX}, 0", f"v_mov_b32 v{EXTX+1}, 0"]
    else: c += [f"s_mov_b32 s{sCSB}, {4*U}", f"s_sub_u32 s{sDST}, s{sM4}, {4*U}"]
    c += [f"v_add_u32 v{VT[0]}, s{sDST}, v{t}", f"v_xor_b32 v{VT[1]}, 64, v{VT[0]}"]
    xa = VXA if grp == 'A' else TB + 4
    c += [f"v_and_b32 v{t}, 15, v0", f"v_xor_b32 v{t}, v{t}, v{VH}", f"v_lshlrev_b32 v{t}, 4, v{t}",
          f"v_lshl_add_u32 v{t}, v{VTOK}, 8, v{t}", f"s_mul_i32 s{sT}, s{sA}, {8192 + 64}", f"v_xor_b32 v{xa}, s{sT}, v{t}", f"v_mov_b32 v{GC}, {fl(GC2)}"]
    c += [f"v_mov_b32 v{t+1}, 0x3f803f80", f"v_and_b32 v{t}, 14, v0",
          f"v_cmp_eq_u32 vcc, 0, v{t}", f"v_cndmask_b32 v{CSA}, 0, v{t+1}, vcc", f"v_mov_b32 v{CSA+1}, v{CSA}",
          f"v_cmp_eq_u32 vcc, 4, v{t}", f"v_cndmask_b32 v{CSA+2}, 0, v{t+1}, vcc", f"v_mov_b32 v{CSA+3}, v{CSA+2}",
          f"v_and_b32 v{t}, 1, v0", f"v_mul_u32_u24 v{t}, 0xaaaa, v{t}", f"v_add_u32 v{CSI}, 0x4444, v{t}"]
    c += [f"v_mov_b32 v{r}, 0" for r in range(CSD[0], CSD[0]+8)]
    c += [f"s_lshl_b32 s{sT}, s{sRB}, 2", f"s_add_u32 s{sT}, s{sT}, s{sA}",
          f"s_lshr_b32 s{sT+1}, s{sT}, 1", f"s_mul_i32 s{sQKROW}, s{sT+1}, 2560", f"s_and_b32 s{sT+1}, s{sT}, 1",
          f"s_lshl_b32 s{sT+1}, s{sT+1}, 8", f"s_add_u32 s{sQKROW}, s{sQKROW}, s{sT+1}",
          f"s_mul_i32 s{sVOFF}, s{sT}, 1344", f"s_add_u32 s{sVOFF}, s{sVOFF}, {hx(WS_V)}",
          f"s_mul_i32 s{sHOFF}, s{sT}, {108*1024}", f"s_add_u32 s{sHOFF}, s{sHOFF}, {hx(WS_H)}",
          f"s_lshl_b32 s{sCT}, s{sCB}, 2", f"s_cmp_eq_u32 s{sCB}, 15", f"s_cselect_b32 s{sCT}, 48, s{sCT}"]
    if grp == 'B': c += [f"s_add_u32 s{sCT}, s{sCT}, 2"]
    return c
def ones_rows():
    t = TB + 8
    return [f"s_lshl_b32 s{sT}, s{sCB}, 7", f"s_sub_u32 s{sT}, s{sT}, {1280 - 19}", f"s_mul_i32 s{sT+1}, s{sT}, 3277", f"s_lshr_b32 s{sT+1}, s{sT+1}, 16",
            f"v_lshrrev_b32 v{t}, 2, v0", f"v_add_u32 v{t}, s{sT+1}, v{t}",
            f"v_mul_u32_u24 v{t+1}, 20, v{t}", f"s_add_u32 s{sT}, s{sT}, {128 - 19}", f"v_cmp_gt_u32 vcc, s{sT}, v{t+1}",
            f"v_mul_u32_u24 v{t}, {HS_V}, v{t}", f"v_and_b32 v{t+1}, 3, v0", f"v_mul_u32_u24 v{t+1}, 336, v{t+1}", f"v_add_u32 v{t}, v{t}, v{t+1}",
            f"v_mov_b32 v{t+1}, {hx(OOB)}", f"v_cndmask_b32 v{t}, v{t+1}, v{t}, vcc"] + [f"v_mov_b32 v{t+4+i}, 0x3f803f80" for i in range(4)] + [
            f"buffer_store_dwordx4 {vr(t+4,4)}, v{t}, {sr(SWS,4)}, s{sVOFF} offen offset:320{SC}"]

def o_marks(etype):
    t = VCA; M = TB + 4; u = sT + 4
    pre = [[f"s_mul_i32 s{u}, s{sCB}, 52", f"s_lshr_b32 s{u}, s{u}, 8", f"s_lshl_b32 s{u+5}, s{u}, 9", f"s_mul_i32 s{u}, s{u}, 5", f"s_sub_u32 s{u}, s{sCB}, s{u}",
            f"s_lshl_b32 s{u}, s{u}, 7", f"s_add_u32 s{u}, s{u}, 19", f"s_mul_i32 s{u+3}, s{u}, 3277", f"s_lshr_b32 s{u+3}, s{u+3}, 16",
            f"s_add_u32 s{u}, s{u}, 128", f"s_mul_i32 s{u+4}, s{u}, 3277", f"s_lshr_b32 s{u+4}, s{u+4}, 16", f"s_sub_u32 s{u+4}, s{u+4}, 1",
            f"s_lshl2_add_u32 s{u}, s{sRB}, s{sA}", f"s_mul_i32 s{u}, s{u}, 40960", f"s_add_u32 s{u+5}, s{u+5}, s{u}",
            f"s_add_u32 s{u+5}, s{u+5}, {hx(WS_O + (32768 - 1024 if etype == 'V' else 0))}"]] + [f"v_mov_b32 v{M+i}, -1" for i in range(4)]
    sh, per, n = (8, 4, 2) if etype == 'V' else (9, 2, 4)
    st = []
    for k in range(n):
        st += [[f"v_lshrrev_b32 v{M-1}, {sh}, v{VL16}", f"s_add_u32 s{u}, s{u+3}, {per*k}", f"v_add_u32 v{M-1}, s{u}, v{M-1}", f"v_min_u32 v{M-1}, s{u+4}, v{M-1}",
                f"v_and_b32 v{M-2}, {hx((1 << sh) - 1)}, v{VL16}", f"v_lshl_add_u32 v{M-1}, v{M-1}, {8 if etype == 'V' else 10}, v{M-2}",
                f"buffer_store_dwordx4 {vr(M,4)}, v{M-1}, {sr(SWS,4)}, s{u+5} offen{SC}"]]
    return pre + st

def b_round0():
    c = (tr("st", 1) + xdma(0) + tr("st", 2) + PRE_W + aim(0) + wdma(0, WSL0[0]) if not opt("WFIRST") else tr("st", 1) + PRE_W + aim(0) + tr("st", 2) + wdma(0, WSL0[0]) + xdma(0)) + [mark("d0")] + tr("st", 3) + prologue2() + lane_setup('B') + tr("st", 4)
    c += [f"s_setprio {opt('BP0', 0)}"] + bias_ld(1)
    c += xdma(1) + wdma(1, WSL0[1]) + [mark("d1")] + stamp(1) + tr("st", 5) + ["s_waitcnt lgkmcnt(0)", f"s_add_u32 s{sN}, s{sN}, 1"] + tr("st", 6)
    for s in range(5):
        c += tr("r0", 2*s) + [waitfor(f"d{s}", " lgkmcnt(0)")] + tr("r0", 2*s+1) + (tr("st", 7) if s == 0 else []) + ["s_barrier"]
        if s == 0: c += stamp(2) + tr("st", 8)
        side = xreads(s, TB + 5)
        if s < 3: d = xdma(s + 2) + wdma(s + 2, WSL0[s + 2]) + [mark(f"d{s+2}")]
        if s == 3: d = [f"s_add_u32 s{sWOFF}, s{sWOFF}, 128"] + wdma(0) + [mark("m1")] + wdma(1) + wdma(2) + [mark("m2")]
        if s == 4: d = wdma(3)
        c += sched([], d, side, dsp=24)
    c += aim(2) + [waitfor("m2", " lgkmcnt(0)"), "s_barrier"]
    return fin(c + tr("r0", 10))

RL = 112
def relayout():
    t = TB; u = sT; d0, d1, ks, lim = sR, sCT, sXOFF, sST
    c = [f"v_and_b32 v{t}, 0x1ff, v{VT[0]}", f"s_and_b32 s{u+2}, s2, 7", f"s_cmp_lt_u32 s{u+2}, 6",
         f"s_cselect_b32 s{u}, 16, 20", f"s_cselect_b32 s{u+1}, 4, 40", f"s_cselect_b32 s{u+4}, 8, 20", f"s_cselect_b32 s{u+5}, 16, 80", f"s_cselect_b32 s{u+6}, 256, 16",
         f"s_mul_i32 s{u+5}, s{u+5}, s{sA}", f"s_add_u32 s{u+5}, s{u+5}, s{u+6}",
         f"s_lshl_b32 s{u}, s{u}, 7", f"s_lshl_b32 s{u+1}, s{u+1}, 7", f"s_lshl_b32 s{u+4}, s{u+4}, 7", f"s_lshl_b32 s{u+5}, s{u+5}, 7",
         f"s_mul_i32 s{u+6}, s{u}, s{sA}", f"s_lshl_b32 s{u+6}, s{u+6}, 2",
         f"v_lshl_add_u32 v{t+1}, v{VH}, 9, v{t}", f"v_add_u32 v{t+1}, s{u+6}, v{t+1}"]
    for k in range(4):
        c += [f"v_xor_b32 v{t+2}, 64, v{t+1}"]
        for g in range(2):
            c += [f"ds_read_b64_tr_b16 {vr(RL+8*k+4*g,2)}, v{t+1+g}", f"ds_read_b64_tr_b16 {vr(RL+8*k+4*g+2,2)}, v{t+1+g} offset:1024"]
        c += [f"v_add_u32 v{t+1}, s{u}, v{t+1}"]
    c += [f"v_mad_u32_u24 v{t+1}, v{VH}, s{u+1}, v{t}", f"v_add_u32 v{t+1}, s{u+5}, v{t+1}",
          f"v_add_u32 v{t+2}, s{u+4}, v{t+1}", f"v_xor_b32 v{t+3}, 64, v{t+1}", f"v_xor_b32 v{t+4}, 64, v{t+2}"]
    c += [f"ds_read_b64_tr_b16 {vr(RL+32+2*i,2)}, v{t+1+i}" for i in range(4)]
    c += [f"s_cmp_lt_u32 s{u+2}, 6", f"s_cselect_b32 s{lim}, 108, 40", f"s_cselect_b32 s{u+4}, 0, {hx(WS_WOF - WS_W2F)}",
          f"s_cselect_b32 s{u}, 20, 16", f"s_cselect_b32 s{u+1}, 20, 4", f"s_cselect_b32 s{u+5}, 16, 32", f"s_cselect_b32 s{u+6}, 0, 6",
          f"s_sub_u32 s{u+2}, s{u+2}, s{u+6}", f"s_mul_i32 s{u}, s{u}, s{u+2}", f"s_lshl2_add_u32 s{ks}, s{sA}, s{u}",
          f"s_mul_i32 s{u+1}, s{u+1}, s{u+2}", f"s_add_u32 s{u+5}, s{u+5}, s{u+1}", f"s_add_u32 s{u+5}, s{u+5}, s{sA}",
          f"s_mul_i32 s{ks}, s{ks}, 5120", f"s_mul_i32 s{u+5}, s{u+5}, 5120", f"s_mul_i32 s{lim}, s{lim}, 5120", f"s_add_u32 s{u+4}, s{u+4}, {hx(WS_W2F)}"]
    for g, d in ((0, d0), (1, d1)):
        c += [f"s_lshl1_add_u32 s{u}, s{sTASK}, {g}", f"s_mul_i32 s{u+1}, s{u}, 52", f"s_lshr_b32 s{u+1}, s{u+1}, 8",
              f"s_mul_i32 s{u+2}, s{u+1}, 5", f"s_sub_u32 s{u}, s{u}, s{u+2}", f"s_lshl_b32 s{u}, s{u}, 10",
              f"s_mul_i32 s{u+1}, s{u+1}, s{lim}", f"s_add_u32 s{d}, s{u}, s{u+1}", f"s_add_u32 s{d}, s{d}, s{u+4}"]
    c += ["s_waitcnt lgkmcnt(0)"]
    for k in range(5):
        if k == 4: c += [f"s_mov_b32 s{ks}, s{u+5}"]
        c += [f"s_cmp_lt_u32 s{ks}, s{lim}", f"s_cbranch_scc0 LB_rs{k}", f"s_add_u32 s{u}, s{ks}, s{d0}", f"s_add_u32 s{u+1}, s{ks}, s{d1}",
              f"buffer_store_dwordx4 {vr(RL+8*k,4)}, v{VL16}, {sr(SWS,4)}, s{u} offen{SC}",
              f"buffer_store_dwordx4 {vr(RL+8*k+4,4)}, v{VL16}, {sr(SWS,4)}, s{u+1} offen{SC}", f"LB_rs{k}:", f"s_add_u32 s{ks}, s{ks}, 5120"]
    return c

def prologue():
    t = TB + 8; j = sT + 3
    c = [f"s_load_dwordx2 {sr(SX,2)}, s[0:1], 0", f"s_load_dwordx2 {sr(sWQ,2)}, s[0:1], 8", f"s_load_dwordx2 {sr(sW1,2)}, s[0:1], 32",
         "s_cmp_ge_u32 s2, 256", "s_cbranch_scc1 L_end"] + code_prefetch() + [
         f"v_lshrrev_b32 v1, 6, v0", f"v_and_b32 v0, 63, v0", f"v_readfirstlane_b32 s{sW}, v1",
         f"s_and_b32 s{sRB}, s2, 3", f"s_bfe_u32 s{sCG}, s2, 0x20003", f"s_lshl2_add_u32 s{sRB}, s{sRB}, s{sCG}",
         f"s_lshr_b32 s{sT+1}, s2, 5", f"s_bfe_u32 s{sT+2}, s2, 0x10002", f"s_lshl1_add_u32 s{sCB}, s{sT+1}, s{sT+2}",
         f"s_and_b32 s{sA}, s{sW}, 3", f"s_lshl2_add_u32 s{sT}, s{sRB}, s{sA}", f"s_mul_i32 s{sXOFF}, s{sT}, {32*1280}",
         ] + {0: [f"s_mov_b32 s{sSG}, 0"], 1: [f"s_add_u32 s{sSG}, s{sRB}, s{sCB}"], 2: [f"s_and_b32 s{sSG}, s2, 7"],
              3: [f"s_add_u32 s{sSG}, s{sCG}, s{sT+1}", f"s_and_b32 s{sSG}, s{sSG}, 1", f"s_and_b32 s{sT}, s2, 7", f"s_lshl1_add_u32 s{sSG}, s{sSG}, s{sT}"],
              4: [f"s_add_u32 s{sSG}, s{sCG}, s{sT+1}", f"s_and_b32 s{sSG}, s{sSG}, 1", f"s_and_b32 s{sT}, s2, 7", f"s_add_u32 s{sSG}, s{sSG}, s{sT}"],
              5: [f"s_add_u32 s{sSG}, s{sCG}, s{sT+1}", f"s_and_b32 s{sSG}, s{sSG}, 1", f"s_lshl_b32 s{sSG}, s{sSG}, 1"]}[opt("ROT", 1)] + [
         f"s_mul_i32 s{sT}, s{sSG}, 52", f"s_lshr_b32 s{sT}, s{sT}, 8", f"s_mul_i32 s{sT}, s{sT}, 5",
         f"s_sub_u32 s{sSG}, s{sSG}, s{sT}"] + [
         f"s_mov_b32 s{SX+2}, 2621440", f"s_mov_b32 s{SX+3}, 0x00020000",
         f"s_cmp_lt_u32 s{sW}, 4", "s_cbranch_scc1 LA",
         f"v_lshrrev_b32 v{t}, 4, v0", f"v_xor_b32 v{t+1}, v{t}, v0", f"v_and_b32 v{t+1}, 15, v{t+1}", f"v_lshlrev_b32 v{t+1}, 4, v{t+1}",
         f"v_mul_u32_u24 v{t}, 1280, v{t}", f"v_add_u32 v{VX}, v{t}, v{t+1}"]
    for q in range(1, 4):
        c += [f"v_xor_b32 v{VX+q}, {64*q + 4096*q}, v{VX}"]
    c += tr("st", 0) + ["s_waitcnt lgkmcnt(0)"]
    return fix_hazards(c)
def prologue2():
    j = sT + 3
    c = [f"s_load_dwordx2 {sr(SWS,2)}, s[0:1], 80", f"s_load_dwordx2 {sr(SB1,2)}, s[0:1], 40", f"s_load_dwordx2 {sr(sWO,2)}, s[0:1], 16",
         f"s_load_dwordx2 {sr(sW2,2)}, s[0:1], 48", f"s_load_dwordx2 {sr(SB2,2)}, s[0:1], 56", f"s_load_dwordx2 {sr(SOUT,2)}, s[0:1], 64",
         f"v_lshrrev_b32 v{VH}, 5, v0", f"v_and_b32 v{VTOK}, 31, v0", f"s_lshr_b32 s{j}, s2, 3", f"s_and_b32 s{sT}, s2, 7",
         f"s_lshr_b32 s{sT+1}, s2, 5", f"s_lshl3_add_u32 s{sRTILE}, s{sT}, s{sT+1}",
         f"s_lshr_b32 s{sT+2}, s2, 6", f"s_lshl2_add_u32 s{sHEAD}, s{sT}, s{sT+2}", f"s_and_b32 s{sQB}, s{j}, 7",
         f"s_sub_u32 s{sTASK}, s{j}, 20",
         f"s_lshl_b32 s{sHU}, s{sCB}, 1", f"s_add_u32 s{sT}, s{sCB}, 9", f"s_cmp_lt_u32 s{sCB}, 9", f"s_cselect_b32 s{sHU}, s{sHU}, s{sT}",
         f"s_cselect_b32 s{sNR}, 4, 3", f"s_cmp_eq_u32 s{sCB}, 15", f"s_cselect_b32 s{sHU}, 26, s{sHU}"]
    for k in range(1, 5): c += [f"s_add_u32 s{sSG+k}, s{sSG+k-1}, 1", f"s_cmp_eq_u32 s{sSG+k}, 5", f"s_cselect_b32 s{sSG+k}, 0, s{sSG+k}"]
    for d, size in ((SWS, WS_SIZE), (SB1, 0), (SB2, 1280), (SOUT, 2621440)):
        c += [f"s_mov_b32 s{d+2}, {hx(size)}", f"s_mov_b32 s{d+3}, 0x00020000"]
    ep = Ins("s_nop 0"); ep.text = f"s_load_dword s{sN}, {sr(sT+10,2)}, 0"
    c = [(lambda i: (setattr(i, 'kind', 'salu') if i.kind == 'smem' else None, i)[1])(as_ins(x)) for x in c]
    return c + ["s_waitcnt lgkmcnt(0)", f"s_add_u32 s{sT+10}, s{SWS}, {hx(WS_EP)}", f"s_addc_u32 s{sT+11}, s{SWS+1}, 0", ep]
PRE_W = [f"v_lshlrev_b32 v{VL16}, 4, v0", f"s_lshl_b32 s{sM4}, s{sA}, 12", f"s_add_u32 s{sM4}, s{sM4}, {4*U}", f"s_mov_b32 s{SWD+3}, 0x00020000"]
def touch(ptr, nbytes):
    n = -(-nbytes // 128 // 1024); t = VCA; d = sT + 6
    return [f"s_mov_b32 s{d}, s{ptr}", f"s_mov_b32 s{d+1}, s{ptr+1}", f"s_mov_b32 s{d+2}, {nbytes}", f"s_mov_b32 s{d+3}, 0x00020000",
            f"s_lshl_b32 s{sT}, s2, 2", f"s_add_u32 s{sT}, s{sT}, s{sA}", f"s_mul_i32 s{sT}, s{sT}, {n*128}",
            f"v_min_u32 v{t}, {16*(n-1)}, v{VL16}", f"v_lshl_add_u32 v{t}, v{t}, 3, s{sT}", f"buffer_load_dword v{JUNK}, v{t}, {sr(d,4)}, 0 offen"]
def page_touch():
    c = [f"s_lshl_b32 s{sT}, s{sA}, 23", f"s_add_u32 s{sT+6}, s{SWS}, s{sT}", f"s_addc_u32 s{sT+7}, s{SWS+1}, 0"]
    for k in range(8):
        c += [f"s_load_dword s101, {sr(sT+6,2)}, 0", f"s_add_u32 s{sT+6}, s{sT+6}, 0x100000", f"s_addc_u32 s{sT+7}, s{sT+7}, 0"]
    c += [f"s_mul_i32 s{sT}, s{sA}, 0xa0000", f"s_add_u32 s{sT+6}, s{SOUT}, s{sT}", f"s_addc_u32 s{sT+7}, s{SOUT+1}, 0", f"s_load_dword s101, {sr(sT+6,2)}, 0"]
    return c
def code_prefetch():
    return [f"s_getpc_b64 s[{sT+6}:{sT+7}]", "L_pc:", f"s_lshr_b32 s{sT}, s2, 3", f"v_and_b32 v2, 0x1e0, v0", f"v_add_lshl_u32 v2, v2, s{sT}, 7",
            f"v_min_u32 v2, L_last-L_pc-4, v2", f"global_load_dword v{JUNK}, v2, s[{sT+6}:{sT+7}]"]

S = {(0,0): 16, (1,0): 32, (0,1): 48, (1,1): 64}
O = [80, 96]; Q = [112, 118]; K = [124, 130]; V = [136, 144]; IDX = 152
AK0, AK1, AK2, AV, AVM, VVG = 153, 154, 155, 156, 157, 158
sIT, sDK, sDV = sT + 2, sT + 6, sT + 7
T = 2
PAT = opt("PAT", "CkeeDkweeAeeeBeeeeeeeee,CveeDveeAeeeBeeeeeeeee").split(",")
WOF = 124; RED = 16; OF = [64 + 4*i for i in range(10)]; GR = 104; PD = 116; XV = 244; IA = 250; IG = 252; VL2 = 254; SA = 4; PAD = 3

def qk(dst, kf, q):
    return (f"v_mfma_f32_32x32x16_bf16 {vr(dst,16)}, {vr(kf,4)}, {vr(Q[q],4)}, 0",
            f"v_mfma_f32_32x32x8_bf16 {vr(dst,16)}, {vr(kf+4,2)}, {vr(Q[q]+4,2)}, {vr(dst,16)}")
def pv(q, vf, s):
    return (f"v_smfmac_f32_32x32x32_bf16 {vr(O[q],16)}, {vr(vf,4)}, {vr(s,8)}, v{IDX}",
            f"v_smfmac_f32_32x32x32_bf16 {vr(O[q],16)}, {vr(vf+4,4)}, {vr(s+8,8)}, v{IDX}")
def kread(kt):
    kt &= 15
    f = K[kt & 1]
    return [f"ds_read2st64_b64 {vr(f,4)}, v{AK1 if kt & 1 else AK0} offset0:{5*(kt>>1)} offset1:{5*(kt>>1)+1}",
            f"ds_read_b32 v{f+4}, v{AK2} offset:{(kt>>1)*2560 + (kt&1)*256}"]
def vread(kt):
    f = V[kt & 1]; a = AV
    kt &= 15
    return [f"ds_read_b128 {vr(f,4)}, v{a} offset:{kt*1344}", f"ds_read_b128 {vr(f+4,4)}, v{a} offset:{kt*1344+672}"]
def loop_body(last=False, pat=PAT):
    c = []
    extra = []
    if last:
        cur = []
        for x in [y.replace(f"s{sT+1}", f"s{sT+9}").replace(f"s{sT}", f"s{sT+8}") for y in wo_loads(0, 2)] + item_loads():
            cur.append(x)
            if as_ins(x).kind == 'vmem' or len(cur) == 4: extra.append(cur); cur = []
    for i in range(32):
        kt, q = divmod(i, 2); ktp, qp = divmod(i - 1, 2)
        sc = S[(q, kt & 1)]
        A, B = qk(S[(q, (kt + 1) & 1)], K[(kt + 1) & 1], q)
        C, D = pv(qp, V[ktp & 1], S[(qp, ktp & 1)])
        kf = kread(kt + 2); vf = vread(kt + 1)
        e = f = 0; seen = ""
        for ch in pat[q]:
            if ch in 'AB':
                if not (last and kt == 15): c.append(A if ch == 'A' else B)
                if ch == 'B' and extra: c += extra.pop(0)
            elif ch == 'C': c.append(C)
            elif ch == 'D': c.append(D)
            elif ch == 'e': c.append(f"v_exp_f32 v{sc+e}, v{sc+e}"); e += 1
            elif ch == 'k':
                if kt == 14 and len(kf) == 2:
                    if not last: c += [f"v_add_u32 v{r}, s{sDK}, v{r}" for r in (AK0, AK1, AK2)] + ["s_waitcnt lgkmcnt(2)"]
                    c += ["s_barrier"]
                if kt == 4 and len(kf) == 2 and not last:
                    c += ["s_waitcnt vmcnt(0)", flag_store2(f"s{sT+10}", 160)[3]]
                x = kf.pop(0)
                if not (last and kt >= 14): c.append(x); f += 1
            elif ch == 'v':
                if q == 0: assert ("C" if len(vf) == 2 else "D") in seen
                if kt == 15 and len(vf) == 2 and not last: c += [f"v_mad_i32_i24 v{AV}, v{AVM}, s{sDV}, v{AV}"]
                x = vf.pop(0)
                if not (last and kt == 15): c.append(x); f += 1
            elif ch == 'w': c.append(f"s_waitcnt lgkmcnt({f})")
            seen += ch
        assert e == 16
    assert not extra
    ab = opt("LAB", "")
    if "B" in ab: c = [x for x in c if "32x32x8" not in as_ins(x).text]
    if "D" in ab: c = [x for i, x in enumerate(c) if not ("smfmac" in as_ins(x).text and any(f"v[{v+4}:" in as_ins(x).text for v in V))]
    if "E" in ab: c = [x for i, x in enumerate(c) if not (as_ins(x).text.startswith("v_exp") and i % 4 == 0)]
    return c
def shift_split(q, m):
    t = T + 6
    return [f"v_sub_f32 v{m}, 0, v{m}",
            f"v_cvt_pk_bf16_f32 v{t}, v{m}, v{m}", f"v_and_b32 v{t}, 0xffff0000, v{t}", f"v_sub_f32 v{t}, v{m}, v{t}",
            f"v_cvt_pk_bf16_f32 v{t+1}, v{m}, v{t}", f"v_and_b32 v{t+2}, 0xffff0000, v{t+1}", f"v_sub_f32 v{t}, v{t}, v{t+2}",
            f"v_cvt_pk_bf16_f32 v{t}, v{t}, 0",
            f"v_cmp_eq_u32 vcc, 0, v{VH}", f"v_cndmask_b32 v{Q[q]+5}, v{t}, v{t+1}, vcc"]
def max16(d, s, acc=False):
    c = [f"v_max3_f32 v{d}, v{s}, v{s+1}, v{d if acc else s}"]
    for j in range(2, 16, 2): c.append(f"v_max3_f32 v{d}, v{s+j}, v{s+j+1}, v{d}")
    return c
def xhalf_max(d):
    return [f"v_mov_b32 v{d+1}, v{d}", f"v_permlane32_swap_b32 v{d}, v{d+1}", f"v_max_f32 v{d}, v{d}, v{d+1}"]

def attn():
    c = [f"v_lshrrev_b32 v{T}, 4, v{VTOK}", f"v_lshlrev_b32 v{T}, 3, v{T}", f"v_and_b32 v{T+1}, 15, v{VTOK}",
         f"v_lshl_add_u32 v{T+2}, v{T+1}, 4, v{T}",
         f"v_lshrrev_b32 v{T+3}, 1, v{T+2}", f"v_xor_b32 v{T+3}, v{T+3}, v{T+2}", f"v_and_b32 v{T+3}, 64, v{T+3}",
         f"v_mul_u32_u24 v{T+3}, 3, v{T+3}", f"v_xor_b32 v{AK0}, v{T+3}, v{T+2}",
         f"v_add_u32 v{AK0}, {KPOS[0]}, v{AK0}", f"v_lshl_add_u32 v{AK2}, v{VH}, 2, v{AK0}", f"v_add_u32 v{AK2}, 2048, v{AK2}",
         f"v_lshl_add_u32 v{AK0}, v{VH}, 10, v{AK0}", f"v_add_u32 v{AK1}, 256, v{AK0}",
         f"s_mul_i32 s{sT}, s{sA}, 2560", f"s_add_u32 s{sT}, s{sT}, {L_Q}", f"v_add_u32 v{T+2}, s{sT}, v{T+2}",
         f"v_lshl_add_u32 v{T+3}, v{VH}, 2, v{T+2}", f"v_lshl_add_u32 v{T+2}, v{VH}, 10, v{T+2}",
         f"v_min_u32 v{AV}, 20, v{VTOK}", f"v_lshlrev_b32 v{AV}, 4, v{AV}", f"v_mul_u32_u24 v{T}, 336, v{VH}", f"v_add_u32 v{VVG}, v{AV}, v{T}",
         f"v_mov_b32 v{T}, 0x011fffff", f"v_lshrrev_b32 v{T}, v{VTOK}, v{T}", f"v_and_b32 v{AVM}, 1, v{T}",
         f"s_mov_b32 s{sT}, {hx(VPOS[0] - 0x30000)}", f"v_add_u32 v{AV}, 0x30000, v{VVG}", f"v_mad_i32_i24 v{AV}, v{AVM}, s{sT}, v{AV}",
         f"v_mov_b32 v{IDX}, 0xdddddddd", f"v_mov_b32 v{K[0]+5}, 0x3f803f80", f"v_mov_b32 v{K[1]+5}, 0x3f803f80",
         f"v_mov_b32 v{Q[0]+5}, 0", f"v_mov_b32 v{Q[1]+5}, 0"]
    c += [f"v_mov_b32 v{r}, 0" for r in range(V[1], V[1]+8)]
    c += [f"v_mfma_f32_32x32x8_bf16 {vr(r,16)}, {vr(V[1],2)}, {vr(V[1],2)}, 0" for r in (O[0], O[1], S[(1,1)])]
    c += ["s_setprio 2"] + stamp(5) + tr("att", 0)
    c += kread(0)
    for q in range(2):
        c += [f"ds_read_b64 {vr(Q[q],2)}, v{T+2} offset:{256*q}", f"ds_read_b64 {vr(Q[q]+2,2)}, v{T+2} offset:{256*q+512}",
              f"ds_read_b32 v{Q[q]+4}, v{T+3} offset:{256*q+2048}"]
    c += kread(1) + vread(0)
    for q in range(2): c += list(qk(S[(q,0)], K[0], q))
    for q in range(2): c += max16(T + 2*q, S[(q,0)]) + xhalf_max(T + 2*q) + shift_split(q, T + 2*q)
    for q in range(2): c += list(qk(S[(q,0)], K[0], q))
    c += f2_addr() + [f"s_mov_b32 s{sT+10}, s{sT}"] + flag_store2(f"s{sT+10}", 160)[:3]
    c += [f"s_mov_b32 s{sIT}, 0", f"s_mov_b32 s{sDK}, {KCH}", f"s_mov_b32 s{sDV}, {hx(VPOS[1] - VPOS[0])}", "s_waitcnt lgkmcnt(0)"]
    c = fin(c)
    body = loop_body()
    upd = [f"s_add_u32 s{sIT}, s{sIT}, 1", f"s_cmp_eq_u32 s{sIT}, 1", f"s_cselect_b32 s{sDK}, {hx(-4*KCH)}, 0", f"s_cselect_b32 s{sDV}, 0, {VPOS[3] - 2*VPOS[2]}",
           f"s_add_u32 s{sDK}, s{sDK}, {KCH}", f"s_add_u32 s{sDV}, s{sDV}, {VPOS[2]}",
           f"s_cmp_lt_u32 s{sIT}, 4", "s_cbranch_scc1 LA_loop"]
    two = [as_ins(x) for x in body + upd + body]
    assert opt("LAB", "") or len(fix_hazards(fix_waits(two), c[-14:])) == len(two), "attention loop needs extra waits/pads"
    c += tr("att", 1) + [".p2align 6", "LA_loop:"] + body + upd + stamp(6) + tr("att", 2)
    C, D = pv(1, V[1], S[(1,1)])
    e = ["s_waitcnt lgkmcnt(0)", C, D,
         f"s_lshl_b32 s{sT}, s{sQB}, 3", f"s_lshl_b32 s{sT+1}, s{sA}, 1", f"s_add_u32 s{sT}, s{sT}, s{sT+1}",
         f"s_mul_i32 s{sT+10}, s{sT}, 40960", f"s_add_u32 s{sT+10}, s{sT+10}, {hx(WS_O)}",
         f"s_lshl_b32 s{sT+11}, s{sHEAD}, 10", f"s_add_u32 s{sT+11}, s{sT+11}, s{sT+10}",
         f"s_lshl_b32 s{sT}, s{sHEAD}, 8", f"s_add_u32 s{sT+10}, s{sT+10}, s{sT}", f"s_add_u32 s{sT+10}, s{sT+10}, 32768",
         ] + f3_addr(sT + 9) + [
         "LA_fin:", f"v_cmp_eq_u32 vcc, 0, v{VH}",
         f"v_bfe_u32 v{T+2}, v{VL16}, 8, 1", f"v_mul_u32_u24 v{T+2}, {40960 - 256}, v{T+2}", f"v_add_u32 v{T+2}, v{T+2}, v{VL16}", f"v_lshl_add_u32 v{T+2}, v{VH}, 30, v{T+2}"]
    for q in range(2):
        e += [f"v_cndmask_b32 v{T+q}, v{O[q]+8}, v{O[q]+12}, vcc", f"v_rcp_f32 v{T+4}, v{T+q}"]
        e += [f"v_mul_f32 v{16+12*q+j}, v{T+4}, v{O[q]+j}" for j in range(12)]
        P = [48+4*q, 49+4*q, 50+4*q, 51+4*q, 56+2*q, 57+2*q]
        e += [f"v_cvt_pk_bf16_f32 v{P[j]}, v{16+12*q+2*j}, v{16+12*q+2*j+1}" for j in range(6)]
        e += [f"v_and_b32 v{16+12*q+j}, 0x7f807f80, v{P[j]}" for j in range(6)]
        e += [f"v_pk_max_u16 v{16+12*q}, v{16+12*q}, v{16+12*q+j}" for j in range(1, 6)]
    e += ["v_permlane16_swap_b32 v56, v58", "v_permlane16_swap_b32 v57, v59", f"v_pk_max_u16 v16, v16, v28", f"v_add_u32 v16, 0x00800080, v16", f"v_and_b32 v16, 0x80008000, v16",
          f"v_min_f32 v{T+3}, v{T}, v{T+1}", f"v_add_f32 v{T}, v{T}, v{T+1}", f"v_cmp_eq_u32 s[{sT+6}:{sT+7}], 0, v16",
          f"v_cmp_gt_f32 vcc, 0x7f000000, v{T}", f"s_and_b64 s[{sT+4}:{sT+5}], vcc, s[{sT+6}:{sT+7}]", f"v_cmp_lt_f32 vcc, 0x35800000, v{T+3}",
          f"s_and_b64 vcc, vcc, s[{sT+4}:{sT+5}]", f"s_cmp_eq_u64 vcc, exec", f"s_cselect_b32 s{sT+3}, 5, s{sT+2}" if not opt("FORCESLOW") else f"s_mov_b32 s{sT+3}, s{sT+2}", f"s_cmp_eq_u32 s{sT+3}, 4",
          "s_cbranch_scc1 LA_slow" if not opt("LAB", "") else "s_nop 0"]
    e += [f"buffer_store_dwordx4 v[48:51], v{VL16}, {sr(SWS,4)}, s{sT+11} offen{SC}", f"s_add_u32 s{sT}, s{sT+11}, 40960",
          f"buffer_store_dwordx4 v[52:55], v{VL16}, {sr(SWS,4)}, s{sT} offen{SC}",
          f"buffer_store_dwordx4 v[56:59], v{T+2}, {sr(SWS,4)}, s{sT+10} offen{SC}"]
    e += [f"buffer_store_dword v160, v162, {sr(SWS,4)}, s{sT+9} offen{SC}"]
    wo = [y.replace(f"s{sT+1}", f"s{sT+9}").replace(f"s{sT}", f"s{sT+8}") for y in wo_loads(0, 2)]
    e += stamp(7) + ["s_setprio 0"] + wo[:20] + item_loads() + p3_setup() + sched(g_items(), wo[20:], dsp=50) + ["s_barrier"]
    c += fin(e, pre=body[-12:] + upd) + p3_gemm(0, 2, "L_p3a") + ["s_branch L_p3j"]
    return c + slow_path()

def f3_addr(d):
    return [f"s_lshl_b32 s{d}, s{sQB}, 2", f"s_add_u32 s{d}, s{d}, s{sA}", f"s_lshl_b32 s{d}, s{d}, 5", f"s_add_u32 s{d}, s{d}, s{sHEAD}",
            f"s_lshl_b32 s{d}, s{d}, 7", f"s_add_u32 s{d}, s{d}, {hx(WS_F3)}"]
def f2_addr():
    return [f"s_lshl_b32 s{sT}, s{sRB}, 2", f"s_add_u32 s{sT}, s{sT}, s{sA}", f"s_lshl_b32 s{sT}, s{sT}, 4", f"s_add_u32 s{sT}, s{sT}, s{sCB}",
            f"s_lshl_b32 s{sT}, s{sT}, 6", f"s_and_b32 s{sT+1}, s{sW}, 4", f"s_add_u32 s{sT}, s{sT}, s{sT+1}", f"s_lshl_b32 s{sT}, s{sT}, 1", f"s_add_u32 s{sT}, s{sT}, {hx(WS_F2)}"]
def fr_addr():
    return [f"s_and_b32 s{sT}, s2, 7", f"s_lshl3_add_u32 s{sT}, s{sTASK}, s{sT}", f"s_lshl_b32 s{sT}, s{sT}, 5", f"s_add_u32 s{sT}, s{sT}, s{sA}",
            f"s_lshl2_add_u32 s{sT}, s{sT}, {hx(WS_FR)}"]

def slow_path():
    kb, vb, i = sT + 4, sT + 5, sT + 6
    kf = K[0]; vf = V[0]
    def kload():
        return [f"s_lshr_b32 s{sT}, s{i}, 1", f"s_mul_i32 s{sT}, s{sT}, 2560", f"s_and_b32 s{sT+1}, s{i}, 1", f"s_lshl_b32 s{sT+1}, s{sT+1}, 8",
                f"s_add_u32 s{sT}, s{sT}, s{sT+1}", f"s_add_u32 s{sT}, s{sT}, s{kb}",
                f"buffer_load_dwordx2 {vr(kf,2)}, v{AK0}, {sr(SWS,4)}, s{sT} offen{SC}",
                f"buffer_load_dwordx2 {vr(kf+2,2)}, v{AK0}, {sr(SWS,4)}, s{sT} offen offset:512{SC}",
                f"buffer_load_dword v{kf+4}, v{AK2}, {sr(SWS,4)}, s{sT} offen{SC}"]
    c = ["LA_slow:",
         f"s_mul_i32 s{kb}, s{sHEAD}, {HS_QK}", f"s_add_u32 s{kb}, s{kb}, {hx(WS_K)}",
         f"s_mul_i32 s{vb}, s{sHEAD}, {HS_V}", f"s_add_u32 s{vb}, s{vb}, {hx(WS_V)}",
         f"v_subrev_u32 v{AK0}, {KPOS[0]}, v{AK0}", f"v_subrev_u32 v{AK2}, {KPOS[0]}, v{AK2}",
         f"v_mov_b32 v{Q[0]+5}, 0", f"v_mov_b32 v{Q[1]+5}, 0",
         f"v_mov_b32 v{T}, 0xff800000", f"v_mov_b32 v{T+2}, 0xff800000", f"s_mov_b32 s{i}, 0"]
    l1 = ["LA_s1:"] + kload()
    for q in range(2): l1 += list(qk(S[(q,0)], kf, q))
    for q in range(2): l1 += max16(T + 2*q, S[(q,0)], acc=True)
    l1 += [f"s_add_u32 s{i}, s{i}, 1", f"s_cmp_lt_u32 s{i}, 64", "s_cbranch_scc1 LA_s1"]
    mid = []
    for q in range(2): mid += xhalf_max(T + 2*q) + shift_split(q, T + 2*q)
    mid += [f"v_mov_b32 v{r}, 0" for r in range(O[0], O[0]+32)] + [f"s_mov_b32 s{i}, 0"]
    l2 = ["LA_s2:"] + kload()
    l2 += [f"s_mul_i32 s{sT}, s{i}, 1344", f"s_add_u32 s{sT}, s{sT}, s{vb}",
           f"buffer_load_dwordx4 {vr(vf,4)}, v{VVG}, {sr(SWS,4)}, s{sT} offen{SC}",
           f"buffer_load_dwordx4 {vr(vf+4,4)}, v{VVG}, {sr(SWS,4)}, s{sT} offen offset:672{SC}"]
    for q in range(2): l2 += list(qk(S[(q,0)], kf, q))
    for q in range(2):
        l2 += [f"v_exp_f32 v{S[(q,0)]+j}, v{S[(q,0)]+j}" for j in range(16)]
        l2 += list(pv(q, vf, S[(q,0)]))
    l2 += [f"s_add_u32 s{i}, s{i}, 1", f"s_cmp_lt_u32 s{i}, 64", "s_cbranch_scc1 LA_s2",
           f"s_mov_b32 s{sT+2}, 5", "s_nop 15", "s_branch LA_fin"]
    return fin(c + l1 + mid + l2)

GA = 16; FB = 96; NBUF = opt("NBUF", 5)
def gload(buf, sa, sb):
    f = FB + 24 * buf
    c = [f"buffer_load_dwordx4 {vr(f,4)}, v{VL16}, {sr(SWS,4)}, s{sa} offen{SC}"]
    for j in range(4): c += [f"buffer_load_dwordx4 {vr(f+4+4*j,4)}, v{VL16}, {sr(SWS,4)}, s{sb} offen offset:{1024*j}{SC}"]
    c += [f"buffer_load_dwordx4 {vr(f+20,4)}, v{VL2}, {sr(SWS,4)}, s{sb} offen{SC}",
          f"s_add_u32 s{sa}, s{sa}, 1024", f"s_add_u32 s{sb}, s{sb}, 5120"]
    return c
def gemm(nk, sa, sb, hooks):
    c = []
    for k in range(NBUF - 1): c += hooks.get(k - NBUF + 1, []) + gload(k, sa, sb)
    for k in range(nk):
        c += hooks.get(k, [])
        f = FB + 24 * (k % NBUF)
        mm = [f"v_mfma_f32_32x32x16_bf16 {vr(GA+16*j,16)}, {vr(f+4+4*j,4)}, {vr(f,4)}, {vr(GA+16*j,16)}" for j in range(5)]
        if "G" in opt("LAB", ""): mm = [f"v_mov_b32 v8, v{f+4+4*j}" for j in range(5)]
        ld = gload((k + NBUF - 1) % NBUF, sa, sb) if k + NBUF - 1 < nk else []
        if "L" in opt("LAB", ""): ld = []
        for j in range(5):
            c += [mm[j]]
            if ld: c += [ld[j]] if j < 4 else ld[4:]
    return c
def slab_addr():
    a = SA
    return [f"v_and_b32 v{a+1}, 7, v{VTOK}", f"v_xor_b32 v{a+1}, v{a+1}, v{VH}", f"v_mul_u32_u24 v{a}, 640, v{VTOK}", f"v_lshl_add_u32 v{a}, v{a+1}, 4, v{a}",
            f"s_mul_i32 s{sT}, s{sA}, {KCH}", f"s_add_u32 s{sT}, s{sT}, {LK}", f"s_cmp_eq_u32 s{sA}, 1", f"s_cselect_b32 s{sT}, {LK}, s{sT}",
            f"s_cmp_eq_u32 s{sA}, 0", f"s_cselect_b32 s{sT}, 0, s{sT}", f"v_add_u32 v{a}, s{sT}, v{a}"] + [f"v_xor_b32 v{a+q}, {32*q}, v{a}" for q in range(1, 4)]
def slab_tile(acc, j): return [f"ds_write_b128 v{SA+q}, {vr(acc+4*q,4)} offset:{128*j}" for q in range(4)]
def wo_loads(c0, n):
    W0 = WOF + 40 * (3 - n)
    c = [f"s_mul_i32 s{sT}, s{sCG}, 40", f"s_add_u32 s{sT}, s{sT}, s{sA}", f"s_mul_i32 s{sT}, s{sT}, 5120",
         f"s_add_u32 s{sT}, s{sT}, {hx(WS_WOF + 1024*c0)}", f"s_mul_i32 s{sT+1}, s{sA}, 5120"]
    for k in range(10):
        c += [f"buffer_load_dwordx4 {vr(W0+40*j+4*k,4)}, v{VL16}, {sr(SWS,4)}, s{sT} offen offset:{1024*j}{SC}" for j in range(n)]
        if k < 9: c += [f"s_add_u32 s{sT}, s{sT}, {20480 if k < 8 else 5120}"]
        if k == 7: c += [f"s_add_u32 s{sT}, s{sT}, s{sT+1}"]
    return c
def item_loads():
    t = XV
    c = [f"v_lshrrev_b32 v{t}, 8, v{VL16}", f"v_lshl_add_u32 v{t}, s{sW}, 2, v{t}", f"v_bfe_u32 v{t+1}, v{VL16}, 4, 4",
         f"v_and_b32 v{t+2}, 7, v{t}", f"v_xor_b32 v{t+2}, v{t+2}, v{t+1}", f"v_mul_u32_u24 v{IA}, 640, v{t}", f"v_lshl_add_u32 v{IG}, v{t+1}, 2, v{IA}",
         f"v_lshl_add_u32 v{IA}, v{t+2}, 4, v{IA}", f"v_add_u32 v{IA+1}, {SLB[2]}, v{IA}",
         f"s_mul_i32 s{sT+1}, s{sRTILE}, {32*1280}", f"s_mul_i32 s{sT}, s{sCG}, 320", f"s_add_u32 s{sT+1}, s{sT+1}, s{sT}",
         f"v_lshl_add_u32 v{IG}, v{IG}, 1, s{sT+1}", f"v_lshrrev_b32 v{t+1}, 3, v{t+1}", f"v_lshl_add_u32 v{IG+1}, v{t+1}, 30, v{IG}"]
    return c + [f"buffer_load_dwordx2 {vr(XV+2*p,2)}, v{IG + (p == 2)}, {sr(SX,4)}, 0 offen offset:{128*p}" for p in range(3)]
def reduce4():
    c = []
    for p in range(3):
        c += [f"ds_read_b128 {vr(RED+16*p+4*s,4)}, v{IA + (s >> 1)} offset:{SLB[s] - SLB[s & 2] + 256*p}" for s in range(4)]
    for p in range(3):
        b = RED + 16 * p
        c += [f"v_add_f32 v{b+i}, v{b+i}, v{b+4+i}" for i in range(4)] + [f"v_add_f32 v{b+8+i}, v{b+8+i}, v{b+12+i}" for i in range(4)]
        c += [f"v_add_f32 v{b+i}, v{b+i}, v{b+8+i}" for i in range(4)]
    return c
def g_items():
    r = reduce4()
    for p in range(3):
        b = RED + 16 * p; g = GR + 4 * p
        r += [f"v_mul_f32 v{b+4+i}, {fl(-LOG2E)}, v{b+i}" for i in range(4)]
        r += [f"v_exp_f32 v{b+4+i}, v{b+4+i}" for i in range(4)]
        r += [f"v_add_f32 v{b+4+i}, 1.0, v{b+4+i}" for i in range(4)]
        r += [f"v_rcp_f32 v{b+4+i}, v{b+4+i}" for i in range(4)]
        r += [f"v_mul_f32 v{g+i}, v{b+i}, v{b+4+i}" for i in range(4)]
    return r
def p3_setup(slab=True):
    return [f"s_mul_i32 s{sT+4}, s{sRTILE}, 40", f"s_add_u32 s{sT+4}, s{sT+4}, s{sA}", f"s_add_u32 s{sT+5}, s{sT+4}, s{sA}",
            f"s_lshl_b32 s{sT+4}, s{sT+4}, 10", f"s_add_u32 s{sT+4}, s{sT+4}, {hx(WS_O)}", f"s_lshl_b32 s{sT+5}, s{sT+5}, 10", f"s_add_u32 s{sT+5}, s{sT+5}, {hx(WS_O + 32768)}",
            f"v_and_b32 v{PAD}, 0x2f0, v{VL16}", f"v_bfe_u32 v{PD}, v{VL16}, 8, 1", f"v_lshl_add_u32 v{PAD}, v{PD}, 3, v{PAD}",
            f"s_mov_b32 s{sT+6}, {SPIN}"] + (slab_addr() if slab else [])
def unpack(d, s):
    return [f"v_lshlrev_b32 v{d}, 16, v{s}", f"v_and_b32 v{d+1}, 0xffff0000, v{s}",
            f"v_lshlrev_b32 v{d+2}, 16, v{s+1}", f"v_and_b32 v{d+3}, 0xffff0000, v{s+1}"]
def bias2():
    t = FB
    c = [f"v_add_u32 v{t}, s{sA}, v{VH}", f"v_lshlrev_b32 v{t}, 20, v{t}", f"v_lshl_add_u32 v{t}, v{VTOK}, 1, v{t}", f"s_mul_i32 s{sT}, s{sCG}, 320",
         f"v_mov_b32 v{t+2}, 0x3f80", f"v_mov_b32 v{t+3}, 0"]
    c += [f"buffer_load_ushort v{t+4+2*j}, v{t}, {sr(SB2,4)}, s{sT} offen offset:{64*j}" for j in range(5)]
    c += [f"v_mov_b32 v{t+5+2*j}, 0" for j in range(5)]
    return c + [f"v_mfma_f32_32x32x8_bf16 {vr(GA+16*j,16)}, {vr(t+4+2*j,2)}, {vr(t+2,2)}, 0" for j in range(5)]
def b_phase2():
    sa, sb = sT + 11, sT + 7
    t = 2
    g = [f"v_add_u32 v{VL2}, 4096, v{VL16}",
         f"v_min_u32 v{t}, 23, v{VTOK}", f"s_mul_i32 s{sT}, s{sCG}, 5", f"s_lshr_b32 s{sT}, s{sT}, 1", f"s_lshl_b32 s{sT}, s{sT}, 3", f"v_add_lshl_u32 v{t}, v{t}, s{sT}, 7",
         f"v_add_u32 v9, {hx(WS_FR - WS_F2)}, v{t}"]
    g += [f"v_lshlrev_b32 v{t}, 3, v{VL16}", f"v_and_b32 v{t}, 0x780, v{t}", f"s_lshl_b32 s{sT+3}, s{sRTILE}, 11", f"v_add_u32 v{t}, s{sT+3}, v{t}",
         f"v_cmp_eq_u32 vcc, 0, v{VH}", f"v_cndmask_b32 v{t}, v9, v{t}, vcc", f"s_mov_b32 s{sT+3}, {hx(WS_F2)}",
         f"s_lshl_b32 s{sT}, s2, 2", f"s_add_u32 s{sT}, s{sT}, s{sA}", f"s_cmp_eq_u32 s{sT}, 0", "s_cbranch_scc0 LB_nep"]
    ep = [f"v_lshlrev_b32 v10, 3, v{VL16}"]
    for q in range(4):
        ep += [f"s_mov_b32 s{sT}, {hx(WS_F1 + 8192*q)}", poll_load(11, 10, f"s{sT}"), "s_waitcnt vmcnt(0)"] + poll_check(f"LB_pe{q}", 11, 10, f"s{sT}")
    g += opaque(ep + [f"s_mov_b32 s{sT}, {hx(WS_EP)}"] + flag_store(f"s{sT}", t=10)) + ["LB_nep:"] + item_loads() + slab_addr() + bias2() + ["s_waitcnt vmcnt(0)"] + tr("att", 2) + ["s_barrier"] + tr("att", 3) + [poll_load(8, t, f"s{sT+3}", 4)]
    g += poll_check("LB_p2", 8, t, f"s{sT+3}", 4, sl=opt("SL2", 3)) + stamp(6) + tr("att", 10) + ["s_setprio 0"]
    g += [f"s_mul_i32 s{sa}, s{sRTILE}, 108", f"s_mul_i32 s{sT}, s{sA}, 27", f"s_add_u32 s{sa}, s{sa}, s{sT}", f"s_lshl_b32 s{sa}, s{sa}, 10",
          f"s_add_u32 s{sa}, s{sa}, {hx(WS_H)}",
          f"s_mul_i32 s{sb}, s{sCG}, 108", f"s_add_u32 s{sb}, s{sb}, s{sT}", f"s_mul_i32 s{sb}, s{sb}, 5120", f"s_add_u32 s{sb}, s{sb}, {hx(WS_W2F)}"]
    v3 = vchunk(VPOS[3]) + [mark("v3")]
    h2, h3 = [int(x) for x in opt("GH", "7,19").split(",")]
    g += gemm(27, sa, sb, {h2: tr("att", 4) + ["s_barrier"] + tr("att", 5) + v3, h3: [waitfor("v3")] + tr("att", 6) + ["s_barrier"] + tr("att", 7)})
    g += wo_loads(2, 3)
    for j in range(5): g += slab_tile(GA + 16*j, j)
    g += ["s_waitcnt lgkmcnt(0)"] + stamp(7) + tr("att", 8) + ["s_barrier"] + tr("att", 9) + p3_setup(False) + g_items() + [f"s_cmp_eq_u32 s{sA}, 0", "s_cbranch_scc0 LB_np3"]
    g += opaque(flat([f"v_lshlrev_b32 v2, 7, v{VTOK}", f"s_lshr_b32 s{sT+3}, s{sRTILE}, 1", f"s_lshl_b32 s{sT+3}, s{sT+3}, 12", f"s_add_u32 s{sT+3}, s{sT+3}, {hx(WS_F3)}",
          poll_load(PD, 2, f"s{sT+3}"), "s_waitcnt vmcnt(0)"] + poll_check("LB_p3", PD, 2, f"s{sT+3}"))) + ["LB_np3:", "s_barrier"]
    return fin(g)

def o_load(k):
    if k < 8: return [f"s_add_u32 s{sT}, s{sT+4}, {4096*k}", f"buffer_load_dwordx4 {vr(OF[k],4)}, v{VL16}, {sr(SWS,4)}, s{sT} offen{SC}"]
    return [f"buffer_load_dwordx2 {vr(OF[k]+2*t,2)}, v{PAD}, {sr(SWS,4)}, s{sT+5} offen offset:{1024*(k-8) + 256*t}{SC}" for t in range(2)]
def p3_gemm(c0, n, lab):
    W0 = WOF + 40 * (3 - n)
    mm = lambda j, k: f"v_mfma_f32_32x32x16_bf16 {vr(RED+16*j,16)}, {vr(W0+40*j+4*k,4)}, {vr(OF[k],4)}, {'0' if k == 0 else vr(RED+16*j,16)}"
    c = stamp(8) + [f"{lab}:"] + flat([o_load(k) for k in range(10)])
    for k in range(10):
        c += [mm(0, k), f"v_max3_u32 v{PD}, v{OF[k]}, v{OF[k]+1}, {'0' if k == 0 else f'v{PD}'}", f"v_max3_u32 v{PD}, v{OF[k]+2}, v{OF[k]+3}, v{PD}"]
    c += [mm(1, 0), f"v_cmp_eq_u32 vcc, -1, v{PD}", f"s_sub_u32 s{sT+6}, s{sT+6}, 1", "s_cselect_b64 vcc, 0, vcc", "s_cmp_lg_u64 vcc, 0", f"s_cbranch_scc1 {lab}"]
    for j in range(1, n):
        for k in range(10):
            if (j, k) != (1, 0): c += [mm(j, k)]
            if 5 <= k < 9: c += [slab_tile(RED + 16*(j-1), c0 + j - 1)[k - 5]]
    c += slab_tile(RED + 16*(n-1), c0 + n - 1)
    return fin(c + ["s_waitcnt lgkmcnt(0)"])

def phase3():
    r = p3_gemm(2, 3, "L_p3b") + ["L_p3j:"]
    z = ["s_barrier"] + reduce4()
    for p in range(3):
        b = RED + 16 * p
        z += unpack(b + 4, XV + 2*p)
        z += [f"v_fma_f32 v{b+i}, v{b+i}, v{GR+4*p+i}, v{b+4+i}" for i in range(4)]
        z += [f"v_cvt_pk_bf16_f32 v{b+12}, v{b}, v{b+1}", f"v_cvt_pk_bf16_f32 v{b+13}, v{b+2}, v{b+3}",
              f"buffer_store_dwordx2 {vr(b+12,2)}, v{IG + (p == 2)}, {sr(SOUT,4)}, 0 offen offset:{128*p}" + opt("OST", " sc1")]
    return r + fin(z)

def kernel(name):
    isv = [f"s_sub_u32 s{sT}, s{sCB}, 10", f"s_cmp_lt_u32 s{sT}, 5"]
    def helpers(R, nxt):
        c = [f"s_cmp_eq_u32 s{sCB}, 15", f"s_cbranch_scc1 LH{R}h"] + isv + [f"s_cbranch_scc0 LH{R}q"]
        c += fin(helper(R, 'V'), pre=C_PRE) + [f"s_branch {nxt}", f"LH{R}h:"] + fin(helper(R, 'H'), pre=C_PRE) + [f"s_branch {nxt}", f"LH{R}q:"]
        return c + fin(helper(R, 'QK'), pre=C_PRE)
    er, ev = ext('N')
    c = ["L_first:"] + stamp(0) + stamp(10, True) + tr("r0", 11) + tr("st", 11) + prologue()
    c += b_round0() + stamp(3) + [f"s_mov_b32 s{sR}, 1"] + isv + ["s_cbranch_scc0 LC"]
    c += c_body('V') + ["s_branch LB_2"]
    c += ["LC:"] + c_body('N') + [f"s_cmp_eq_u32 s{sR}, 2", "s_cbranch_scc1 LA_3", f"s_cmp_eq_u32 s{sR}, 3", "s_cbranch_scc1 LB_t4"]
    c += ["LB_2:", f"s_mov_b32 s{sR}, 2"] + helpers(2, "LB_3")
    c += ["LB_3:", f"s_mov_b32 s{sR}, 3", f"s_cmp_eq_u32 s{sNR}, 4", "s_cbranch_scc1 LC"]
    c += fin(stamp(4) + ["s_setprio 3"] + f1_addr(True) + kv_base(0) + poll_check("LB_p1", PF, PA, f"s{sT+3}", 4) + first_kv() + f1_addr(False)
             + [f"s_cmp_ge_u32 s{sTASK}, 10", "s_cbranch_scc1 LB_r1"] + opaque(relayout() + ["s_waitcnt vmcnt(0)"] * 0) + ["LB_r1:"])
    c += fin([f"s_cmp_lt_u32 s{sTASK}, 10", "s_cbranch_scc1 LB_r3", "s_waitcnt vmcnt(0)", "LB_r3:", f"s_and_b32 s{sT}, s2, 7", f"s_cmp_lg_u32 s{sT}, 5", "s_cbranch_scc1 LB_r4",
              "s_waitcnt vmcnt(0)", "LB_r4:", "s_waitcnt vmcnt(10)", "s_barrier"] + stamp(5) + f2_addr() + flag_store2(f"s{sT}", TB)
             + poll_check("LB_p5", PF, PA, f"s{sT+3}", 4) + [mark("r")] + rest_kv()[0]
             + [f"s_cmp_ge_u32 s{sTASK}, 10", "s_cbranch_scc1 LB_r2", waitfor("r")] + opaque(fr_addr() + flag_store(f"s{sT}", TB)) + ["LB_r2:"]
             + rest_kv()[1] + ["s_branch LB_g"])
    c += ["LB_t4:"] + fin(stamp(4) + stamp(5) + er + f1_addr(False) + kv_base(1) + [f"s_lshl_b32 s{sCT}, s{sHU}, 1", f"s_add_u32 s{sCT}, s{sCT}, 2"] + ev + epi_h(0) + epi_h(1) + [mark("h")]
             + poll_check("LB_p4", PF, PA, f"s{sT+3}", 4) + rest_kv()[0] + f2_addr() + [waitfor("h")] + flag_store2(f"s{sT}", TB) + rest_kv()[1], pre=C_PRE)
    c += ["LB_g:"] + tr("att", 1) + b_phase2() + phase3()
    c += ["s_waitcnt vmcnt(0)"] * bool(STAMP) + stamp(9) + stamp(11, True) + stamp_flush(SWS, sW) + ["L_end:", "s_endpgm"]
    c += fix_hazards(["LA:"] + tr("st", 1) + PRE_W + prologue2() + (touch(SX, 2621440) + touch(sWQ, 640*3840) if opt("PF0", 0) else []) + tr("st", 2) + (page_touch() if opt("PFT", 0) else []) + lane_setup('A') + tr("st", 4) + aim(1) + tr("st", 5) + stamp(1) + ["s_waitcnt lgkmcnt(0)", f"s_add_u32 s{sN}, s{sN}, 1", "s_setprio 2"]
                     + isv + ["s_cbranch_scc0 LA_n"] + ones_rows() + bias_ld(0))
    c += a_round0('V') + ["s_branch LA_1", "LA_n:"] + fix_hazards(bias_ld(0)) + a_round0('N')
    c += ["LA_1:", f"s_mov_b32 s{sR}, 1"] + stamp(3) + helpers(1, "LA_2") + ["LA_2:"] + xs("r1") + [f"s_mov_b32 s{sR}, 2", "s_branch LC"]
    c += ["LA_3:"] + xs("r2") + [f"s_mov_b32 s{sR}, 3", f"s_lshl_b32 s{sCT}, s{sHU}, 1", f"s_cmp_eq_u32 s{sNR}, 4", "s_cbranch_scc1 LA_h3"]
    c += fin(stamp(4) + er + ev + epi_h(0) + epi_h(1) + ["s_barrier", "s_branch LA_att"], pre=C_PRE)
    c += ["LA_h3:"] + fin(helper(3, 'H') + stamp(4), pre=C_PRE) + ["LA_att:"] + attn() + ["L_last:"]
    return kernel_head(name) + render(c)

if __name__ == "__main__":
    import sys
    name = "recurrent_scan__mha_block__mixer_channel_mlp__prompt_kernel"
    HEAD = open("recurrent_scan__mha_block__mixer_channel_mlp__prompt.s.ref").read().split("; Override")[0]
    s = HEAD + "; @launch grid=(256,1,1) block=(512,1,1) lds=163840\n" + '.amdgcn_target "amdgcn-amd-amdhsa--gfx950"\n'
    s += kernel(name) + kernel_desc(name, 256, 102)
    open(sys.argv[1], "w").write(s)
```
